```python
import torch

def _softmax(x, axis=-1):
    return torch.softmax(x, dim=axis)
def _gelu(x):
    return torch.nn.functional.gelu(x, approximate="tanh")
def _silu(x):
    return torch.nn.functional.silu(x)
def _sigmoid(x):
    return torch.sigmoid(x)
def _layernorm(x, axis=-1, eps=1e-5):
    m = x.mean(dim=axis, keepdim=True)
    v = x.var(dim=axis, keepdim=True, unbiased=False)
    return (x - m) / torch.sqrt(v + eps)
def _scatter_add(tgt, idx, src, axis=0):
    return tgt.clone().index_add_(axis, idx, src)
def _segment_sum(src, seg, n):
    out = torch.zeros((n,) + src.shape[1:], dtype=src.dtype)
    return out.index_add_(0, seg, src)
def _pad(x, pw):
    flat = tuple(v for pair in reversed(pw) for v in pair)
    return torch.nn.functional.pad(x, flat)

kernel_name = 'parallel_sum__sliding_block_cached__dense_activation_silu__decode'

def setup_inputs():

    _w = (lambda a: (lambda t: t.to(torch.bfloat16) if t.is_floating_point() else t)(torch.as_tensor(a)))
    def _A_setup():
        B, Sq, D = 1, 1, 640
        Hq, Hkv, Sk, Dh = 32, 32, 4096, 128
        assert Hq % Hkv == 0, (Hq, Hkv)
        return {
            "x": _w((lambda *s: torch.randn(*s, dtype=torch.bfloat16) * 0.05)(B, Sq, D)),
            "k_cache": _w((lambda *s: torch.randn(*s, dtype=torch.bfloat16) * 3.2)(B, Hkv, Sk, Dh)),
            "v_cache": _w((lambda *s: torch.randn(*s, dtype=torch.bfloat16) * 0.8)(B, Hkv, Sk, Dh)),
            "wq": _w((lambda *s: torch.randn(*s, dtype=torch.bfloat16) * 3.2)(D, Hq * Dh) * (D ** -0.5)),
            "wo": _w((lambda *s: torch.randn(*s, dtype=torch.bfloat16) * 0.8)(Hq * Dh, D) * ((Hq * Dh) ** -0.5)),
        }
    _A_in = _A_setup()

    def _B_setup():
        B, S, D, F = 1, 1, 640, 1728
        return {
            "x": _w((lambda *s: torch.randn(*s, dtype=torch.bfloat16) * 0.05)(B, S, D)),
            "w1": _w((lambda *s: torch.randn(*s, dtype=torch.bfloat16) * 3.2)(D, F) * (D ** -0.5)),
            "w2": _w((lambda *s: torch.randn(*s, dtype=torch.bfloat16) * 0.4)(F, D) * (F ** -0.5)),
        }
    _B_in = _B_setup()

    return {
        "A_x": _A_in["x"],
        "A_k_cache": _A_in["k_cache"],
        "A_v_cache": _A_in["v_cache"],
        "A_wq": _A_in["wq"],
        "A_wo": _A_in["wo"],
        "B_x": _B_in["x"],
        "B_w1": _B_in["w1"],
        "B_w2": _B_in["w2"],
    }

def reference(A_x, A_k_cache, A_v_cache, A_wq, A_wo, B_x, B_w1, B_w2):
    def _A_ref(x, k_cache, v_cache, wq, wo):
        B, Sq, D = x.shape
        Hq, Dh = 32, 128
        Hkv, Sk = k_cache.shape[1], k_cache.shape[2]
        W = min(4096, max(256, Sk // 4))
        rep = Hq // Hkv
        q = (lambda x, *d: x.permute(*d))((x @ wq).reshape(B, Sq, Hq, Dh), 0, 2, 1, 3)
        k = (lambda x, n, axis: torch.repeat_interleave(x, n, dim=axis))(k_cache[:, :, Sk - W:, :], rep, axis=1)
        v = (lambda x, n, axis: torch.repeat_interleave(x, n, dim=axis))(v_cache[:, :, Sk - W:, :], rep, axis=1)
        scores = torch.einsum("bhqd,bhkd->bhqk", q, k) * (Dh ** -0.5)
        p = _softmax(scores, axis=-1)
        o = torch.einsum("bhqk,bhkd->bhqd", p, v)
        return (lambda x, *d: x.permute(*d))(o, 0, 2, 1, 3).reshape(B, Sq, Hq * Dh) @ wo

    def _B_ref(x, w1, w2):
        h = torch.einsum("bsd,df->bsf", x, w1)
        h = _silu(h)
        out = torch.einsum("bsf,fd->bsd", h, w2)
        return out

    x = A_x
    xn = _layernorm(x, axis=-1)
    return x + _A_ref(xn, A_k_cache, A_v_cache, A_wq, A_wo) + _B_ref(xn, B_w1, B_w2)
```

```python
import sys, struct
from hazcheck import check
NAME = 'parallel_sum__sliding_block_cached__dense_activation_silu__decode'
HDR = open('cdna_kernels/%s.s.ref' % NAME).read().split('; Override launch')[0]
def f32(x): return '0x%08x' % struct.unpack('<I', struct.pack('<f', x))[0]
LOG2E = 1.4426950408889634

XN, QP, HP, QB, OP, ML, FP = 0, 2560, 6656, 10752, 11008, 15104, 15168
LDS_BYTES = 19456
R1 = 4096
R2 = 4096 + 256*1024
R2B = 5*32*512
SPIN = 1 << 18

def gen(order, stamps=False, flags='nt', wqflags='', prio=True, xflags='', probe=None, amp=10, base_ticks=5000, only=None):
    L = []
    def a(s): L.append('  ' + s)
    def lab(s): L.append(s + ':')
    st = []
    sreg = [70]
    cnt = [0]
    def stamp():
        k = cnt[0]; cnt[0] += 1
        if probe is not None:
            if k == 0: a('s_memrealtime s[70:71]')
            elif k == probe: a('s_memrealtime s[72:73]')
        elif stamps:
            r = sreg[0]; sreg[0] += 2; assert r + 1 < 102
            a('s_memrealtime s[%d:%d]' % (r, r+1)); st.append(r)
    L.append(HDR.rstrip())
    L.append('; @launch grid=(256,1,1) block=(512,1,1) lds=%d' % LDS_BYTES)
    L.append('.amdgcn_target "amdgcn-amd-amdhsa--gfx950"'); L.append('.text')
    L.append('.globl %s_kernel' % NAME); L.append('.p2align 8'); L.append('.type %s_kernel,@function' % NAME)
    lab('%s_kernel' % NAME)
    M, Gq, LN_, AWQ, AKV, AF, AW1, AX4, AX1, LXQ, LXW, LD, LH, AP1, NON = range(1, 16)
    SLO, SHI = 16, 20
    ACQ, ACH = 24, 28
    AB = [32, 36]
    T = 40
    X4, X1, XF = 64, 68, 70
    XV, XW = 72, 92
    WQ, W1, KK, VV, FF = 96, 176, 188, 204, 220
    NV = 236
    sH, sS, sW = 24, 25, 26
    sX, sK, sV, sWQ, sW1, sF, sWS, sOUT, sW1b = 28, 32, 36, 40, 44, 48, 52, 56, 60
    sQO, sKVO, sFO, sW1O, sT0, sT1, sLG, sCNT = 64, 65, 66, 67, 68, 69, 27, 3
    srd = lambda r: 's[%d:%d]' % (r, r+3)
    v4 = lambda r: 'v[%d:%d]' % (r, r+3)
    v2 = lambda r: 'v[%d:%d]' % (r, r+1)
    stamp()
    a('s_cmp_ge_u32 s2, 256'); a('s_cbranch_scc1 L_end')
    a('s_load_dwordx16 s[4:19], s[0:1], 0')
    a('s_load_dwordx2 s[20:21], s[0:1], 64')
    a('s_load_dwordx2 s[22:23], s[0:1], 80')
    if prio: a('s_setprio 3')
    a('v_and_b32 v%d, 63, v0' % LN_)
    a('v_lshrrev_b32 v%d, 6, v0' % T)
    a('v_and_b32 v%d, 15, v0' % M)
    a('v_bfe_u32 v%d, v0, 4, 2' % Gq)
    a('v_readfirstlane_b32 s%d, v%d' % (sW, T))
    a('s_and_b32 s%d, s2, 31' % sH)
    a('s_lshr_b32 s%d, s2, 5' % sS)
    a('v_lshlrev_b32 v%d, 4, v%d' % (AX4, LN_))
    a('v_lshlrev_b32 v%d, 2, v%d' % (AX1, LN_))
    a('v_lshrrev_b32 v%d, 4, v0' % (T+1))
    a('v_lshlrev_b32 v%d, 4, v%d' % (T+2, M))
    a('s_lshl_b32 s%d, s%d, 8' % (sT0, sH))
    a('v_lshl_add_u32 v%d, v%d, 13, v%d' % (AWQ, T+1, T+2))
    a('v_add_u32 v%d, s%d, v%d' % (AWQ, sT0, AWQ))
    a('v_lshl_add_u32 v%d, v%d, 10, v%d' % (AKV, T+1, T+2))
    for r, n in ((sX, 1280), (sWQ, 5242880), (sK, 33554432), (sV, 33554432), (sWS, 268435456), (sOUT, 1280)):
        a('s_mov_b32 s%d, 0x%x' % (r+2, n)); a('s_mov_b32 s%d, 0x20000' % (r+3))
    for r in (sW1, sW1b, sF): a('s_mov_b32 s%d, 0x20000' % (r+3))
    a('s_mul_i32 s%d, s%d, 5' % (sT0, sS)); a('s_lshr_b32 s%d, s%d, 1' % (sT0, sT0))
    a('s_lshl_b32 s%d, s%d, 18' % (sQO, sT0))
    a('s_lshl_b32 s%d, s%d, 6' % (sT0, sT0))
    a('v_lshlrev_b32 v%d, 1, v%d' % (LXQ, T+1))
    a('v_add_u32 v%d, s%d, v%d' % (LXQ, sT0, LXQ))
    a('s_lshl_b32 s%d, s%d, 12' % (sKVO, sH)); a('s_lshl_b32 s%d, s%d, 7' % (sT0, sS))
    a('s_add_u32 s%d, s%d, s%d' % (sKVO, sKVO, sT0)); a('s_add_u32 s%d, s%d, 3072' % (sKVO, sKVO)); a('s_lshl_b32 s%d, s%d, 8' % (sKVO, sKVO))
    a('v_lshrrev_b32 v%d, 3, v%d' % (T+3, M))
    a('v_lshl_add_u32 v%d, v%d, 2, v%d' % (T+4, T+3, Gq))
    a('v_lshl_add_u32 v%d, v%d, 3, v%d' % (T+4, T, T+4))
    a('v_and_b32 v%d, 7, v%d' % (T+5, M))
    a('v_mul_u32_u24 v%d, 3456, v%d' % (AW1, T+4))
    a('v_lshl_add_u32 v%d, v%d, 4, v%d' % (AW1, T+5, AW1))
    a('v_lshlrev_b32 v%d, 1, v%d' % (LXW, T+4))
    a('s_lshl_b32 s%d, s%d, 7' % (sT1, sH))
    a('s_mul_i32 s%d, s%d, %d' % (sW1O, sS, 64*3456)); a('s_add_u32 s%d, s%d, s%d' % (sW1O, sW1O, sT1))
    a('s_cmp_lt_u32 s%d, 27' % sH); a('s_cselect_b32 s%d, 2211840, 0' % (sW1+2))
    a('s_cmp_eq_u32 s%d, 7' % sS); a('s_cselect_b32 s%d, s%d, 0' % (sW1b+2, sW1+2))
    a('s_waitcnt lgkmcnt(0)')
    if probe is not None: a('s_mov_b32 s72, s70')
    issued = []
    def ld(name, text): a(text); issued.append(name)
    def wait(name):
        n = len(issued) - 1 - issued.index(name)
        a('s_waitcnt vmcnt(%d)' % n)
    def base(r, p): a('s_mov_b32 s%d, s%d' % (r, p)); a('s_mov_b32 s%d, s%d' % (r+1, p+1))
    base(sX, 4)
    ld('x4', 'buffer_load_dwordx4 %s, v%d, %s, 0 offen %s' % (v4(X4), AX4, srd(sX), xflags))
    ld('x1', 'buffer_load_dword v%d, v%d, %s, 0 offen offset:1024 %s' % (X1, AX1, srd(sX), xflags))
    base(sWQ, 10); base(sK, 6); base(sW1, 16); base(sW1b, 16); base(sV, 8); base(sWS, 22); base(sOUT, 20)
    def setup_late():
        a('v_and_b32 v%d, 15, v%d' % (T+6, T+1))
        a('s_cmp_lt_u32 s%d, 5' % sS)
        a('s_cselect_b64 vcc, -1, 0')
        a('s_cselect_b32 s%d, s12, s18' % sF); a('s_cselect_b32 s%d, s13, s19' % (sF+1))
        a('v_cndmask_b32 v%d, v%d, v%d, vcc' % (T+6, T+6, T+1))
        a('v_mul_u32_u24 v%d, %d, v%d' % (AF, 4*1280, T+6))
        a('v_add_u32 v%d, v%d, v%d' % (AF, AF, T+2))
        a('s_lshr_b32 s%d, s%d, 2' % (sT0, sW)); a('s_lshl_b32 s%d, s%d, 1' % (sT1, sS)); a('s_add_u32 s%d, s%d, s%d' % (sT0, sT0, sT1)); a('s_sub_u32 s%d, s%d, 10' % (sT0, sT0))
        a('s_cmp_lt_u32 s%d, 5' % sS)
        a('s_cselect_b32 s%d, s%d, s%d' % (sT0, sS, sT0))
        a('s_mov_b32 s%d, %d' % (sT1, 64*1280))
        a('s_cselect_b32 s%d, %d, s%d' % (sT1, 128*1280, sT1))
        a('s_mul_i32 s%d, s%d, s%d' % (sFO, sH, sT1))
        a('s_lshl_b32 s%d, s%d, 8' % (sT1, sT0)); a('s_add_u32 s%d, s%d, s%d' % (sFO, sFO, sT1))
        a('s_cmp_lt_u32 s%d, 5' % sT0); a('s_cselect_b32 s%d, s%d, 0' % (sF+2, sW1+2))
        a('s_cmp_lt_u32 s%d, 5' % sS); a('s_cselect_b32 s%d, 5242880, s%d' % (sF+2, sF+2))
        a('v_lshlrev_b32 v%d, 9, v%d' % (LD, T))
        a('v_lshl_add_u32 v%d, v%d, 8, v%d' % (LH, T+3, LD))
        a('v_lshl_add_u32 v%d, v%d, 5, v%d' % (LH, T+5, LH))
        a('v_and_b32 v%d, 1, v%d' % (T+7, Gq))
        a('v_lshl_add_u32 v%d, v%d, 4, v%d' % (LH, T+7, LH))
        a('v_lshl_add_u32 v%d, v%d, 5, v%d' % (LD, M, LD))
        a('v_lshl_add_u32 v%d, v%d, 4, v%d' % (LD, Gq, LD))
        a('v_lshlrev_b32 v%d, 4, v%d' % (T+8, T+6))
        a('v_add_u32 v%d, 512, v%d' % (T+9, T+8))
        a('v_mov_b32 v%d, 768' % (T+10))
        a('v_cmp_gt_u32 s[%d:%d], 8, v%d' % (sT0, sT1, M))
        a('s_nop 1')
        a('v_cndmask_b32 v%d, v%d, v%d, s[%d:%d]' % (T+8, T+10, T+8, sT0, sT1))
        a('v_cndmask_b32 v%d, v%d, v%d, vcc' % (T+8, T+9, T+8))
        a('v_lshl_add_u32 v%d, v%d, 10, v%d' % (AP1, T+5, T+8))
        a('s_lshl_b32 s%d, s%d, 13' % (sT0, sH)); a('s_add_u32 s%d, s%d, %d' % (sT0, sT0, R1))
        a('v_add_u32 v%d, s%d, v%d' % (AP1, sT0, AP1))
        a('v_and_b32 v%d, 1, v%d' % (T+7, M))
        a('v_cmp_eq_u32 vcc, 1, v%d' % (T+7))
        a('v_mov_b32 v%d, 0x0c0c0100' % (T+8)); a('v_mov_b32 v%d, 0x01000c0c' % (T+9))
        a('v_cndmask_b32 v%d, v%d, v%d, vcc' % (T+8, T+8, T+9))
        a('v_mov_b32 v%d, 0x0c0c0302' % (T+9)); a('v_mov_b32 v%d, 0x03020c0c' % (T+10))
        a('v_cndmask_b32 v%d, v%d, v%d, vcc' % (T+9, T+9, T+10))
        a('v_lshrrev_b32 v%d, 1, v%d' % (T+7, T+5))
        a('v_mov_b32 v%d, 0x0c0c0c0c' % (T+10))
        for r in range(4):
            a('v_cmp_eq_u32 vcc, %d, v%d' % (r, T+7))
            a('s_nop 1')
            a('v_cndmask_b32 v%d, v%d, v%d, vcc' % (SLO+r, T+10, T+8))
            a('v_cndmask_b32 v%d, v%d, v%d, vcc' % (SHI+r, T+10, T+9))
        a('s_mov_b32 s%d, %s' % (sLG, f32(LOG2E)))
    def reduce64(r, sdst):
        for k in (8, 4, 2, 1):
            a('s_nop 1'); a('v_add_f32_dpp v%d, v%d, v%d row_ror:%d row_mask:0xf bank_mask:0xf' % (r, r, r, k))
        a('s_nop 1'); a('v_add_f32_dpp v%d, v%d, v%d row_bcast:15 row_mask:0xa bank_mask:0xf' % (r, r, r))
        a('s_nop 1'); a('v_add_f32_dpp v%d, v%d, v%d row_bcast:31 row_mask:0xc bank_mask:0xf' % (r, r, r))
        a('s_nop 0'); a('v_readlane_b32 s%d, v%d, 63' % (sdst, r)); a('s_nop 1')
    def unpack(dst, src):
        a('v_lshlrev_b32 v%d, 16, v%d' % (dst, src)); a('v_and_b32 v%d, 0xffff0000, v%d' % (dst+1, src))
    def layernorm():
        wait('x1')
        Fx = T
        for k in range(4): unpack(Fx+2*k, X4+k)
        unpack(Fx+8, X1)
        S, D = T+10, T+11
        a('v_add_f32 v%d, v%d, v%d' % (S, Fx, Fx+1))
        for k in range(2, 10): a('v_add_f32 v%d, v%d, v%d' % (S, S, Fx+k))
        reduce64(S, sT0)
        a('v_mov_b32 v%d, %s' % (T+21, f32(1.0/640)))
        a('v_mul_f32 v%d, s%d, v%d' % (S, sT0, T+21))
        for k in range(10): a('v_sub_f32 v%d, v%d, v%d' % (D+k, Fx+k, S))
        Q = T+22
        a('v_mul_f32 v%d, v%d, v%d' % (Q, D, D))
        for k in range(1, 10): a('v_fmac_f32 v%d, v%d, v%d' % (Q, D+k, D+k))
        a('v_cvt_pk_bf16_f32 v%d, v%d, v%d' % (S, S, S))
        a('v_and_b32 v%d, 0xffff0000, v%d' % (S, S))
        reduce64(Q, sT0)
        a('v_mul_f32 v%d, s%d, v%d' % (Q, sT0, T+21))
        a('v_cvt_pk_bf16_f32 v%d, v%d, v%d' % (Q, Q, Q)); a('v_and_b32 v%d, 0xffff0000, v%d' % (Q, Q))
        a('v_add_f32 v%d, %s, v%d' % (Q, f32(1e-5), Q))
        a('v_cvt_pk_bf16_f32 v%d, v%d, v%d' % (Q, Q, Q)); a('v_and_b32 v%d, 0xffff0000, v%d' % (Q, Q))
        a('v_sqrt_f32 v%d, v%d' % (Q, Q))
        for k in range(10): a('v_sub_f32 v%d, v%d, v%d' % (D+k, Fx+k, S))
        a('v_cvt_pk_bf16_f32 v%d, v%d, v%d' % (Q, Q, Q)); a('v_and_b32 v%d, 0xffff0000, v%d' % (Q, Q))
        a('v_rcp_f32 v%d, v%d' % (Q, Q))
        for k in range(5): a('v_cvt_pk_bf16_f32 v%d, v%d, v%d' % (Fx+k, D+2*k, D+2*k+1))
        for k in range(5): unpack(D+2*k, Fx+k)
        for k in range(10): a('v_mul_f32 v%d, v%d, v%d' % (D+k, D+k, Q))
        for k in range(5): a('v_cvt_pk_bf16_f32 v%d, v%d, v%d' % (Fx+k, D+2*k, D+2*k+1))
        a('ds_write_b128 v%d, %s offset:%d' % (AX4, v4(Fx), XN))
        a('ds_write_b128 v%d, %s offset:%d' % (AX4, v4(Fx), XN+1280))
        a('ds_write_b32 v%d, v%d offset:%d' % (AX1, Fx+4, XN+1024))
        a('ds_write_b32 v%d, v%d offset:%d' % (AX1, Fx+4, XN+1024+1280))
        a('s_lshl_b32 s%d, s%d, 7' % (sT0, sS))
        a('v_add_u32 v%d, s%d, v%d' % (T+5, sT0, LXW))
        a('s_waitcnt lgkmcnt(0)')
        a('ds_read_u16 v%d, v%d offset:%d' % (XW, T+5, XN))
        a('ds_read_u16 v%d, v%d offset:%d' % (XW+1, LXW, XN+1024))
        a('ds_read_u16 v%d, v%d offset:%d' % (XW+2, LXW, XN+1152))
        for t in range(20): a('ds_read_u16 v%d, v%d offset:%d' % (XV+t, LXQ, XN+64*t))
    nwq = [0]
    for item in order:
        kind = item[0]
        if kind == 'wq':
            t = nwq[0]; nwq[0] += 1
            ld('wq%d' % t, 'buffer_load_dwordx4 %s, v%d, %s, s%d offen %s' % (v4(WQ+4*t), AWQ, srd(sWQ), sQO, wqflags))
            if t < 19:
                a('s_add_u32 s%d, s%d, 0x40000' % (sQO, sQO)); a('s_cmp_eq_u32 s%d, %d' % (sQO, 20 << 18)); a('s_cselect_b32 s%d, 0, s%d' % (sQO, sQO))
        elif kind == 'w1':
            ld('w10', 'buffer_load_dwordx4 %s, v%d, %s, s%d offen %s' % (v4(W1), AW1, srd(sW1), sW1O, flags))
            a('s_lshl_b32 s%d, s%d, 7' % (sT1, sH)); a('s_add_u32 s%d, s%d, %d' % (sT1, sT1, 512*3456))
            ld('w11', 'buffer_load_dwordx4 %s, v%d, %s, s%d offen %s' % (v4(W1+4), AW1, srd(sW1b), sT1, flags))
            a('s_add_u32 s%d, s%d, %d' % (sT1, sT1, 64*3456))
            ld('w12', 'buffer_load_dwordx4 %s, v%d, %s, s%d offen %s' % (v4(W1+8), AW1, srd(sW1b), sT1, flags))
        elif kind == 'k':
            i = item[1]; ld('k%d' % i, 'buffer_load_dwordx4 %s, v%d, %s, s%d offen offset:%d %s' % (v4(KK+4*i), AKV, srd(sK), sKVO, 256*i, flags))
        elif kind == 'v':
            i = item[1]; ld('v%d' % i, 'buffer_load_dwordx4 %s, v%d, %s, s%d offen offset:%d %s' % (v4(VV+4*i), AKV, srd(sV), sKVO, 256*i, flags))
        elif kind == 'f':
            i = item[1]; ld('f%d' % i, 'buffer_load_dwordx4 %s, v%d, %s, s%d offen offset:%d %s' % (v4(FF+4*i), AF, srd(sF), sFO, 1280*i, flags))
        elif kind == 'misc':
            a('v_mov_b32 v%d, 0' % (T+11))
            a('s_lshl_b32 s%d, s2, 3' % sT0); a('v_mov_b32 v%d, s%d' % (T+12, sT0))
            ld('E', 'buffer_load_dword v%d, v%d, %s, 0 offen' % (NON, T+11, srd(sWS)))
            ld('xf', 'buffer_load_dwordx2 %s, v%d, %s, 0 offen' % (v2(XF), T+12, srd(sX)))
        elif kind == 'setup': setup_late()
        elif kind == 'ln': layernorm(); stamp()
        elif kind == 'prio':
            if prio: a('s_setprio %d' % item[1])
        elif kind == 'stamp': stamp()
    assert nwq[0] == 20
    stamp()
    if prio: a('s_setprio 2')
    a('s_waitcnt lgkmcnt(0)')
    jobs = [n for n in issued if n.startswith('wq') or n.startswith('w1')]
    def perms(buf, src, sel):
        for r in range(4): a('v_perm_b32 v%d, v%d, v%d, v%d' % (buf+r, src, src, sel+r))
    def xsrc(n): return XV + int(n[2:]) if n.startswith('wq') else XW + int(n[2:])
    def dsrc(n): return WQ + 4*int(n[2:]) if n.startswith('wq') else W1 + 4*int(n[2:])
    perms(AB[0], xsrc(jobs[0]), SLO); perms(AB[1], xsrc(jobs[1]), SLO)
    seen = set()
    for j, n in enumerate(jobs):
        acc = ACQ if n.startswith('wq') else ACH
        wait(n)
        c = v4(acc) if acc in seen else '0'; seen.add(acc)
        a('v_mfma_f32_16x16x32_bf16 %s, %s, %s, %s' % (v4(acc), v4(AB[j & 1]), v4(dsrc(n)), c))
        if j + 2 < len(jobs): perms(AB[j & 1], xsrc(jobs[j+2]), SLO)
    wait('E') if issued.index('E') > issued.index(jobs[-1]) else None
    a('s_mov_b32 s%d, 1664525' % sT0)
    a('v_mul_lo_u32 v%d, v%d, s%d' % (NON, NON, sT0))
    a('v_add_u32 v%d, 1013904223, v%d' % (NON, NON))
    a('s_mov_b32 exec_hi, 0')
    a('s_nop 3')
    a('ds_write_b128 v%d, %s offset:%d' % (LD, v4(ACQ), QP))
    a('s_mov_b32 exec_lo, 0x00ff00ff'); a('s_mov_b32 exec_hi, 0xff00ff00')
    a('ds_write_b128 v%d, %s offset:%d' % (LH, v4(ACH), HP))
    a('s_mov_b64 exec, -1')
    a('v_lshlrev_b32 v%d, 3, v%d' % (T+20, LN_))
    a('s_waitcnt lgkmcnt(0)')
    stamp()
    a('s_barrier')
    for k in range(8): a('ds_read_b64 %s, v%d offset:%d' % (v2(T+2*k), T+20, QP + 512*k))
    a('v_lshlrev_b32 v%d, 4, v%d' % (T+21, M))
    a('s_waitcnt lgkmcnt(6)'); a('v_pk_add_f32 %s, %s, %s' % (v2(T), v2(T), v2(T+2)))
    a('s_waitcnt lgkmcnt(4)'); a('v_pk_add_f32 %s, %s, %s' % (v2(T+4), v2(T+4), v2(T+6)))
    a('s_waitcnt lgkmcnt(2)'); a('v_pk_add_f32 %s, %s, %s' % (v2(T+8), v2(T+8), v2(T+10)))
    a('v_pk_add_f32 %s, %s, %s' % (v2(T), v2(T), v2(T+4)))
    a('s_waitcnt lgkmcnt(0)'); a('v_pk_add_f32 %s, %s, %s' % (v2(T+12), v2(T+12), v2(T+14)))
    a('v_pk_add_f32 %s, %s, %s' % (v2(T+8), v2(T+8), v2(T+12)))
    a('v_pk_add_f32 %s, %s, %s' % (v2(T), v2(T), v2(T+8)))
    a('v_cvt_pk_bf16_f32 v%d, v%d, v%d' % (T, T, T+1))
    a('ds_write_b32 v%d, v%d offset:%d' % (AX1, T, QB))
    a('s_waitcnt lgkmcnt(0)')
    Q4 = T+16
    a('ds_read_b128 %s, v%d offset:%d' % (v4(Q4), T+21, QB))
    wait('k3')
    a('s_waitcnt lgkmcnt(0)')
    S = T
    for d in range(4):
        for i in range(4):
            a('v_dot2_f32_bf16 v%d, v%d, v%d, %s' % (S+i, KK+4*i+d, Q4+d, ('v%d' % (S+i)) if d else '0'))
    a('s_nop 0')
    for k in (8, 4, 2, 1):
        for i in range(4): a('v_add_f32_dpp v%d, v%d, v%d row_ror:%d row_mask:0xf bank_mask:0xf' % (S+i, S+i, S+i, k))
    P = T+4
    a('v_cvt_pk_bf16_f32 v%d, v%d, v%d' % (P, S, S+1)); a('v_cvt_pk_bf16_f32 v%d, v%d, v%d' % (P+1, S+2, S+3))
    unpack(S, P); unpack(S+2, P+1)
    for i in range(4): a('v_mul_f32 v%d, %s, v%d' % (S+i, f32(128 ** -0.5), S+i))
    a('v_cvt_pk_bf16_f32 v%d, v%d, v%d' % (P, S, S+1)); a('v_cvt_pk_bf16_f32 v%d, v%d, v%d' % (P+1, S+2, S+3))
    unpack(S, P); unpack(S+2, P+1)
    MX, TM, LS = T+6, T+8, T+7
    a('v_max3_f32 v%d, v%d, v%d, v%d' % (MX, S, S+1, S+2)); a('v_max_f32 v%d, v%d, v%d' % (MX, MX, S+3))
    def xrow(r, op):
        for sw in ('v_permlane16_swap_b32', 'v_permlane32_swap_b32'):
            a('v_mov_b32 v%d, v%d' % (TM, r)); a('s_nop 1'); a('%s v%d, v%d' % (sw, r, TM)); a('%s v%d, v%d, v%d' % (op, r, r, TM))
    xrow(MX, 'v_max_f32')
    a('v_mul_f32 v%d, %s, v%d' % (TM+1, f32(-LOG2E), MX))
    for i in range(4): a('v_fma_f32 v%d, v%d, s%d, v%d' % (S+i, S+i, sLG, TM+1))
    for i in range(4): a('v_exp_f32 v%d, v%d' % (S+i, S+i))
    a('s_nop 0')
    a('v_cvt_pk_bf16_f32 v%d, v%d, v%d' % (P, S, S+1)); a('v_cvt_pk_bf16_f32 v%d, v%d, v%d' % (P+1, S+2, S+3))
    stamp()
    def mm4(acc, data, names, between=None):
        perms(AB[0], P, SLO); perms(AB[1], P, SHI)
        for i in range(4):
            if names: wait(names[i])
            elif i == 0: pass
            a('v_mfma_f32_16x16x32_bf16 %s, %s, %s, %s' % (v4(acc), v4(AB[i & 1]), v4(data+4*i), v4(acc) if i else '0'))
            if i < 2: perms(AB[i & 1], P+1, SHI if i else SLO)
            elif i == 2: a('s_nop 1') if not names else a('s_nop 0')
    mm4(ACQ, VV, ['v0', 'v1', 'v2', 'v3'])
    a('v_add_f32 v%d, v%d, v%d' % (LS, S, S+1)); a('v_add_f32 v%d, v%d, v%d' % (TM+1, S+2, S+3)); a('v_add_f32 v%d, v%d, v%d' % (LS, LS, TM+1))
    xrow(LS, 'v_add_f32')
    a('s_lshl_b32 s%d, s%d, 3' % (sT0, sW)); a('v_mov_b32 v%d, s%d' % (TM, sT0))
    a('s_mov_b32 exec_hi, 0')
    a('ds_write_b128 v%d, %s offset:%d' % (LD, v4(ACQ), OP))
    a('s_mov_b64 exec, 1')
    a('ds_write_b64 v%d, %s offset:%d' % (TM, v2(MX), ML))
    a('s_mov_b64 exec, -1')
    a('s_waitcnt lgkmcnt(0)')
    stamp()
    a('s_barrier')
    def tag(r):
        for k in range(4):
            a('s_mov_b32 s%d, 0x%08x' % (sT0, 0x07060500 + k)); a('v_perm_b32 v%d, v%d, v%d, s%d' % (r+k, r+k, NON, sT0))
    a('s_lshl_b32 s%d, s%d, 3' % (sT1, sH)); a('s_add_u32 s%d, s%d, s%d' % (sT1, sT1, sS)); a('s_lshl_b32 s%d, s%d, 10' % (sT1, sT1)); a('s_add_u32 s%d, s%d, %d' % (sT1, sT1, R1))
    a('s_cmp_gt_u32 s%d, 1' % sW); a('s_cbranch_scc1 L_poll1')
    a('s_cmp_eq_u32 s%d, 1' % sW); a('s_cbranch_scc1 L_hcomb')
    a('v_and_b32 v%d, 1, v%d' % (T+22, LN_))
    a('v_lshrrev_b32 v%d, 1, v%d' % (T+23, LN_))
    a('v_lshlrev_b32 v%d, 5, v%d' % (AB[0], T+22))
    a('v_lshlrev_b32 v%d, 4, v%d' % (T+23, T+23))
    a('v_lshl_add_u32 v%d, v%d, 11, v%d' % (AB[0]+1, T+22, T+23))
    MLr = ACQ
    a('ds_read_b128 %s, v%d offset:%d' % (v4(MLr), AB[0], ML)); a('ds_read_b128 %s, v%d offset:%d' % (v4(MLr+4), AB[0], ML+16))
    for k in range(4): a('ds_read_b128 %s, v%d offset:%d' % (v4(T+4*k), AB[0]+1, OP+512*k))
    a('v_mul_u32_u24 v%d, 768, v%d' % (T+22, T+22)); a('v_add_u32 v%d, v%d, v%d' % (T+22, T+22, T+23))
    a('s_waitcnt lgkmcnt(4)')
    Mw, Lw = T+16, T+17
    a('v_max3_f32 v%d, v%d, v%d, v%d' % (Mw, MLr, MLr+2, MLr+4)); a('v_max_f32 v%d, v%d, v%d' % (Mw, Mw, MLr+6))
    a('s_nop 1'); a('v_max_f32_dpp v%d, v%d, v%d quad_perm:[1,0,3,2] row_mask:0xf bank_mask:0xf' % (Mw, Mw, Mw))
    a('v_mul_f32 v%d, %s, v%d' % (T+18, f32(-LOG2E), Mw))
    for k in range(4): a('v_fma_f32 v%d, v%d, s%d, v%d' % (MLr+2*k, MLr+2*k, sLG, T+18))
    for k in range(4): a('v_exp_f32 v%d, v%d' % (MLr+2*k, MLr+2*k))
    a('s_waitcnt lgkmcnt(0)')
    a('v_mul_f32 v%d, v%d, v%d' % (Lw, MLr, MLr+1))
    for j in range(4): a('v_mul_f32 v%d, v%d, v%d' % (T+j, T+j, MLr))
    for k in range(1, 4):
        a('v_fmac_f32 v%d, v%d, v%d' % (Lw, MLr+2*k, MLr+2*k+1))
        for j in range(4): a('v_fmac_f32 v%d, v%d, v%d' % (T+j, T+4*k+j, MLr+2*k))
    a('v_add_f32_dpp v%d, v%d, v%d quad_perm:[1,0,3,2] row_mask:0xf bank_mask:0xf' % (Lw, Lw, Lw))
    a('s_nop 0')
    for j in range(4): a('v_add_f32_dpp v%d, v%d, v%d quad_perm:[1,0,3,2] row_mask:0xf bank_mask:0xf' % (T+j, T+j, T+j))
    a('s_mov_b32 exec_lo, 0xaaaaaaaa'); a('s_mov_b32 exec_hi, 0xaaaaaaaa')
    a('v_mov_b32 v%d, v%d' % (T, Mw)); a('v_mov_b32 v%d, v%d' % (T+1, Lw))
    a('s_mov_b32 exec_lo, 0x5555ffff'); a('s_mov_b32 exec_hi, 0x55555555')
    tag(T)
    a('buffer_store_dwordx4 %s, v%d, %s, s%d offen sc1' % (v4(T), T+22, srd(sWS), sT1))
    a('s_mov_b64 exec, -1')
    a('s_branch L_poll1')
    lab('L_hcomb')
    a('v_and_b32 v%d, 3, v%d' % (T+22, LN_))
    a('v_lshrrev_b32 v%d, 2, v%d' % (T+23, LN_))
    a('v_lshlrev_b32 v%d, 4, v%d' % (T+23, T+23))
    a('v_lshl_add_u32 v%d, v%d, 10, v%d' % (T+22, T+22, T+23))
    for k in range(4): a('ds_read_b128 %s, v%d offset:%d' % (v4(T+4*k), T+22, HP+256*k))
    a('s_waitcnt lgkmcnt(2)')
    for j in range(4): a('v_add_f32 v%d, v%d, v%d' % (T+j, T+j, T+4+j))
    a('s_waitcnt lgkmcnt(0)')
    for j in range(4): a('v_add_f32 v%d, v%d, v%d' % (T+8+j, T+8+j, T+12+j))
    for j in range(4): a('v_add_f32 v%d, v%d, v%d' % (T+j, T+j, T+8+j))
    for qp in ('[1,0,3,2]', '[2,3,0,1]'):
        for j in range(4): a('v_add_f32_dpp v%d, v%d, v%d quad_perm:%s row_mask:0xf bank_mask:0xf' % (T+j, T+j, T+j, qp))
    a('s_mov_b32 exec_lo, 0x11111111'); a('s_mov_b32 exec_hi, 0x11111111')
    tag(T)
    a('buffer_store_dwordx4 %s, v%d, %s, s%d offen offset:512 sc1' % (v4(T), T+23, srd(sWS), sT1))
    a('s_mov_b64 exec, -1')
    lab('L_poll1')
    stamp()
    a('s_cmp_lt_u32 s%d, 5' % sS); a('s_cbranch_scc1 L_p1go')
    a('s_cmp_ge_u32 s%d, 27' % sH); a('s_cbranch_scc1 L_done')
    lab('L_p1go')
    a('s_mov_b32 s%d, %d' % (sCNT, SPIN))
    a('s_mov_b32 s%d, 0x0c0c0400' % sT0); a('s_mov_b32 s%d, 0x05040100' % sT1)
    Gd = T+4*5 - 12
    Gd = T+8
    def poll(label, addr, G):
        lab(label)
        a('buffer_load_dwordx4 %s, v%d, %s, 0 offen sc1' % (v4(G), addr, srd(sWS)))
        a('s_sub_u32 s%d, s%d, 1' % (sCNT, sCNT))
        a('s_cbranch_scc1 %s_x' % label)
        a('s_waitcnt vmcnt(0)')
        a('v_perm_b32 v%d, v%d, v%d, s%d' % (T+12, G+1, G, sT0))
        a('v_perm_b32 v%d, v%d, v%d, s%d' % (T+13, G+3, G+2, sT0))
        a('v_perm_b32 v%d, v%d, v%d, s%d' % (T+12, T+13, T+12, sT1))
        a('v_cmp_ne_u32 vcc, v%d, v%d' % (T+12, NON))
        a('s_cbranch_vccnz %s' % label)
        lab(label + '_x')
    poll('L_p1', AP1, Gd)
    stamp()
    a('s_cmp_ge_u32 s%d, 5' % sS); a('s_cbranch_scc1 L_hpath')
    dpp = lambda op, d, s0, s1, ctl: a('%s_dpp v%d, v%d, v%d %s row_mask:0xf bank_mask:0xf' % (op, d, s0, s1, ctl))
    X1c, X2c, HM = 'quad_perm:[1,0,3,2]', 'quad_perm:[2,3,0,1]', 'row_half_mirror'
    Mp, Mx, Wt = T+12, T+13, T+14
    a('v_and_b32 v%d, 0xffff0000, v%d' % (Mp, Gd))
    a('s_nop 1'); dpp('v_max_f32', Mx, Mp, Mp, X1c)
    a('s_nop 1'); dpp('v_max_f32', Mx, Mx, Mx, X2c)
    a('s_nop 1'); dpp('v_max_f32', Mx, Mx, Mx, HM)
    a('v_sub_f32 v%d, v%d, v%d' % (Wt, Mp, Mx)); a('v_mul_f32 v%d, s%d, v%d' % (Wt, sLG, Wt)); a('v_exp_f32 v%d, v%d' % (Wt, Wt))
    a('s_nop 0')
    a('v_mul_f32 v%d, v%d, v%d' % (Mx, Wt, Gd+1))
    a('s_nop 0')
    for j in range(4): dpp('v_mul_f32', Gd+j, Wt, Gd+j, 'row_ror:8')
    for ctl in (X1c, X2c, HM):
        dpp('v_add_f32', Mx, Mx, Mx, ctl)
        for j in range(4): dpp('v_add_f32', Gd+j, Gd+j, Gd+j, ctl)
    a('v_rcp_f32 v%d, v%d' % (Mx, Mx))
    a('s_nop 1')
    for j in range(4): dpp('v_mul_f32', Gd+j, Mx, Gd+j, 'row_ror:8')
    a('s_branch L_fmm')
    lab('L_hpath')
    for ctl in (X1c, X2c, HM):
        for j in range(4): dpp('v_add_f32', Gd+j, Gd+j, Gd+j, ctl)
    a('v_cvt_pk_bf16_f32 v%d, v%d, v%d' % (P, Gd, Gd+1)); a('v_cvt_pk_bf16_f32 v%d, v%d, v%d' % (P+1, Gd+2, Gd+3))
    unpack(Gd, P); unpack(Gd+2, P+1)
    for j in range(4): a('v_mul_f32 v%d, %s, v%d' % (T+12+j, f32(-LOG2E), Gd+j))
    for j in range(4): a('v_exp_f32 v%d, v%d' % (T+12+j, T+12+j))
    for j in range(4): a('v_add_f32 v%d, 1.0, v%d' % (T+12+j, T+12+j))
    for j in range(4): a('v_rcp_f32 v%d, v%d' % (T+12+j, T+12+j))
    for j in range(4): a('v_mul_f32 v%d, v%d, v%d' % (Gd+j, Gd+j, T+12+j))
    lab('L_fmm')
    a('v_cvt_pk_bf16_f32 v%d, v%d, v%d' % (P, Gd, Gd+1)); a('v_cvt_pk_bf16_f32 v%d, v%d, v%d' % (P+1, Gd+2, Gd+3))
    mm4(ACQ, FF, None)
    a('v_and_b32 v%d, 1, v%d' % (T+22, LN_))
    a('v_lshrrev_b32 v%d, 1, v%d' % (T+23, LN_))
    a('v_lshlrev_b32 v%d, 4, v%d' % (T+23, T+23))
    a('v_lshl_add_u32 v%d, v%d, 11, v%d' % (T+21, T+22, T+23))
    a('s_mov_b32 exec_hi, 0')
    a('s_nop 2')
    a('ds_write_b128 v%d, %s offset:%d' % (LD, v4(ACQ), FP))
    a('s_mov_b64 exec, -1')
    a('s_waitcnt lgkmcnt(0)')
    stamp()
    a('s_barrier')
    a('s_cmp_gt_u32 s%d, 1' % sW); a('s_cbranch_scc1 L_done')
    a('s_cmp_eq_u32 s%d, 1' % sW); a('s_cbranch_scc1 L_final')
    for k in range(4): a('ds_read_b128 %s, v%d offset:%d' % (v4(T+4*k), T+21, FP+512*k))
    a('s_lshl_b32 s%d, s%d, 1' % (sT0, sS)); a('s_sub_u32 s%d, s%d, 5' % (sT0, sT0))
    a('s_cmp_lt_u32 s%d, 5' % sS); a('s_cselect_b32 s%d, s%d, s%d' % (sT0, sS, sT0))
    a('s_lshl_b32 s%d, s%d, 5' % (sT0, sT0)); a('s_add_u32 s%d, s%d, s%d' % (sT0, sT0, sH)); a('s_lshl_b32 s%d, s%d, 9' % (sT0, sT0))
    a('s_add_u32 s%d, s%d, %d' % (sT1, sT0, R2))
    a('v_lshl_add_u32 v%d, v%d, 14, v%d' % (T+22, T+22, T+23))
    a('s_waitcnt lgkmcnt(2)')
    for j in range(4): a('v_add_f32 v%d, v%d, v%d' % (T+j, T+j, T+4+j))
    a('s_waitcnt lgkmcnt(0)')
    for j in range(4): a('v_add_f32 v%d, v%d, v%d' % (T+8+j, T+8+j, T+12+j))
    for j in range(4): a('v_add_f32 v%d, v%d, v%d' % (T+j, T+j, T+8+j))
    a('s_cmp_ge_u32 s%d, 5' % sS); a('s_cbranch_scc1 L_fb')
    for j in range(4): dpp('v_add_f32', T+j, T+j, T+j, X1c)
    lab('L_fb')
    a('s_sub_u32 s%d, s%d, 5' % (sT0, sS)); a('s_cmp_lt_u32 s%d, 2' % sT0); a('s_cbranch_scc1 L_fst')
    a('s_mov_b32 exec_lo, 0x55555555'); a('s_mov_b32 exec_hi, 0x55555555')
    lab('L_fst')
    tag(T)
    a('buffer_store_dwordx4 %s, v%d, %s, s%d offen sc1' % (v4(T), T+22, srd(sWS), sT1))
    a('s_mov_b64 exec, -1')
    a('s_branch L_done')
    lab('L_final')
    a('s_cmp_ge_u32 s2, 160'); a('s_cbranch_scc1 L_done')
    a('v_and_b32 v%d, 31, v%d' % (T, LN_)); a('v_lshrrev_b32 v%d, 5, v%d' % (T+1, LN_))
    a('v_mul_u32_u24 v%d, 160, v%d' % (T+1, T+1)); a('v_add_u32 v%d, v%d, v%d' % (T, T, T+1))
    a('s_lshl_b32 s%d, s%d, 14' % (sT0, sS)); a('s_lshl_b32 s%d, s%d, 4' % (sT1, sH)); a('s_add_u32 s%d, s%d, s%d' % (sT0, sT0, sT1)); a('s_add_u32 s%d, s%d, %d' % (sT0, sT0, R2))
    a('v_lshlrev_b32 v%d, 9, v%d' % (T, T)); a('v_add_u32 v%d, s%d, v%d' % (T, sT0, T))
    for j in range(4): a('v_mov_b32 v%d, 0' % (Gd+j))
    a('s_mov_b32 exec_hi, 0x07ffffff')
    a('s_mov_b32 s%d, %d' % (sCNT, SPIN))
    a('s_mov_b32 s%d, 0x0c0c0400' % sT0); a('s_mov_b32 s%d, 0x05040100' % sT1)
    poll('L_p2', T, Gd)
    stamp()
    a('s_mov_b64 exec, -1')
    for k in (8, 4, 2, 1):
        for j in range(4): dpp('v_add_f32', Gd+j, Gd+j, Gd+j, 'row_ror:%d' % k)
    for j in range(4): a('v_add_f32_dpp v%d, v%d, v%d row_bcast:15 row_mask:0xa bank_mask:0xf' % (Gd+j, Gd+j, Gd+j))
    a('v_cvt_pk_bf16_f32 v%d, v%d, v%d' % (P, Gd, Gd+1)); a('v_cvt_pk_bf16_f32 v%d, v%d, v%d' % (P+1, Gd+2, Gd+3))
    a('v_mov_b32 v%d, v%d' % (P+2, P)); a('v_mov_b32 v%d, v%d' % (P+3, P+1))
    unpack(T+12, XF); unpack(T+14, XF+1)
    a('v_permlane32_swap_b32 v%d, v%d' % (P, P+2)); a('v_permlane32_swap_b32 v%d, v%d' % (P+1, P+3))
    unpack(Gd, P); unpack(Gd+2, P+1)
    for j in range(4): a('v_add_f32 v%d, v%d, v%d' % (Gd+j, Gd+j, T+12+j))
    a('v_cvt_pk_bf16_f32 v%d, v%d, v%d' % (P, Gd, Gd+1)); a('v_cvt_pk_bf16_f32 v%d, v%d, v%d' % (P+1, Gd+2, Gd+3))
    unpack(Gd, P); unpack(Gd+2, P+1); unpack(T+12, P+2); unpack(T+14, P+3)
    for j in range(4): a('v_add_f32 v%d, v%d, v%d' % (Gd+j, Gd+j, T+12+j))
    a('v_cvt_pk_bf16_f32 v%d, v%d, v%d' % (P, Gd, Gd+1)); a('v_cvt_pk_bf16_f32 v%d, v%d, v%d' % (P+1, Gd+2, Gd+3))
    a('s_lshl_b32 s%d, s2, 3' % sT0); a('v_mov_b32 v%d, s%d' % (T, sT0))
    a('s_mov_b64 exec, 0x10000')
    a('buffer_store_dwordx2 %s, v%d, %s, 0 offen' % (v2(P), T, srd(sOUT)))
    a('s_cmp_lg_u32 s2, 0'); a('s_cbranch_scc1 L_done')
    a('buffer_store_dword v%d, v%d, %s, 0 offen' % (NON, T, srd(sWS)))
    lab('L_done')
    if probe is not None:
        stamp()
        a('s_waitcnt vmcnt(0) lgkmcnt(0)')
        if only is not None:
            a('s_cmp_lg_u32 s2, %d' % only); a('s_cbranch_scc1 L_end')
        a('s_sub_u32 s72, s72, s70'); a('s_mul_i32 s72, s72, %d' % amp); a('s_add_u32 s72, s72, %d' % base_ticks)
        lab('L_spin')
        a('s_memrealtime s[74:75]'); a('s_waitcnt lgkmcnt(0)')
        a('s_sub_u32 s74, s74, s70'); a('s_cmp_lt_u32 s74, s72'); a('s_cbranch_scc1 L_spin')
    if stamps:
        a('s_mov_b64 exec, -1')
        stamp()
        a('s_waitcnt vmcnt(0) lgkmcnt(0)')
        a('v_mov_b32 v%d, 0' % T)
        for j, r in enumerate(st): a('v_writelane_b32 v%d, s%d, %d' % (T, r, j))
        a('s_lshl_b32 s3, s2, 3'); a('s_add_u32 s3, s3, s%d' % sW); a('s_lshl_b32 s3, s3, 8'); a('s_add_u32 s3, s3, 0x8000000')
        a('buffer_store_dword v%d, v%d, %s, s3 offen' % (T, AX1, srd(sWS)))
    lab('L_end')
    a('s_endpgm')
    L += ['.section .rodata,"a"', '.p2align 6', '.amdhsa_kernel %s_kernel' % NAME,
          '  .amdhsa_next_free_vgpr %d' % NV, '  .amdhsa_next_free_sgpr 102', '  .amdhsa_accum_offset %d' % ((NV+3)//4*4),
          '  .amdhsa_group_segment_fixed_size 0', '  .amdhsa_kernarg_size 88', '  .amdhsa_user_sgpr_count 2',
          '  .amdhsa_user_sgpr_kernarg_segment_ptr 1', '  .amdhsa_system_sgpr_workgroup_id_x 1', '.end_amdhsa_kernel']
    return '\n'.join(L) + '\n', len(st)

WQ = lambda n: [('wq',)] * n
K = [('k', i) for i in range(4)]; V = [('v', i) for i in range(4)]; F = [('f', i) for i in range(4)]
ORD = {
  'A': WQ(3) + [('w1',)] + K + [('misc',), ('setup',), ('ln',), ('prio', 2)] + WQ(17) + [('prio', 1)] + V + [('prio', 0)] + F,
}
if __name__ == '__main__':
    for name, kw in {'k1': dict(order=ORD['A']), 'k1s': dict(order=ORD['A'], stamps=True)}.items():
        s, ns = gen(**kw)
        open(name + '.s', 'w').write(s)
        e = check(s)
        print(name, 'stamps', ns, 'hazards', len(e))
        for x in e: print('  ', x)
```

```python
import re, sys
TRANS = ('v_exp_f32', 'v_log_f32', 'v_rcp_f32', 'v_rsq_f32', 'v_sqrt_f32', 'v_sin_f32', 'v_cos_f32')
def regs(tok):
    tok = tok.strip().lstrip('-').replace('abs(', '').replace(')', '').strip('|')
    m = re.fullmatch(r'([vsa])\[(\d+):(\d+)\]', tok)
    if m: return [(m.group(1), i) for i in range(int(m.group(2)), int(m.group(3)) + 1)]
    m = re.fullmatch(r'([vsa])(\d+)', tok)
    if m: return [(m.group(1), int(m.group(2)))]
    if tok == 'vcc': return [('s', 'vcc')]
    if tok == 'exec': return [('s', 'exec')]
    if tok == 'm0': return [('s', 'm0')]
    return []
def parse(line):
    line = line.split(';')[0].split('//')[0].strip()
    if not line or line.endswith(':') or line.startswith('.'): return None
    parts = line.split(None, 1)
    op = parts[0]
    rest = parts[1] if len(parts) > 1 else ''
    toks = [t.strip() for t in rest.split(',')]
    ops = []
    mods = ''
    for i, t in enumerate(toks):
        w = t.split()
        if not w: continue
        ops.append(w[0])
        if len(w) > 1: mods += ' ' + ' '.join(w[1:])
    return op, ops, mods
def classify(op, ops, mods):
    base = re.sub(r'_(e32|e64|dpp|sdwa)$', '', op)
    d = dict(op=base, w=[], r=[], kind='other', dpp=('row_' in mods or 'quad_perm' in mods or op.endswith('_dpp')), sdwa=op.endswith('_sdwa'))
    if op.startswith('v_mfma'):
        d['kind'] = 'mfma'; d['w'] = regs(ops[0]); d['a'] = regs(ops[1]) + regs(ops[2]); d['c'] = regs(ops[3]); d['r'] = d['a'] + d['c']
    elif op.startswith('v_'):
        d['kind'] = 'valu'
        if base.startswith('v_cmp'):
            d['w'] = regs(ops[0]); d['r'] = sum((regs(o) for o in ops[1:]), [])
        elif base in ('v_permlane16_swap_b32', 'v_permlane32_swap_b32'):
            d['w'] = regs(ops[0]) + regs(ops[1]); d['r'] = d['w'][:]
        elif base in ('v_add_co_u32', 'v_addc_co_u32', 'v_sub_co_u32'):
            d['w'] = regs(ops[0]) + regs(ops[1]); d['r'] = sum((regs(o) for o in ops[2:]), [])
        else:
            d['w'] = regs(ops[0]); d['r'] = sum((regs(o) for o in ops[1:]), [])
            if base in ('v_fmac_f32', 'v_dot2c_f32_bf16', 'v_writelane_b32') or d['dpp']: d['r'] += d['w']
    elif op.startswith('buffer_') or op.startswith('global_'):
        d['kind'] = 'vmem'
        if 'load' in op:
            if ' lds' in mods: d['r'] = sum((regs(o) for o in ops), [])
            else: d['w'] = regs(ops[0]); d['r'] = sum((regs(o) for o in ops[1:]), [])
        else:
            d['r'] = sum((regs(o) for o in ops), [])
            d['sdata'] = regs(ops[0]) if op.startswith('buffer_') else regs(ops[1])
            d['wide'] = 'x3' in op or 'x4' in op
    elif op.startswith('ds_'):
        d['kind'] = 'ds'
        if 'read' in op or 'permute' in op or 'swizzle' in op: d['w'] = regs(ops[0]); d['r'] = sum((regs(o) for o in ops[1:]), [])
        else: d['r'] = sum((regs(o) for o in ops), [])
    elif op.startswith('s_'):
        d['kind'] = 'salu'
        if op == 's_nop': d['n'] = int(ops[0], 0) + 1
        if ops: d['w'] = regs(ops[0])
        d['r'] = sum((regs(o) for o in ops[1:]), [])
    return d
def check(text):
    ins = []
    for ln, line in enumerate(text.splitlines(), 1):
        p = parse(line)
        if p is None: continue
        d = classify(*p); d['ln'] = ln; d['line'] = line.strip(); ins.append(d)
    pos = []; t = 0
    for d in ins:
        pos.append(t); t += d.get('n', 1)
    errs = []
    for j, c in enumerate(ins):
        for i in range(j - 1, max(-1, j - 24), -1):
            p = ins[i]
            dist = pos[j] - pos[i] - p.get('n', 1)
            if dist >= 12: break
            need = 0; why = ''
            pw = set(p['w']); cr = set(c['r']); cw = set(c['w'])
            pwv = {x for x in pw if x[0] in 'va'}; pws = {x for x in pw if x[0] == 's'}
            if p['kind'] == 'valu':
                if c['kind'] == 'valu' and c['dpp'] and pwv & cr: need, why = 2, 'valu->dpp'
                if c['kind'] == 'valu' and 'permlane' in c['op'] and pwv & cr: need, why = max(need, 2), 'valu->permlane'
                if c['kind'] == 'mfma' and pwv & cr: need, why = 2, 'valu->mfma'
                if p['op'] in TRANS and c['kind'] == 'valu' and c['op'] not in TRANS and pwv & cr: need, why = max(need, 1), why or 'trans->valu'
                if p['op'] in TRANS and c['kind'] in ('ds', 'vmem') and pwv & cr: need, why = max(need, 1), why or 'trans->mem'
                if c['op'] in ('v_readlane_b32', 'v_readfirstlane_b32') and pwv & cr: need, why = max(need, 1), 'valu->readlane'
                if pws:
                    implicit = set()
                    if c['op'] == 'v_cndmask_b32' : implicit = cr
                    if c['kind'] == 'valu' and (pws & (cr | implicit)): need, why = max(need, 2), 'valu sgpr->valu'
                    if c['kind'] == 'vmem' and pws & cr: need, why = max(need, 5), 'valu sgpr->vmem'
                    if c['kind'] == 'salu' and pws & cr: need, why = max(need, 1), 'valu sgpr->salu(pad)'
                if p['op'].startswith('v_dot2'):
                    if c['op'] == p['op']:
                        ab = set(c['r'][:2]) if c['op'] == 'v_dot2_f32_bf16' else set(c['r'][:2])
                        if pwv & ab: need, why = max(need, 3), 'dot->dot A/B'
                    elif c['kind'] in ('valu', 'ds', 'vmem', 'mfma') and pwv & (cr | cw): need, why = max(need, 3), 'dot->other'
                if p['sdwa'] and c['kind'] == 'valu' and pwv & cr: need, why = max(need, 1), 'sdwa->valu'
            if p['kind'] == 'mfma':
                passes = 4 if '16x16x32' in p['op'] else 8
                n1 = {4: 8, 8: 12}[passes]; n2 = {4: 6, 8: 10}[passes]; n3 = {4: 3, 8: 7}[passes]
                if c['kind'] == 'mfma':
                    if pw & set(c['a']): need, why = n1, 'mfma->mfma A/B'
                    elif pw & set(c['c']) and c['c'] != p['w']: need, why = n2, 'mfma->mfma C overlap'
                elif c['kind'] in ('valu', 'ds', 'vmem'):
                    if pw & (cr | cw): need, why = n1, 'mfma->valu/mem'
                    if c['kind'] == 'valu' and set(p['c']) & cw: need, why = max(need, n3), why or 'mfma C WAR'
            if p['kind'] == 'vmem' and p.get('wide') and c['kind'] in ('valu', 'mfma') and set(p['sdata']) & cw: need, why = max(need, 2), 'store data WAR'
            if p['kind'] == 'salu' and ('s', 'm0') in pw and c['kind'] == 'vmem' and ' lds' in c['line']: need, why = max(need, 1), 'm0->lds dma'
            if need > dist:
                errs.append('line %d: "%s" needs %d wait states after line %d "%s" (%s), has %d' % (c['ln'], c['line'], need, p['ln'], p['line'], why, dist))
    return errs
if __name__ == '__main__':
    for f in sys.argv[1:]:
        e = check(open(f).read())
        print(f, 'hazards:', len(e))
        for x in e: print('  ', x)
```

```python
from gen1 import *
for k in (0, 7, 128, 255):
    s, ns = gen(order=ORD['A'], probe=0, only=k); open('po%d.s' % k, 'w').write(s); print(k, check(s))
s, ns = gen(order=ORD['A'], probe=0, base_ticks=2000); open('pb20.s', 'w').write(s)
s, ns = gen(order=ORD['A'], probe=0, base_ticks=20000); open('pb200.s', 'w').write(s)
```

```python
import sys, struct
from hazcheck import check
NAME = 'parallel_sum__sliding_block_cached__dense_activation_silu__decode'
HDR = open('cdna_kernels/%s.s.ref' % NAME).read().split('; Override launch')[0]
def f32(x): return '0x%08x' % struct.unpack('<I', struct.pack('<f', x))[0]
LOG2E = 1.4426950408889634
XN, QP, HP, QB, OP, ML, FP, QX = 0, 1280, 3328, 5376, 5632, 9728, 9792, 13888
LDS_BYTES = 83968
R0 = 4096
R1 = R0 + 256*512
R2 = R1 + 256*1024
RB = 1 << 20
SPIN = 1 << 18

def gen(stamps=False, flags='nt', wflags='nt', probe=None, amp=10, base_ticks=5000, fine=False, lds=LDS_BYTES,
        kpts=(2, 2, 2, 2),
        post_a='u0 u1 u2 v0 v1 v2 v3 p0 v4 v5 v6 v7 p1 f0 f1',
        pts=None, l2=True, nfast=24, catchup=True, w5=True, hlate=True,
        p1_wait=5, mailbox=False, pipe1=False, pipe2=False, fin_wave=1, fence0=None, touch=False):
    L = []
    def a(s): L.append('  ' + s)
    def lab(s): L.append(s + ':')
    st = []; names = []; pool = list(range(74, 101, 2)) + list(range(6, 23, 2)); cnt = [0]
    def stamp(name=''):
        k = cnt[0]; cnt[0] += 1
        if probe is not None:
            if k == 0: a('s_memrealtime s[74:75]')
            elif name == probe: a('s_memrealtime s[76:77]')
        elif stamps:
            r = pool.pop(0); a('s_memrealtime s[%d:%d]' % (r, r+1)); st.append(r); names.append(name)
    def fstamp(name):
        if fine: stamp(name)
    def vstamp(reg, neg, name):
        if stamps and probe is None:
            r = pool.pop(0)
            a('s_sub_u32 s%d, %d, s%d' % (r, neg, reg))
            a('s_mul_i32 s%d, s%d, 100' % (r, r)); a('s_waitcnt lgkmcnt(0)'); a('s_add_u32 s%d, s%d, s74' % (r, r)); st.append(r); names.append(name)
    L.append(HDR.rstrip())
    L.append('; @launch grid=(256,1,1) block=(%d,1,1) lds=%d' % (320 if w5 else 256, lds))
    L.append('.amdgcn_target "amdgcn-amd-amdhsa--gfx950"'); L.append('.text')
    L.append('.globl %s_kernel' % NAME); L.append('.p2align 8'); L.append('.type %s_kernel,@function' % NAME)
    lab('%s_kernel' % NAME)
    M, Gq, LN_, AWQ, AKV, AF, AW1, AX4, AX1, LXQ, LXW, LD, LH, AP1, NON = range(1, 16)
    SLO, SHI = 16, 20
    ACA, ACB = 24, 28
    AB = [32, 36]
    T = 40
    X4, X1, XF = 64, 68, 70
    XV, XW = 72, 77
    AP0, AML, PART, C16, LCB, AO, AP2, AH = 80, 81, 82, 83, 84, 85, 86, 87
    PQ = 232
    WQ, W1, KK, VV, FF = 96, 116, 128, 160, 192
    G2 = 224
    NV = 252
    sH, sS, sW = 24, 25, 26
    sX, sK, sV, sWQ, sW1, sF, sWS, sOUT, sW1b = 28, 32, 36, 40, 44, 48, 52, 56, 60
    sQO, sKVO, sFO, sW1O, sT0, sT1, sLG, sCNT, sKVO2, sFO2, sREC, sNF = 64, 65, 66, 67, 68, 69, 27, 3, 70, 71, 72, 73
    srd = lambda r: 's[%d:%d]' % (r, r+3)
    v4 = lambda r: 'v[%d:%d]' % (r, r+3)
    v2 = lambda r: 'v[%d:%d]' % (r, r+1)
    dpp = lambda op, d, s0, s1, ctl, bm=0xf, rm=0xf: a('%s_dpp v%d, v%d, v%d %s row_mask:0x%x bank_mask:0x%x' % (op, d, s0, s1, ctl, rm, bm))
    X1c, X2c, HM = 'quad_perm:[1,0,3,2]', 'quad_perm:[2,3,0,1]', 'row_half_mirror'
    def ex(lo, hi=None):
        hi = lo if hi is None else hi
        a('s_mov_b32 exec_lo, 0x%x' % lo); a('s_mov_b32 exec_hi, 0x%x' % hi)
    stamp('start')
    a('s_cmp_ge_u32 s2, 256'); a('s_cbranch_scc1 L_end')
    a('s_load_dwordx16 s[4:19], s[0:1], 0')
    a('s_load_dwordx2 s[20:21], s[0:1], 64')
    a('s_load_dwordx2 s[22:23], s[0:1], 80')
    if fence0 == 'prio': a('s_setprio 3')
    a('v_and_b32 v%d, 63, v0' % LN_)
    a('v_lshrrev_b32 v%d, 6, v0' % T)
    a('v_and_b32 v%d, 15, v0' % M)
    a('v_bfe_u32 v%d, v0, 4, 2' % Gq)
    a('v_readfirstlane_b32 s%d, v%d' % (sW, T))
    a('s_and_b32 s%d, s2, 31' % sH)
    a('s_lshr_b32 s%d, s2, 5' % sS)
    a('v_lshlrev_b32 v%d, 4, v%d' % (AX4, LN_))
    a('v_lshlrev_b32 v%d, 2, v%d' % (AX1, LN_))
    a('v_lshlrev_b32 v%d, 4, v%d' % (T+2, M))
    a('v_mad_u32_u24 v%d, v%d, 20, v%d' % (T+1, T, Gq))
    a('v_lshl_add_u32 v%d, v%d, 13, v%d' % (AWQ, T+1, T+2))
    a('v_lshl_add_u32 v%d, v%d, 5, v%d' % (T+6, T, Gq))
    a('v_lshl_add_u32 v%d, v%d, 8, v%d' % (AKV, T+6, T+2))
    for r, n in ((sX, 1280), (sWQ, 5242880), (sK, 33554432), (sV, 33554432), (sWS, 268435456), (sOUT, 1280)):
        a('s_mov_b32 s%d, 0x%x' % (r+2, n)); a('s_mov_b32 s%d, 0x20000' % (r+3))
    for r in (sW1, sW1b, sF): a('s_mov_b32 s%d, 0x20000' % (r+3))
    a('s_mul_i32 s%d, s%d, %d' % (sQO, sS, 80*8192)); a('s_lshl_b32 s%d, s%d, 8' % (sT0, sH)); a('s_add_u32 s%d, s%d, s%d' % (sQO, sQO, sT0))
    a('s_lshl_b32 s%d, s%d, 12' % (sKVO, sH)); a('s_lshl_b32 s%d, s%d, 7' % (sT0, sS))
    a('s_add_u32 s%d, s%d, s%d' % (sKVO, sKVO, sT0)); a('s_add_u32 s%d, s%d, 3072' % (sKVO, sKVO)); a('s_lshl_b32 s%d, s%d, 8' % (sKVO, sKVO))
    a('s_add_u32 s%d, s%d, 4096' % (sKVO2, sKVO))
    a('v_mov_b32 v%d, 0' % (T+11))
    a('s_lshl_b32 s%d, s2, 3' % sT0); a('v_mov_b32 v%d, s%d' % (AO, sT0))
    a('s_waitcnt lgkmcnt(0)')
    if probe is not None: a('s_mov_b32 s76, s74')
    if w5: a('s_cmp_eq_u32 s%d, 4' % sW); a('s_cbranch_scc1 L_w5')
    issued = []
    def ld(name, text): a(text); issued.append(name)
    def wait(name, extra=''):
        n = len(issued) - 1 - issued.index(name)
        a('s_waitcnt vmcnt(%d)%s' % (n, extra))
    def base(r, p): a('s_mov_b32 s%d, s%d' % (r, p)); a('s_mov_b32 s%d, s%d' % (r+1, p+1))
    def item(n):
        k, i = n[0], n[1:]
        if k == 'W':
            wait(i)
            if n in ('Wk3', 'Wk7'): fstamp(n)
            return
        i = int(i)
        if k == 'k': ld(n, 'buffer_load_dwordx4 %s, v%d, %s, s%d offen offset:%d %s' % (v4(KK+4*i), AKV, srd(sK), sKVO2 if i >= 4 else sKVO, 1024*(i & 3), flags))
        elif k == 'v': ld(n, 'buffer_load_dwordx4 %s, v%d, %s, s%d offen offset:%d %s' % (v4(VV+4*i), AKV, srd(sV), sKVO2 if i >= 4 else sKVO, 1024*(i & 3), flags))
        elif k == 'f': ld(n, 'buffer_load_dwordx4 %s, v%d, %s, s%d offen offset:%d %s' % (v4(FF+4*i), AF, srd(sF), sFO2 if i >= 4 else sFO, 1280*(i & 3), wflags))
        elif k == 'p': ld(n, 'buffer_load_dwordx4 %s, v%d, %s, 0 offen %s' % (v4(PQ+4*i), AP0, srd(sWS), 'nt' if l2 else 'sc1'))
        elif k == 'u':
            ld(n, 'buffer_load_dwordx4 %s, v%d, %s, s%d offen %s' % (v4(W1+4*i), AW1, srd(sW1b if i == 2 else sW1), sW1O, wflags))
            if i < 2: a('s_add_u32 s%d, s%d, %d' % (sW1O, sW1O, 32*3456))
        else: raise ValueError(n)
    def items(s):
        for n in s.split(): item(n)
    LATE = ('b', 'qs', 'dot', 's', 'e') + tuple('pv%d' % i for i in range(8))
    def pt(name):
        txt = pts.get(name, '')
        if not txt: return
        if name in LATE and catchup:
            a('s_cmp_eq_u32 s%d, 9' % sNF); a('s_cbranch_scc1 L_sk_%s' % name)
            items(txt)
            lab('L_sk_%s' % name)
        else: items(txt)
    PST = '' if l2 else 'sc1'
    PLD = 'nt' if l2 else 'sc1'
    base(sX, 4)
    ld('x4', 'buffer_load_dwordx4 %s, v%d, %s, 0 offen' % (v4(X4), AX4, srd(sX)))
    ld('x1', 'buffer_load_dword v%d, v%d, %s, 0 offen offset:1024' % (X1, AX1, srd(sX)))
    base(sWQ, 10)
    for t in range(5):
        ld('wq%d' % t, 'buffer_load_dwordx4 %s, v%d, %s, s%d offen %s' % (v4(WQ+4*t), AWQ, srd(sWQ), sQO, wflags))
        if t < 4: a('s_add_u32 s%d, s%d, 0x8000' % (sQO, sQO))
    if fence0 == 'bar': a('s_barrier')
    if fence0 == 'prio': a('s_setprio 0')
    base(sWS, 22)
    ld('E', 'buffer_load_dword v%d, v%d, %s, 0 offen' % (NON, T+11, srd(sWS)))
    if not w5: ld('xf', 'buffer_load_dwordx2 %s, v%d, %s, 0 offen' % (v2(XF), AO, srd(sX)))
    base(sK, 6)
    nk = [0]
    def morek(n):
        for _ in range(n):
            if nk[0] < 8: item('k%d' % nk[0]); nk[0] += 1
    morek(kpts[0])
    base(sV, 8); base(sOUT, 20); base(sW1, 16); base(sW1b, 16)
    a('v_lshrrev_b32 v%d, 3, v%d' % (T+3, M))
    a('v_lshl_add_u32 v%d, v%d, 2, v%d' % (T+4, T+3, Gq))
    a('v_lshl_add_u32 v%d, v%d, 3, v%d' % (T+4, T, T+4))
    a('v_and_b32 v%d, 7, v%d' % (T+5, M))
    a('v_mul_u32_u24 v%d, 3456, v%d' % (AW1, T+4))
    a('v_lshl_add_u32 v%d, v%d, 4, v%d' % (AW1, T+5, AW1))
    a('s_lshl_b32 s%d, s%d, 7' % (sT1, sH))
    a('s_mul_i32 s%d, s%d, %d' % (sW1O, sS, 80*3456)); a('s_add_u32 s%d, s%d, s%d' % (sW1O, sW1O, sT1))
    a('s_cmp_lt_u32 s%d, 27' % sH); a('s_cselect_b32 s%d, 2211840, 0' % (sW1+2))
    a('s_cmp_lt_u32 s%d, 2' % sW); a('s_cselect_b32 s%d, s%d, 0' % (sW1b+2, sW1+2))
    a('s_mul_i32 s%d, s%d, 160' % (sT0, sS))
    a('v_lshl_add_u32 v%d, v%d, 1, s%d' % (LXQ, T+1, sT0))
    a('v_lshl_add_u32 v%d, v%d, 1, s%d' % (LXW, T+4, sT0))
    a('s_lshl_b32 s%d, s%d, 3' % (sREC, sH)); a('s_add_u32 s%d, s%d, s%d' % (sREC, sREC, sS))
    a('s_cmp_lt_u32 s%d, 5' % sS)
    a('s_cselect_b32 s%d, s12, s18' % sF); a('s_cselect_b32 s%d, s13, s19' % (sF+1))
    a('s_cselect_b32 s%d, 3, 1' % sT0); a('s_and_b32 s%d, s%d, s%d' % (sT0, sT0, sW)); a('s_lshl_b32 s%d, s%d, 2' % (sT0, sT0))
    a('v_add_u32 v%d, s%d, v%d' % (T+6, sT0, Gq))
    a('v_mul_u32_u24 v%d, %d, v%d' % (AF, 8*1280, T+6))
    a('v_add_u32 v%d, v%d, v%d' % (AF, AF, T+2))
    a('s_lshr_b32 s%d, s%d, 1' % (sT0, sW)); a('s_lshl_b32 s%d, s%d, 1' % (sT1, sS)); a('s_add_u32 s%d, s%d, s%d' % (sT0, sT0, sT1)); a('s_sub_u32 s%d, s%d, 10' % (sT0, sT0))
    a('s_cmp_lt_u32 s%d, 5' % sS)
    a('s_cselect_b32 s%d, s%d, s%d' % (sT0, sS, sT0))
    a('s_mov_b32 s%d, %d' % (sT1, 64*1280)); a('s_cselect_b32 s%d, %d, s%d' % (sT1, 128*1280, sT1))
    a('s_mul_i32 s%d, s%d, s%d' % (sFO, sH, sT1))
    a('s_lshl_b32 s%d, s%d, 8' % (sT1, sT0)); a('s_add_u32 s%d, s%d, s%d' % (sFO, sFO, sT1))
    a('s_add_u32 s%d, s%d, 5120' % (sFO2, sFO))
    a('s_cmp_lt_u32 s%d, 5' % sT0); a('s_cselect_b32 s%d, s%d, 0' % (sF+2, sW1+2))
    a('s_cmp_lt_u32 s%d, 5' % sS); a('s_cselect_b32 s%d, 5242880, s%d' % (sF+2, sF+2))
    a('s_cselect_b32 s%d, 0, 512' % sT1)
    a('s_lshl_b32 s%d, s%d, 13' % (sT0, sH)); a('s_add_u32 s%d, s%d, %d' % (sT0, sT0, R1))
    a('v_lshl_add_u32 v%d, v%d, 10, s%d' % (AML, T+5, sT0))
    a('v_lshl_add_u32 v%d, v%d, 5, v%d' % (AP1, T+6, AML))
    a('v_lshl_add_u32 v%d, v%d, 4, v%d' % (AP1, T+3, AP1))
    a('v_add_u32 v%d, s%d, v%d' % (AP1, sT1, AP1))
    a('s_lshl_b32 s%d, s%d, 2' % (sT0, sH)); a('s_add_u32 s%d, s%d, s%d' % (sT0, sT0, sW)); a('s_lshl_b32 s%d, s%d, 10' % (sT0, sT0)); a('s_add_u32 s%d, s%d, %d' % (sT0, sT0, R0))
    a('v_add_u32 v%d, s%d, v%d' % (AP0, sT0, AX4))
    a('v_and_b32 v%d, 1, v%d' % (T+7, Gq))
    a('v_lshrrev_b32 v%d, 1, v%d' % (T+8, Gq))
    a('v_lshl_add_u32 v%d, v%d, 1, v%d' % (T+8, T, T+8))
    a('v_lshlrev_b32 v%d, 9, v%d' % (LD, T+8))
    a('v_lshl_add_u32 v%d, v%d, 5, v%d' % (LD, M, LD))
    a('v_lshl_add_u32 v%d, v%d, 4, v%d' % (LD, T+7, LD))
    a('v_lshlrev_b32 v%d, 8, v%d' % (LH, T+8))
    a('v_lshl_add_u32 v%d, v%d, 5, v%d' % (LH, T+5, LH))
    a('v_lshl_add_u32 v%d, v%d, 4, v%d' % (LH, T+7, LH))
    a('v_and_b32 v%d, 7, v%d' % (PART, LN_))
    a('v_lshrrev_b32 v%d, 3, v%d' % (T+9, LN_))
    a('v_lshl_add_u32 v%d, v%d, 3, v%d' % (C16, T, T+9)); a('v_lshlrev_b32 v%d, 4, v%d' % (C16, C16))
    a('v_lshl_add_u32 v%d, v%d, 9, v%d' % (LCB, PART, C16))
    a('v_lshl_add_u32 v%d, v%d, 2, v%d' % (AH, T, T+9)); a('v_lshlrev_b32 v%d, 4, v%d' % (AH, AH))
    a('v_and_b32 v%d, 1, v%d' % (T+7, M))
    a('v_cmp_eq_u32 vcc, 1, v%d' % (T+7))
    a('v_mov_b32 v%d, 0x0c0c0100' % (T+8)); a('v_mov_b32 v%d, 0x01000c0c' % (T+9))
    a('v_cndmask_b32 v%d, v%d, v%d, vcc' % (T+8, T+8, T+9))
    a('v_mov_b32 v%d, 0x0c0c0302' % (T+9)); a('v_mov_b32 v%d, 0x03020c0c' % (T+10))
    a('v_cndmask_b32 v%d, v%d, v%d, vcc' % (T+9, T+9, T+10))
    a('v_lshrrev_b32 v%d, 1, v%d' % (T+7, T+5))
    a('v_mov_b32 v%d, 0x0c0c0c0c' % (T+10))
    for r in range(4):
        a('v_cmp_eq_u32 vcc, %d, v%d' % (r, T+7))
        a('s_nop 1')
        a('v_cndmask_b32 v%d, v%d, v%d, vcc' % (SLO+r, T+10, T+8))
        a('v_cndmask_b32 v%d, v%d, v%d, vcc' % (SHI+r, T+10, T+9))
    a('s_mov_b32 s%d, %s' % (sLG, f32(LOG2E)))
    if w5: pass
    elif mailbox:
        a('s_lshl_b32 s%d, s2, 10' % sT0); a('s_add_u32 s%d, s%d, %d' % (sT0, sT0, R2))
        a('v_add_u32 v%d, s%d, v%d' % (AP2, sT0, AX4))
    else:
        a('v_and_b32 v%d, 31, v%d' % (T+7, LN_)); a('v_lshrrev_b32 v%d, 5, v%d' % (T+8, LN_))
        a('v_mul_u32_u24 v%d, 160, v%d' % (T+8, T+8)); a('v_add_u32 v%d, v%d, v%d' % (T+7, T+7, T+8))
        a('s_lshl_b32 s%d, s%d, 14' % (sT0, sS)); a('s_lshl_b32 s%d, s%d, 4' % (sT1, sH)); a('s_add_u32 s%d, s%d, s%d' % (sT0, sT0, sT1)); a('s_add_u32 s%d, s%d, %d' % (sT0, sT0, R2))
        a('v_lshl_add_u32 v%d, v%d, 9, s%d' % (AP2, T+7, sT0))
    if touch:
        a('s_lshl_b32 s%d, s%d, 9' % (sT0, sREC)); a('s_add_u32 s%d, s%d, %d' % (sT0, sT0, R0))
        a('s_lshl_b32 s%d, s%d, 10' % (sT1, sREC)); a('s_add_u32 s%d, s%d, %d' % (sT1, sT1, R1))
        a('v_mov_b32 v%d, s%d' % (T+7, sT0)); a('v_writelane_b32 v%d, s%d, 1' % (T+7, sT1))
        a('s_add_u32 s%d, s%d, 512' % (sT1, sT1)); a('v_writelane_b32 v%d, s%d, 2' % (T+7, sT1))
        if mailbox:
            a('s_min_u32 s%d, s2, 159' % sT0); a('s_lshl_b32 s%d, s%d, 10' % (sT0, sT0)); a('s_add_u32 s%d, s%d, %d' % (sT0, sT0, R2))
            a('v_writelane_b32 v%d, s%d, 3' % (T+7, sT0)); a('s_add_u32 s%d, s%d, 512' % (sT0, sT0)); a('v_writelane_b32 v%d, s%d, 4' % (T+7, sT0))
        else:
            a('s_lshl_b32 s%d, s%d, 1' % (sT0, sS)); a('s_sub_u32 s%d, s%d, 5' % (sT0, sT0))
            a('s_cmp_lt_u32 s%d, 5' % sS); a('s_cselect_b32 s%d, s%d, s%d' % (sT0, sS, sT0))
            a('s_lshl_b32 s%d, s%d, 5' % (sT0, sT0)); a('s_add_u32 s%d, s%d, s%d' % (sT0, sT0, sH)); a('s_lshl_b32 s%d, s%d, 9' % (sT0, sT0))
            a('s_add_u32 s%d, s%d, %d' % (sT0, sT0, R2))
            a('v_writelane_b32 v%d, s%d, 3' % (T+7, sT0)); a('s_add_u32 s%d, s%d, 16384' % (sT0, sT0)); a('v_writelane_b32 v%d, s%d, 4' % (T+7, sT0))
        a('s_lshl_b32 s%d, s%d, 7' % (sT0, sW)); a('v_add_u32 v%d, s%d, v%d' % (T+7, sT0, T+7))
        a('s_mov_b64 exec, 31')
        if touch == 'st':
            ld('tc', 'buffer_store_dword v%d, v%d, %s, 0 offen sc1' % (T+7, T+7, srd(sWS)))
        else:
            ld('tc', 'buffer_load_dword v%d, v%d, %s, 0 offen %s' % (G2+7, T+7, srd(sWS), '' if touch is True else touch))
        a('s_mov_b64 exec, -1')
    def reduce64(r, sdst):
        for k in (8, 4, 2, 1):
            a('s_nop 1'); dpp('v_add_f32', r, r, r, 'row_ror:%d' % k)
        a('s_nop 1'); dpp('v_add_f32', r, r, r, 'row_bcast:15', rm=0xa)
        a('s_nop 1'); dpp('v_add_f32', r, r, r, 'row_bcast:31', rm=0xc)
        a('s_nop 0'); a('v_readlane_b32 s%d, v%d, 63' % (sdst, r)); a('s_nop 1')
    def unpack(dst, src):
        a('v_lshlrev_b32 v%d, 16, v%d' % (dst, src)); a('v_and_b32 v%d, 0xffff0000, v%d' % (dst+1, src))
    def cvt(d, x, y): a('v_cvt_pk_bf16_f32 v%d, v%d, v%d' % (d, x, y))
    def rnd(r): cvt(r, r, r); a('v_and_b32 v%d, 0xffff0000, v%d' % (r, r))
    wait('x1')
    morek(kpts[1])
    fstamp('x')
    Fx = T
    for k in range(4): unpack(Fx+2*k, X4+k)
    unpack(Fx+8, X1)
    S, D, Q = T+10, T+11, T+22
    a('v_add_f32 v%d, v%d, v%d' % (S, Fx, Fx+1))
    for k in range(2, 10): a('v_add_f32 v%d, v%d, v%d' % (S, S, Fx+k))
    reduce64(S, sT0)
    a('v_mov_b32 v%d, %s' % (T+21, f32(1.0/640)))
    a('v_mul_f32 v%d, s%d, v%d' % (S, sT0, T+21))
    for k in range(10): a('v_sub_f32 v%d, v%d, v%d' % (D+k, Fx+k, S))
    a('v_mul_f32 v%d, v%d, v%d' % (Q, D, D))
    for k in range(1, 10): a('v_fmac_f32 v%d, v%d, v%d' % (Q, D+k, D+k))
    rnd(S)
    morek(kpts[2])
    reduce64(Q, sT0)
    a('v_mul_f32 v%d, s%d, v%d' % (Q, sT0, T+21))
    rnd(Q); a('v_add_f32 v%d, %s, v%d' % (Q, f32(1e-5), Q)); rnd(Q)
    a('v_sqrt_f32 v%d, v%d' % (Q, Q))
    for k in range(10): a('v_sub_f32 v%d, v%d, v%d' % (D+k, Fx+k, S))
    rnd(Q)
    a('v_rcp_f32 v%d, v%d' % (Q, Q))
    for k in range(5): cvt(Fx+k, D+2*k, D+2*k+1)
    for k in range(5): unpack(D+2*k, Fx+k)
    for k in range(10): a('v_mul_f32 v%d, v%d, v%d' % (D+k, D+k, Q))
    for k in range(5): cvt(Fx+k, D+2*k, D+2*k+1)
    a('ds_write_b128 v%d, %s offset:%d' % (AX4, v4(Fx), XN))
    a('ds_write_b32 v%d, v%d offset:%d' % (AX1, Fx+4, XN+1024))
    a('s_cmp_lt_u32 s%d, 2' % sW); a('s_cselect_b32 s%d, 128, 0' % sT0)
    a('v_add_u32 v%d, s%d, v%d' % (T+5, sT0, LXW))
    a('s_waitcnt lgkmcnt(0)')
    for t in range(5): a('ds_read_u16 v%d, v%d offset:%d' % (XV+t, LXQ, XN+8*t))
    a('ds_read_u16 v%d, v%d offset:%d' % (XW, LXW, XN))
    a('ds_read_u16 v%d, v%d offset:%d' % (XW+1, LXW, XN+64))
    a('ds_read_u16 v%d, v%d offset:%d' % (XW+2, T+5, XN))
    morek(kpts[3])
    stamp('ln')
    def perms(buf, src, sel):
        for r in range(4): a('v_perm_b32 v%d, v%d, v%d, v%d' % (buf+r, src, src, sel+r))
    def mfma(acc, A, B, first): a('v_mfma_f32_16x16x32_bf16 %s, %s, %s, %s' % (v4(acc), v4(A), v4(B), '0' if first else v4(acc)))
    a('v_lshlrev_b32 v%d, 5, v%d' % (T+20, M)); a('v_lshl_add_u32 v%d, v%d, 4, v%d' % (T+20, Gq, T+20))
    a('s_lshl_b32 s%d, s%d, 9' % (sT0, sW)); a('v_add_u32 v%d, s%d, v%d' % (T+20, sT0, T+20))
    a('v_and_b32 v%d, 3, v%d' % (T+21, LN_)); a('v_lshrrev_b32 v%d, 2, v%d' % (T+22, LN_)); a('v_lshlrev_b32 v%d, 4, v%d' % (T+22, T+22))
    a('s_lshl_b32 s%d, s%d, 7' % (sT0, sW)); a('v_add_u32 v%d, s%d, v%d' % (T+22, sT0, T+22))
    a('v_lshl_add_u32 v%d, v%d, 9, v%d' % (T+21, T+21, T+22))
    A5 = [AB[0], AB[1], T, T+4, T+8]
    a('s_waitcnt lgkmcnt(3)')
    for t in range(5): perms(A5[t], XV+t, SLO)
    for t in range(5):
        wait('wq%d' % t); mfma(ACA, A5[t], WQ+4*t, t == 0)
    wait('E')
    a('s_mov_b32 s%d, 1664525' % sT0)
    a('v_mul_lo_u32 v%d, v%d, s%d' % (NON, NON, sT0))
    a('v_add_u32 v%d, 1013904223, v%d' % (NON, NON))
    a('s_lshl_b32 s%d, s%d, 9' % (sT1, sREC)); a('s_add_u32 s%d, s%d, %d' % (sT1, sT1, R0))
    a('s_mov_b32 exec_hi, 0')
    a('s_nop 1')
    a('ds_write_b128 v%d, %s offset:%d' % (T+20, v4(ACA), QP))
    a('s_waitcnt lgkmcnt(0)')
    stamp('qpart')
    a('s_barrier')
    def tag(r):
        for k in range(4):
            a('s_mov_b32 s%d, 0x%08x' % (sT0, 0x07060500 + k)); a('v_perm_b32 v%d, v%d, v%d, s%d' % (r+k, r+k, NON, sT0))
    a('ds_read_b128 %s, v%d offset:%d' % (v4(T), T+21, QP))
    a('s_waitcnt lgkmcnt(0)')
    for ctl in (X1c, X2c):
        for j in range(4): dpp('v_add_f32', T+j, T+j, T+j, ctl)
    a('s_mov_b32 exec_lo, 0x11111111')
    tag(T)
    ld('sq', 'buffer_store_dwordx4 %s, v%d, %s, s%d offen %s' % (v4(T), T+22, srd(sWS), sT1, PST))
    a('s_mov_b64 exec, -1')
    stamp('qpub')
    if hlate:
        for t in range(3): perms(WQ+4*t, XW+t, SLO)
    items(post_a)
    fstamp('issued')
    a('s_mov_b32 s%d, 0x0c0c0400' % sT0); a('s_mov_b32 s%d, 0x05040100' % sT1)
    def tagcheck(G, dst='vcc'):
        a('v_perm_b32 v%d, v%d, v%d, s%d' % (T+12, G+1, G, sT0))
        a('v_perm_b32 v%d, v%d, v%d, s%d' % (T+13, G+3, G+2, sT0))
        a('v_perm_b32 v%d, v%d, v%d, s%d' % (T+12, T+13, T+12, sT1))
        a('v_cmp_ne_u32 %s, v%d, v%d' % (dst, T+12, NON))
    a('s_lshl_b32 s%d, s%d, 10' % (sCNT, sW)); a('v_add_u32 v%d, s%d, v%d' % (T+14, sCNT, AX4))
    ACH = WQ + 12
    if not hlate:
        for t in range(3): perms(A5[t], XW+t, SLO)
        for t in range(3):
            wait('u%d' % t); mfma(ACH, A5[t], W1+4*t, t == 0); pt('h%d' % t)
    polls = [n for n in issued if n[0] == 'p']
    a('s_mov_b32 s%d, 0' % sNF)
    for j, n in enumerate(polls):
        G = PQ + 4*int(n[1:])
        wait(n)
        pt('p%d' % j)
        tagcheck(G)
        a('s_cbranch_vccnz L_q%d' % j)
        a('ds_write_b128 v%d, %s offset:%d' % (T+14, v4(G), QX))
        a('s_branch L_qok')
        lab('L_q%d' % j)
        a('s_mov_b32 s%d, %d' % (sNF, j+1))
    def slow(label, loads, rec_shift, rec_base, lanes_hi, lanes_lo):
        def rd(flag, soff):
            for G, ad, off in loads: a('buffer_load_dwordx4 %s, v%d, %s, %s offen offset:%d %s' % (v4(G), ad, srd(sWS), soff, off, flag))
            for k, (G, ad, off) in enumerate(loads):
                a('s_waitcnt vmcnt(%d)' % (len(loads) - 1 - k)); tagcheck(G, 'vcc' if k == len(loads) - 1 else 's[4:5]')
            if len(loads) > 1: a('s_nop 0'); a('s_or_b64 vcc, vcc, s[4:5]')
        a('s_mov_b32 s%d, %d' % (sCNT, SPIN))
        lab(label)
        rd(PLD, '0')
        a('s_cbranch_vccz %s_x' % label)
        a('s_sub_u32 s%d, s%d, 1' % (sCNT, sCNT)); a('s_cbranch_scc1 %s_x' % label)
        if l2:
            a('s_cmp_gt_u32 s%d, %d' % (sCNT, SPIN - nfast)); a('s_cbranch_scc1 %s' % label)
            a('s_cmp_lt_u32 s%d, %d' % (sCNT, SPIN - nfast)); a('s_cbranch_scc1 %s_b' % label)
            mirror(label + '_m', rec_shift, rec_base, lanes_hi, lanes_lo)
            lab(label + '_b')
            a('s_mov_b32 s%d, %d' % (sQO, RB))
            rd('sc1', 's%d' % sQO)
            a('s_cbranch_vccnz %s' % label)
        else:
            a('s_branch %s' % label)
        lab(label + '_x')
    def mirror(label, rec_shift, rec_base, lanes_hi, lanes_lo):
        a('s_lshl_b32 s%d, s%d, 3' % (sQO, sH)); a('s_add_u32 s%d, s%d, s%d' % (sQO, sQO, sS))
        a('s_lshl_b32 s%d, s%d, %d' % (sQO, sQO, rec_shift)); a('s_add_u32 s%d, s%d, %d' % (sQO, sQO, rec_base))
        ex(lanes_lo, lanes_hi)
        a('s_mov_b32 s%d, %d' % (sW1O, SPIN))
        lab(label)
        a('buffer_load_dwordx4 %s, v%d, %s, s%d offen nt' % (v4(G2), AX4, srd(sWS), sQO))
        a('s_sub_u32 s%d, s%d, 1' % (sW1O, sW1O)); a('s_cbranch_scc1 %s_y' % label)
        a('s_waitcnt vmcnt(0)'); tagcheck(G2)
        a('s_cbranch_vccnz %s' % label)
        lab(label + '_y')
        a('s_add_u32 s%d, s%d, %d' % (sQO, sQO, RB))
        a('buffer_store_dwordx4 %s, v%d, %s, s%d offen sc1' % (v4(G2), AX4, srd(sWS), sQO))
        a('s_mov_b64 exec, -1')
    if catchup:
        keep = issued[:]
        for nme in LATE: items(pts.get(nme, ''))
        del issued[:]; issued.extend(keep)
        a('s_mov_b32 s%d, 9' % sNF)
    slow('L_qs', [(PQ, AP0, 0)], 9, R0, 0, 0xffffffff)
    a('ds_write_b128 v%d, %s offset:%d' % (T+14, v4(PQ), QX))
    lab('L_qok')
    stamp('qok')
    vstamp(sNF, 0, '-nf')
    a('v_lshlrev_b32 v%d, 3, v%d' % (T+20, LN_))
    a('v_lshlrev_b32 v%d, 4, v%d' % (T+21, M))
    a('s_waitcnt lgkmcnt(0)')
    a('s_barrier')
    for k in range(8): a('ds_read_b64 %s, v%d offset:%d' % (v2(T+2*k), T+20, QX + 512*k))
    for j in range(1, len(polls)):
        if pts.get('p%d' % j):
            a('s_cmp_ge_u32 s%d, %d' % (sNF, j)); a('s_cbranch_scc1 L_skipf%d' % j)
            keep = issued[:]; pt('p%d' % j); del issued[:]; issued.extend(keep)
            lab('L_skipf%d' % j)
    pt('b')
    a('s_waitcnt lgkmcnt(6)'); a('v_pk_add_f32 %s, %s, %s' % (v2(T), v2(T), v2(T+2)))
    a('s_waitcnt lgkmcnt(4)'); a('v_pk_add_f32 %s, %s, %s' % (v2(T+4), v2(T+4), v2(T+6)))
    a('s_waitcnt lgkmcnt(2)'); a('v_pk_add_f32 %s, %s, %s' % (v2(T+8), v2(T+8), v2(T+10)))
    a('v_pk_add_f32 %s, %s, %s' % (v2(T), v2(T), v2(T+4)))
    a('s_waitcnt lgkmcnt(0)'); a('v_pk_add_f32 %s, %s, %s' % (v2(T+12), v2(T+12), v2(T+14)))
    a('v_pk_add_f32 %s, %s, %s' % (v2(T+8), v2(T+8), v2(T+12)))
    a('v_pk_add_f32 %s, %s, %s' % (v2(T), v2(T), v2(T+8)))
    cvt(T, T, T+1)
    a('ds_write_b32 v%d, v%d offset:%d' % (AX1, T, QB))
    a('s_waitcnt lgkmcnt(0)')
    Q4 = T+16
    a('ds_read_b128 %s, v%d offset:%d' % (v4(Q4), T+21, QB))
    pt('qs')
    a('s_waitcnt lgkmcnt(0)')
    S8 = T
    for d in range(4):
        for i in range(8):
            a('v_dot2_f32_bf16 v%d, v%d, v%d, %s' % (S8+i, KK+4*i+d, Q4+d, ('v%d' % (S8+i)) if d else '0'))
    S = T+8
    pt('dot')
    for k in range(4): dpp('v_add_f32', S+k, S8+k, S8+k, 'row_ror:8', bm=0x3)
    for k in range(4): dpp('v_add_f32', S+k, S8+4+k, S8+4+k, 'row_ror:8', bm=0xc)
    for ctl in (HM, X2c, X1c):
        for k in range(4): dpp('v_add_f32', S+k, S+k, S+k, ctl)
    P = T+4
    cvt(P, S, S+1); cvt(P+1, S+2, S+3)
    unpack(S, P); unpack(S+2, P+1)
    for i in range(4): a('v_mul_f32 v%d, %s, v%d' % (S+i, f32(128 ** -0.5), S+i))
    cvt(P, S, S+1); cvt(P+1, S+2, S+3)
    unpack(S, P); unpack(S+2, P+1)
    MX, TM, LS = T+23, T+14, T+13
    a('v_max3_f32 v%d, v%d, v%d, v%d' % (MX, S, S+1, S+2)); a('v_max_f32 v%d, v%d, v%d' % (MX, MX, S+3))
    def xrow(r, op):
        a('s_nop 1'); dpp(op, r, r, r, 'row_ror:8')
        for sw in ('v_permlane16_swap_b32', 'v_permlane32_swap_b32'):
            a('v_mov_b32 v%d, v%d' % (TM, r)); a('s_nop 1'); a('%s v%d, v%d' % (sw, r, TM)); a('%s v%d, v%d, v%d' % (op, r, r, TM))
    xrow(MX, 'v_max_f32')
    a('s_lshl_b32 s%d, s%d, 2' % (sCNT, sW)); a('v_mov_b32 v%d, s%d' % (T+15, sCNT))
    a('ds_write_b32 v%d, v%d offset:%d' % (T+15, MX, ML))
    a('v_mov_b32 v%d, 0' % (T+22))
    pt('s')
    a('s_waitcnt lgkmcnt(0)')
    a('s_barrier')
    a('ds_read_b128 %s, v%d offset:%d' % (v4(T), T+22, ML))
    a('s_waitcnt lgkmcnt(0)')
    a('v_max3_f32 v%d, v%d, v%d, v%d' % (MX, T, T+1, T+2)); a('v_max_f32 v%d, v%d, v%d' % (MX, MX, T+3))
    a('v_mul_f32 v%d, %s, v%d' % (T+17, f32(-LOG2E), MX))
    for i in range(4): a('v_fma_f32 v%d, v%d, s%d, v%d' % (S+i, S+i, sLG, T+17))
    for i in range(4): a('v_exp_f32 v%d, v%d' % (S+i, S+i))
    a('s_nop 0')
    cvt(P, S, S+1); cvt(P+1, S+2, S+3)
    a('v_add_f32 v%d, v%d, v%d' % (LS, S, S+1)); a('v_add_f32 v%d, v%d, v%d' % (T+17, S+2, S+3)); a('v_add_f32 v%d, v%d, v%d' % (LS, LS, T+17))
    pt('e')
    stamp('exp')
    A4 = [AB[0], AB[1], T, T+8]
    def mm8(data, nm, mid=None):
        perms(A4[0], P, SLO); perms(A4[1], P, SHI); perms(A4[2], P+1, SLO); perms(A4[3], P+1, SHI)
        if mid: mid()
        for i in range(8):
            if nm:
                wait(nm[i])
                if i == 7: fstamp('v7')
            mfma(ACA if i < 4 else ACB, A4[i & 3], data+4*i, (i & 3) == 0)
            if nm: pt('pv%d' % i)
    def dwrite(off, pad=True):
        a('s_mov_b32 exec_hi, 0')
        a('s_nop 2') if pad else a('s_nop 0')
        a('ds_write_b128 v%d, %s offset:%d' % (LD, v4(ACA), off))
        a('s_mov_b32 exec_lo, 0'); a('s_mov_b32 exec_hi, -1')
        a('s_nop 0')
        a('ds_write_b128 v%d, %s offset:%d' % (LD, v4(ACB), off))
        a('s_mov_b32 exec_lo, -1')
    def lsum():
        xrow(LS, 'v_add_f32')
        a('ds_write_b32 v%d, v%d offset:%d' % (T+15, LS, ML+16))
        a('v_and_b32 v%d, 0x70, v%d' % (T+16, C16)); a('v_add_u32 v%d, 768, v%d' % (T+16, T+16))
        a('v_cmp_eq_u32 vcc, 0, v%d' % PART)
        a('s_lshl_b32 s%d, s%d, 10' % (sT1, sREC)); a('s_add_u32 s%d, s%d, %d' % (sT1, sT1, R1))
        a('v_cndmask_b32 v%d, v%d, v%d, vcc' % (T+16, T+16, C16))
        a('v_lshl_add_u32 v%d, v%d, 8, v%d' % (T+17, PART, AH))
        if hlate:
            for t in range(3):
                if hlate != 'after': wait('u%d' % t); mfma(ACH, WQ+4*t, W1+4*t, t == 0)
    mm8(VV, ['v%d' % i for i in range(8)], lsum)
    if hlate == 'after':
        for t in range(3): wait('u%d' % t); mfma(ACH, WQ+4*t, W1+4*t, t == 0)
        dwrite(OP, False)
        a('s_nop 0')
    else:
        a('s_nop 1')
        dwrite(OP)
    ex(0x00ff00ff, 0xff00ff00)
    a('ds_write_b128 v%d, %s offset:%d' % (LH, v4(ACH), HP))
    a('s_mov_b64 exec, -1')
    a('s_waitcnt lgkmcnt(0)')
    stamp('pv')
    a('s_barrier')
    a('ds_read_b128 %s, v%d offset:%d' % (v4(T), LCB, OP))
    a('ds_read_b128 %s, v%d offset:%d' % (v4(AB[0]), T+22, ML+16))
    a('ds_read_b128 %s, v%d offset:%d' % (v4(T+8), T+17, HP))
    a('s_cmp_eq_u32 s%d, 0' % sW); a('s_cselect_b32 s%d, 0x02020202, 0' % sCNT)
    a('s_waitcnt lgkmcnt(2)')
    for j in range(4): dpp('v_add_f32', T+j, T+j, T+j, X1c)
    a('s_waitcnt lgkmcnt(1)')
    a('v_add_f32 v%d, v%d, v%d' % (AB[0], AB[0], AB[0]+1)); a('v_add_f32 v%d, v%d, v%d' % (AB[0]+2, AB[0]+2, AB[0]+3))
    for ctl in (X2c, HM):
        for j in range(4): dpp('v_add_f32', T+j, T+j, T+j, ctl)
    ex(0x02020202)
    a('v_mov_b32 v%d, v%d' % (T, MX)); a('v_add_f32 v%d, v%d, v%d' % (T+1, AB[0], AB[0]+2))
    a('s_or_b32 exec_lo, s%d, 0x01010101' % sCNT); a('s_mov_b32 exec_hi, exec_lo')
    tag(T)
    ld('so', 'buffer_store_dwordx4 %s, v%d, %s, s%d offen %s' % (v4(T), T+16, srd(sWS), sT1, PST))
    a('s_mov_b64 exec, -1')
    stamp('opub')
    a('s_waitcnt lgkmcnt(0)')
    for ctl in (X1c, X2c, HM):
        for j in range(4): dpp('v_add_f32', T+8+j, T+8+j, T+8+j, ctl)
    ex(0x01010101, 0)
    tag(T+8)
    ld('sh', 'buffer_store_dwordx4 %s, v%d, %s, s%d offen offset:512 %s' % (v4(T+8), AH, srd(sWS), sT1, PST))
    a('s_mov_b64 exec, -1')
    a('s_cmp_lt_u32 s%d, 5' % sS); a('s_cbranch_scc1 L_p1go')
    a('s_cmp_lt_u32 s%d, 27' % sH); a('s_cbranch_scc1 L_p1go')
    if l2:
        a('s_cmp_lg_u32 s%d, 0' % sW); a('s_cbranch_scc1 L_done')
        a('s_mov_b32 s%d, 0x0c0c0400' % sT0); a('s_mov_b32 s%d, 0x05040100' % sT1)
        mirror('L_idle', 10, R1, 0x00ffffff, 0xffffffff)
    a('s_branch L_done')
    lab('L_p1go')
    a('s_mov_b32 s%d, 0x0c0c0400' % sT0); a('s_mov_b32 s%d, 0x05040100' % sT1)
    if mailbox:
        a('v_lshrrev_b32 v%d, 2, v%d' % (T+21, PART)); a('v_lshlrev_b32 v%d, 15, v%d' % (T+21, T+21))
        a('v_lshl_add_u32 v%d, v%d, 6, v%d' % (T+21, C16, T+21))
        a('s_lshl_b32 s%d, s%d, 16' % (sREC, sS)); a('s_sub_u32 s%d, s%d, %d' % (sREC, sREC, (10 << 15) - 512))
        a('s_lshl_b32 s%d, s%d, 15' % (sNF, sS))
        a('s_cmp_lt_u32 s%d, 5' % sS); a('s_cselect_b32 s%d, s%d, s%d' % (sREC, sNF, sREC))
        a('s_lshl_b32 s%d, s%d, 4' % (sNF, sH)); a('s_add_u32 s%d, s%d, s%d' % (sREC, sREC, sNF)); a('s_add_u32 s%d, s%d, %d' % (sREC, sREC, R2))
    else:
        a('v_lshrrev_b32 v%d, 2, v%d' % (T+21, PART)); a('v_lshl_add_u32 v%d, v%d, 14, v%d' % (T+21, T+21, C16))
        a('s_lshl_b32 s%d, s%d, 1' % (sREC, sS)); a('s_sub_u32 s%d, s%d, 5' % (sREC, sREC))
        a('s_cmp_lt_u32 s%d, 5' % sS); a('s_cselect_b32 s%d, s%d, s%d' % (sREC, sS, sREC))
        a('s_lshl_b32 s%d, s%d, 5' % (sREC, sREC)); a('s_add_u32 s%d, s%d, s%d' % (sREC, sREC, sH)); a('s_lshl_b32 s%d, s%d, 9' % (sREC, sREC))
        a('s_add_u32 s%d, s%d, %d' % (sREC, sREC, R2))
    if p1_wait is not None: wait('f%d' % p1_wait)
    fstamp('f%s' % p1_wait)
    Gd, Gm = T+8, T+16
    a('s_cmp_ge_u32 s%d, 5' % sS); a('s_cbranch_scc1 L_hpath')
    slow('L_p1', [(Gm, AML, 768), (Gd, AP1, 0)], 10, R1, 0x00ffffff, 0xffffffff)
    stamp('p1')
    vstamp(sCNT, SPIN, 'n1')
    Mp, Mx, Wt = T+12, T+13, T+14
    a('v_and_b32 v%d, 0xffff0000, v%d' % (Mp, Gm))
    a('s_nop 1'); dpp('v_max_f32', Mx, Mp, Mp, X1c)
    a('s_nop 1'); dpp('v_max_f32', Mx, Mx, Mx, X2c)
    a('s_nop 1'); dpp('v_max_f32', Mx, Mx, Mx, HM)
    a('v_sub_f32 v%d, v%d, v%d' % (Wt, Mp, Mx)); a('v_mul_f32 v%d, s%d, v%d' % (Wt, sLG, Wt)); a('v_exp_f32 v%d, v%d' % (Wt, Wt))
    a('s_nop 0')
    a('v_mul_f32 v%d, v%d, v%d' % (Mx, Wt, Gm+1))
    for j in range(4): a('v_mul_f32 v%d, v%d, v%d' % (Gd+j, Wt, Gd+j))
    for ctl in (X1c, X2c, HM):
        dpp('v_add_f32', Mx, Mx, Mx, ctl)
        for j in range(4): dpp('v_add_f32', Gd+j, Gd+j, Gd+j, ctl)
    a('v_rcp_f32 v%d, v%d' % (Mx, Mx))
    a('s_nop 0')
    for j in range(4): a('v_mul_f32 v%d, v%d, v%d' % (Gd+j, Mx, Gd+j))
    a('s_branch L_fmm')
    lab('L_hpath')
    slow('L_ph', [(Gd, AP1, 0)], 10, R1, 0x00ffffff, 0xffffffff)
    for ctl in (X1c, X2c, HM):
        for j in range(4): dpp('v_add_f32', Gd+j, Gd+j, Gd+j, ctl)
    cvt(P, Gd, Gd+1); cvt(P+1, Gd+2, Gd+3)
    unpack(Gd, P); unpack(Gd+2, P+1)
    for j in range(4): a('v_mul_f32 v%d, %s, v%d' % (T+12+j, f32(-LOG2E), Gd+j))
    for j in range(4): a('v_exp_f32 v%d, v%d' % (T+12+j, T+12+j))
    for j in range(4): a('v_add_f32 v%d, 1.0, v%d' % (T+12+j, T+12+j))
    for j in range(4): a('v_rcp_f32 v%d, v%d' % (T+12+j, T+12+j))
    for j in range(4): a('v_mul_f32 v%d, v%d, v%d' % (Gd+j, Gd+j, T+12+j))
    lab('L_fmm')
    cvt(P, Gd, Gd+1); cvt(P+1, Gd+2, Gd+3)
    mm8(FF, None)
    a('s_nop 1')
    dwrite(FP)
    a('s_waitcnt lgkmcnt(0)')
    stamp('fmm')
    a('s_barrier')
    a('ds_read_b128 %s, v%d offset:%d' % (v4(T), LCB, FP))
    a('s_sub_u32 s%d, s%d, 5' % (sT0, sS)); a('s_cmp_lt_u32 s%d, 2' % sT0)
    a('s_cselect_b32 s%d, 0x10101010, 0' % sNF); a('s_or_b32 s%d, s%d, 0x01010101' % (sNF, sNF))
    a('s_cmp_ge_u32 s%d, 5' % sS)
    a('s_waitcnt lgkmcnt(0)')
    for ctl in (X1c, X2c):
        for j in range(4): dpp('v_add_f32', T+j, T+j, T+j, ctl)
    a('s_cbranch_scc1 L_fb')
    for j in range(4): dpp('v_add_f32', T+j, T+j, T+j, HM)
    lab('L_fb')
    a('s_mov_b32 exec_lo, s%d' % sNF); a('s_mov_b32 exec_hi, s%d' % sNF)
    tag(T)
    a('buffer_store_dwordx4 %s, v%d, %s, s%d offen sc1' % (v4(T), T+21, srd(sWS), sREC))
    a('s_mov_b64 exec, -1')
    stamp('fpub')
    if w5:
        a('s_branch L_done')
        lab('L_w5')
        a('s_cmp_ge_u32 s2, 160'); a('s_cbranch_scc1 L_end')
        base(sX, 4); base(sWS, 22); base(sOUT, 20)
        a('buffer_load_dword v%d, v%d, %s, 0 offen' % (NON, T+11, srd(sWS)))
        a('buffer_load_dwordx2 %s, v%d, %s, 0 offen' % (v2(XF), AO, srd(sX)))
        a('s_lshl_b32 s%d, s2, 10' % sT0); a('s_add_u32 s%d, s%d, %d' % (sT0, sT0, R2))
        a('v_add_u32 v%d, s%d, v%d' % (AP2, sT0, AX4))
        assert mailbox
        if fence0 == 'bar': a('s_barrier')
        a('s_waitcnt vmcnt(0)')
        a('s_mov_b32 s%d, 1664525' % sT0)
        a('v_mul_lo_u32 v%d, v%d, s%d' % (NON, NON, sT0))
        a('v_add_u32 v%d, 1013904223, v%d' % (NON, NON))
        for _ in range(5): a('s_barrier')
        stamp('fpub5')
    else:
        a('s_cmp_lg_u32 s%d, %d' % (sW, fin_wave)); a('s_cbranch_scc1 L_done')
        a('s_cmp_ge_u32 s2, 160'); a('s_cbranch_scc1 L_done')
    for j in range(4): a('v_mov_b32 v%d, 0' % (Gd+j))
    a('s_mov_b32 exec_hi, 0x07ffffff')
    a('s_mov_b32 s%d, %d' % (sCNT, SPIN))
    a('s_mov_b32 s%d, 0x0c0c0400' % sT0); a('s_mov_b32 s%d, 0x05040100' % sT1)
    if pipe2:
        GA, GB = G2, G2+4
        a('buffer_load_dwordx4 %s, v%d, %s, 0 offen sc1' % (v4(GA), AP2, srd(sWS)))
        a('s_sleep %d' % pipe2)
        lab('L_p2')
        a('buffer_load_dwordx4 %s, v%d, %s, 0 offen sc1' % (v4(GB), AP2, srd(sWS)))
        a('s_waitcnt vmcnt(1)'); tagcheck(GA)
        a('s_cbranch_vccnz L_p2b')
        for j in range(4): a('v_mov_b32 v%d, v%d' % (Gd+j, GA+j))
        a('s_branch L_p2x')
        lab('L_p2b')
        a('buffer_load_dwordx4 %s, v%d, %s, 0 offen sc1' % (v4(GA), AP2, srd(sWS)))
        a('s_sub_u32 s%d, s%d, 1' % (sCNT, sCNT)); a('s_cbranch_scc1 L_p2x')
        a('s_waitcnt vmcnt(1)'); tagcheck(GB)
        a('s_cbranch_vccnz L_p2')
        for j in range(4): a('v_mov_b32 v%d, v%d' % (Gd+j, GB+j))
        lab('L_p2x')
    else:
        lab('L_p2')
        a('buffer_load_dwordx4 %s, v%d, %s, 0 offen sc1' % (v4(Gd), AP2, srd(sWS)))
        a('s_sub_u32 s%d, s%d, 1' % (sCNT, sCNT)); a('s_cbranch_scc1 L_p2x')
        a('s_waitcnt vmcnt(0)'); tagcheck(Gd)
        a('s_cbranch_vccnz L_p2')
        lab('L_p2x')
    stamp('p2')
    vstamp(sCNT, SPIN, 'n2')
    a('s_mov_b64 exec, -1')
    a('s_nop 0')
    for k in (8, 4, 2, 1):
        for j in range(4): dpp('v_add_f32', Gd+j, Gd+j, Gd+j, 'row_ror:%d' % k)
    for j in range(4): dpp('v_add_f32', Gd+j, Gd+j, Gd+j, 'row_bcast:15', rm=0xa)
    cvt(P, Gd, Gd+1); cvt(P+1, Gd+2, Gd+3)
    a('v_mov_b32 v%d, v%d' % (P+2, P)); a('v_mov_b32 v%d, v%d' % (P+3, P+1))
    unpack(T+12, XF); unpack(T+14, XF+1)
    a('v_permlane32_swap_b32 v%d, v%d' % (P, P+2)); a('v_permlane32_swap_b32 v%d, v%d' % (P+1, P+3))
    unpack(Gd, P); unpack(Gd+2, P+1)
    for j in range(4): a('v_add_f32 v%d, v%d, v%d' % (Gd+j, Gd+j, T+12+j))
    cvt(P, Gd, Gd+1); cvt(P+1, Gd+2, Gd+3)
    unpack(Gd, P); unpack(Gd+2, P+1); unpack(T+12, P+2); unpack(T+14, P+3)
    for j in range(4): a('v_add_f32 v%d, v%d, v%d' % (Gd+j, Gd+j, T+12+j))
    cvt(P, Gd, Gd+1); cvt(P+1, Gd+2, Gd+3)
    a('s_mov_b64 exec, 0x10000')
    a('buffer_store_dwordx2 %s, v%d, %s, 0 offen' % (v2(P), AO, srd(sOUT)))
    a('s_cmp_lg_u32 s2, 0'); a('s_cbranch_scc1 L_done')
    a('buffer_store_dword v%d, v%d, %s, 0 offen' % (NON, AO, srd(sWS)))
    lab('L_done')
    if probe is not None:
        stamp('end')
        a('s_waitcnt vmcnt(0) lgkmcnt(0)')
        a('s_sub_u32 s76, s76, s74'); a('s_mul_i32 s76, s76, %d' % amp); a('s_add_u32 s76, s76, %d' % base_ticks)
        lab('L_spin')
        a('s_memrealtime s[78:79]'); a('s_waitcnt lgkmcnt(0)')
        a('s_sub_u32 s78, s78, s74'); a('s_cmp_lt_u32 s78, s76'); a('s_cbranch_scc1 L_spin')
    elif stamps:
        a('s_mov_b64 exec, -1')
        stamp('end')
        a('s_waitcnt vmcnt(0) lgkmcnt(0)')
        a('v_mov_b32 v%d, 0' % T)
        for j, r in enumerate(st): a('v_writelane_b32 v%d, s%d, %d' % (T, r, j))
        a('s_mul_i32 s3, s2, %d' % (5 if w5 else 4)); a('s_add_u32 s3, s3, s%d' % sW); a('s_lshl_b32 s3, s3, 8'); a('s_add_u32 s3, s3, 0x8000000')
        a('buffer_store_dword v%d, v%d, %s, s3 offen' % (T, AX1, srd(sWS)))
    lab('L_end')
    a('s_endpgm')
    L += ['.section .rodata,"a"', '.p2align 6', '.amdhsa_kernel %s_kernel' % NAME,
          '  .amdhsa_next_free_vgpr %d' % NV, '  .amdhsa_next_free_sgpr 102', '  .amdhsa_accum_offset %d' % ((NV+3)//4*4),
          '  .amdhsa_group_segment_fixed_size 0', '  .amdhsa_kernarg_size 88', '  .amdhsa_user_sgpr_count 2',
          '  .amdhsa_user_sgpr_kernarg_segment_ptr 1', '  .amdhsa_system_sgpr_workgroup_id_x 1', '.end_amdhsa_kernel']
    if stamps and probe is None: L.insert(1, '; STAMPS ' + ' '.join(names))
    return '\n'.join(L) + '\n', names

def emit(name, **kw):
    for sfx, extra in (('', {}), ('_s', dict(stamps=True, fine=True))):
        s, ns = gen(**kw, **extra); open(name + sfx + '.s', 'w').write(s)
        e = check(s)
        if e: print(name + sfx, 'HAZARDS'); [print('  ', x) for x in e]
```

```python
from gen6 import *
C = dict(fence0='bar', touch=True, mailbox=True)
PA = 'k4 k5 k6 Wk0 k7 Wk1 u0 Wk2 p0 u1 Wk3 u2 Wk4 p1 v0 Wk5 v1 Wk6 p2 v2 Wk7 v3 p3'
PT = dict(p0='v4', p1='v5 v6', p2='v7 f0', p3='f1', qs='f2', dot='f3', s='f4', e='f5', pv1='f6', pv3='f7')
for nm in ('none', 'qpub', 'pv', 'p1', 'fpub', 'end'):
    s, _ = gen(post_a=PA, pts=PT, kpts=(1,2,1,0), probe=nm, **C)
    open('pj_%s.s' % nm, 'w').write(s)
```

```python
import sys, struct
from hazcheck import check
NAME = 'parallel_sum__sliding_block_cached__dense_activation_silu__decode'
HDR = open('cdna_kernels/%s.s.ref' % NAME).read().split('; Override launch')[0]
def f32(x): return '0x%08x' % struct.unpack('<I', struct.pack('<f', x))[0]
LOG2E = 1.4426950408889634
XN, QP, HP, QB, OP, ML, FP, QX = 0, 1280, 3328, 5376, 5632, 9728, 9792, 13888
LDS_BYTES = 83968
R0 = 4096
R1 = R0 + 256*512
R2 = R1 + 256*1024
RB = 1 << 20
SPIN = 1 << 18

def gen(stamps=False, flags='nt', wflags='nt', qflags=None, probe=None, amp=10, base_ticks=5000, lds=LDS_BYTES,
        kpts=(1, 2, 1, 0), post_a=None, pts=None, post_o='Wf5 r0', nfast=16, backoff2=0, delay2=0, skip=(), fence0=True, stream=None, tflags='', t0=True, kmap=None, kx=None, qmap=0, spread=False, tight1=False, depth2=1, gap2=2, karg2=False, adapt=None, qnib=True):
    qflags = wflags if qflags is None else qflags
    L = []; COLD = []
    cur = [L]
    def a(s): cur[0].append('  ' + s)
    def lab(s): cur[0].append(s + ':')
    class cold:
        def __enter__(self): cur[0] = COLD
        def __exit__(self, *x): cur[0] = L
    st = []; names = []; pool = list(range(74, 95, 2)) + [12, 14, 16, 18, 0]; cnt = [0]; slot = {}
    def stamp(name=''):
        k = cnt[0]; cnt[0] += 1
        if probe is not None:
            if k == 0: a('s_memrealtime s[74:75]')
            elif name == probe: a('s_memrealtime s[76:77]')
        elif stamps and name not in skip:
            if name not in slot: slot[name] = pool.pop(0); st.append(slot[name]); names.append(name)
            r = slot[name]; a('s_memrealtime s[%d:%d]' % (r, r+1))
    def vstamp(reg, neg, name):
        if stamps and probe is None and name not in skip:
            r = pool.pop(0)
            a('s_sub_u32 s%d, %d, s%d' % (r, neg, reg))
            a('s_mul_i32 s%d, s%d, 100' % (r, r)); a('s_waitcnt lgkmcnt(0)'); a('s_add_u32 s%d, s%d, s74' % (r, r)); st.append(r); names.append(name)
    L.append(HDR.rstrip())
    L.append('; @launch grid=(256,1,1) block=(256,1,1) lds=%d' % lds)
    L.append('.amdgcn_target "amdgcn-amd-amdhsa--gfx950"'); L.append('.text')
    L.append('.globl %s_kernel' % NAME); L.append('.p2align 8'); L.append('.type %s_kernel,@function' % NAME)
    lab('%s_kernel' % NAME)
    M, Gq, LN_, AWQ, AKV, AF, AW1, AX4, AX1, LXQ, LXW, LD, LH, AP1, NON = range(1, 16)
    SLO, SHI = 16, 20
    ACA, ACB = 24, 28
    AB = [32, 36]
    T = 40
    X4, X1 = 64, 68
    XV, XW = 72, 77
    AP0, AML, PART, C16, LCB, AFS, AOS, AH, TCH, ATC, PRE = range(80, 91)
    WQ, W1, KK, VV, FF = 96, 116, 128, 160, 192
    PQ = 224
    NV = 240
    sH, sS, sW = 24, 25, 26
    sX, sK, sV, sWQ, sW1, sF, sWS, sOUT, sW1b = 28, 32, 36, 40, 44, 48, 52, 56, 60
    sQO, sKVO, sFO, sW1O, sT0, sT1, sLG, sCNT, sKVO2, sFO2, sREC, sNF = 64, 65, 66, 67, 68, 69, 27, 3, 70, 71, 72, 73
    sR0, sR1, sXC, sIDLE = 100, 101, 99, 98
    sTG, sCK = 6, 10
    srd = lambda r: 's[%d:%d]' % (r, r+3)
    v4 = lambda r: 'v[%d:%d]' % (r, r+3)
    v2 = lambda r: 'v[%d:%d]' % (r, r+1)
    dpp = lambda op, d, s0, s1, ctl, bm=0xf, rm=0xf: a('%s_dpp v%d, v%d, v%d %s row_mask:0x%x bank_mask:0x%x' % (op, d, s0, s1, ctl, rm, bm))
    X1c, X2c, HM = 'quad_perm:[1,0,3,2]', 'quad_perm:[2,3,0,1]', 'row_half_mirror'
    def ex(lo, hi=None):
        hi = lo if hi is None else hi
        a('s_mov_b32 exec_lo, 0x%x' % lo); a('s_mov_b32 exec_hi, 0x%x' % hi)
    def base(r, p): a('s_mov_b64 s[%d:%d], s[%d:%d]' % (r, r+1, p, p+1))
    def size(r, n): a('s_mov_b32 s%d, 0x%x' % (r+2, n)); a('s_mov_b32 s%d, 0x20000' % (r+3))
    def unpack(dst, src):
        a('v_lshlrev_b32 v%d, 16, v%d' % (dst, src)); a('v_and_b32 v%d, 0xffff0000, v%d' % (dst+1, src))
    def cvt(d, x, y): a('v_cvt_pk_bf16_f32 v%d, v%d, v%d' % (d, x, y))
    def rnd(r): cvt(r, r, r); a('v_and_b32 v%d, 0xffff0000, v%d' % (r, r))
    NQ = 92
    def qnon(dst, parity_bit):
        a('v_bfe_u32 v%d, v%d, %d, 1' % (dst, LN_, parity_bit)); a('v_lshlrev_b32 v%d, 4, v%d' % (dst, dst))
        a('v_lshrrev_b32 v%d, v%d, v%d' % (dst, dst, NON))
        for k in range(1, 4): a('v_lshrrev_b32 v%d, %d, v%d' % (dst+k, 4*k, dst))
    def qtag(r, nq):
        for k in range(4): a('v_bfi_b32 v%d, 15, v%d, v%d' % (r+k, nq+k, r+k))
    def qcheck(G, dst='vcc'):
        if not qnib: return tagcheck(G, dst)
        a('v_xor_b32 v%d, v%d, v%d' % (T+12, G, NQ))
        for k in range(1, 4): a('v_bitop3_b32 v%d, v%d, v%d, v%d bitop3:0xbe' % (T+12, G+k, NQ+k, T+12))
        a('v_and_b32 v%d, 15, v%d' % (T+12, T+12))
        a('v_cmp_ne_u32 %s, 0, v%d' % (dst, T+12))
    def tag(r):
        for k in range(4): a('v_perm_b32 v%d, v%d, v%d, s%d' % (r+k, r+k, NON, sTG+k))
    def tagcheck(G, dst='vcc'):
        a('v_perm_b32 v%d, v%d, v%d, s%d' % (T+12, G+1, G, sCK))
        a('v_perm_b32 v%d, v%d, v%d, s%d' % (T+13, G+3, G+2, sCK))
        a('v_perm_b32 v%d, v%d, v%d, s%d' % (T+12, T+13, T+12, sCK+1))
        a('v_cmp_ne_u32 %s, v%d, v%d' % (dst, T+12, NON))
    stamp('start')
    a('s_load_dwordx16 s[4:19], s[0:1], 0')
    if not karg2:
        a('s_load_dwordx2 s[20:21], s[0:1], 64')
        a('s_load_dwordx2 s[%d:%d], s[0:1], 80' % (sWS, sWS+1))
    a('s_getpc_b64 s[28:29]')
    lab('L_pc')
    a('s_cmpk_ge_u32 s2, 256'); a('s_cbranch_scc1 L_end')
    a('v_lshlrev_b32 v%d, 7, v0' % (T+8))
    a('v_min_u32 v%d, L_end - L_pc, v%d' % (T+8, T+8))
    a('v_lshrrev_b32 v%d, 6, v0' % T)
    a('v_and_b32 v%d, 63, v0' % LN_)
    a('v_readfirstlane_b32 s%d, v%d' % (sW, T))
    a('global_load_dword v%d, v%d, s[28:29]' % (PRE, T+8))
    a('v_and_b32 v%d, 15, v0' % M)
    a('v_bfe_u32 v%d, v0, 4, 2' % Gq)
    a('s_and_b32 s%d, s2, 31' % sH)
    a('s_lshr_b32 s%d, s2, 5' % sS)
    a('v_lshlrev_b32 v%d, 4, v%d' % (AX4, LN_))
    a('v_lshlrev_b32 v%d, 2, v%d' % (AX1, LN_))
    a('v_lshlrev_b32 v%d, 4, v%d' % (T+2, M))
    a('v_mad_u32_u24 v%d, v%d, %d, v%d' % (T+1, T, 4 if qmap else 20, Gq))
    a('v_lshl_add_u32 v%d, v%d, 13, v%d' % (AWQ, T+1, T+2))
    a('s_movk_i32 s%d, 1280' % (sX+2)); a('s_mov_b32 s%d, 0x20000' % (sX+3))
    a('s_mov_b32 s%d, 5242880' % (sWQ+2)); a('s_mov_b32 s%d, 0x20000' % (sWQ+3))
    a('s_mul_i32 s%d, s%d, %d' % (sQO, sS, 80*8192)); a('s_lshl_b32 s%d, s%d, 8' % (sT0, sH)); a('s_add_u32 s%d, s%d, s%d' % (sQO, sQO, sT0))
    if adapt: a('s_memrealtime s[96:97]'); a('s_load_dwordx2 s[56:57], s[0:1], 72')
    stamp('pre')
    a('s_waitcnt lgkmcnt(0)')
    stamp('karg')
    issued = []
    def ld(name, text): a(text); issued.append(name)
    def wait(name, extra=''):
        n = len(issued) - 1 - issued.index(name)
        a('s_waitcnt vmcnt(%d)%s' % (n, extra))
    base(sX, 4)
    ld('x4', 'buffer_load_dwordx4 %s, v%d, %s, 0 offen' % (v4(X4), AX4, srd(sX)))
    ld('x1', 'buffer_load_dword v%d, v%d, %s, 0 offen offset:1024' % (X1, AX1, srd(sX)))
    base(sWQ, 10)
    for t in range(5):
        ld('wq%d' % t, 'buffer_load_dwordx4 %s, v%d, %s, s%d offen %s' % (v4(WQ+4*t), AWQ, srd(sWQ), sQO, qflags))
        if t < 4: a('s_add_u32 s%d, s%d, 0x%x' % (sQO, sQO, 0x20000 if qmap else 0x8000))
    if karg2:
        a('s_load_dwordx2 s[20:21], s[0:1], 64')
        a('s_load_dwordx2 s[%d:%d], s[0:1], 80' % (sWS, sWS+1))
    if probe is not None: a('s_mov_b32 s76, s74')
    km = (kmap or 's2 s1 s0 w1 w0 i2 i1 i0 g1 g0').split()
    pos = {f: 9 - j for j, f in enumerate(km)}
    ioff = lambda i: sum(((i >> b) & 1) << (pos['i%d' % b] + 8) for b in range(3))
    if kmap:
        a('v_mov_b32 v%d, v%d' % (AKV, T+2))
        for f, src in (('w', T), ('g', Gq)):
            for b in range(2):
                a('v_bfe_u32 v%d, v%d, %d, 1' % (T+6, src, b)); a('v_lshl_add_u32 v%d, v%d, %d, v%d' % (AKV, T+6, pos[f + str(b)] + 8, AKV))
    else:
        a('v_lshl_add_u32 v%d, v%d, 5, v%d' % (T+6, T, Gq))
        a('v_lshl_add_u32 v%d, v%d, 8, v%d' % (AKV, T+6, T+2))
    base(sK, 6); size(sK, 33554432); size(sWS, 268435456)
    a('s_lshl_b32 s%d, s%d, 20' % (sKVO, sH)); a('s_add_u32 s%d, s%d, %d' % (sKVO, sKVO, 3072*256))
    if pos['s0'] + 1 == pos['s1'] and pos['s1'] + 1 == pos['s2']:
        a('s_lshl_b32 s%d, s%d, %d' % (sT0, sS, pos['s0'] + 8)); a('s_add_u32 s%d, s%d, s%d' % (sKVO, sKVO, sT0))
    else:
        for b in range(3):
            a('s_bfe_u32 s%d, s%d, 0x%x' % (sT0, sS, (1 << 16) | b)); a('s_lshl_b32 s%d, s%d, %d' % (sT0, sT0, pos['s%d' % b] + 8)); a('s_add_u32 s%d, s%d, s%d' % (sKVO, sKVO, sT0))
    if kx is not None:
        assert [pos['i2'], pos['i1'], pos['i0']] == [9, 8, 7]
        a('s_lshr_b32 s%d, s%d, %d' % (sT0, sH, kx)); a('s_and_b32 s%d, s%d, 7' % (sT0, sT0)); a('s_lshl_b32 s%d, s%d, 15' % (sT0, sT0)); a('s_add_u32 s%d, s%d, s%d' % (sKVO, sKVO, sT0))
    a('s_add_u32 s%d, s%d, 4096' % (sKVO2, sKVO))
    a('s_lshl_b32 s%d, s%d, 3' % (sREC, sH)); a('s_add_u32 s%d, s%d, s%d' % (sREC, sREC, sS))
    a('s_lshl_b32 s%d, s%d, 9' % (sR0, sREC)); a('s_add_u32 s%d, s%d, %d' % (sR0, sR0, R0))
    a('s_lshl_b32 s%d, s%d, 10' % (sR1, sREC)); a('s_add_u32 s%d, s%d, %d' % (sR1, sR1, R1))
    a('s_lshl_b32 s%d, s%d, 7' % (sT1, sW)); a('s_add_u32 s%d, s%d, s%d' % (sT1, sT1, sR0))
    a('v_mov_b32 v%d, 0' % (T+11))
    if karg2: a('s_waitcnt lgkmcnt(0)')
    stamp('iss')
    if fence0: a('s_barrier')
    if adapt:
        a('s_movk_i32 s58, 256'); a('s_mov_b32 s59, 0x20000')
        a('s_or_b32 s96, s96, 1')
        a('s_lshl_b32 s%d, s2, 2' % sCNT); a('s_add_u32 s%d, s%d, s%d' % (sCNT, sCNT, sW))
        a('s_and_b32 s97, s%d, 0xffffffe3' % sCNT)
        a('s_cbranch_scc1 L_nost')
        a('v_mov_b32 v%d, s96' % (T+12)); a('v_mov_b32 v%d, s%d' % (T+13, sCNT))
        a('s_mov_b64 exec, 1')
        a('buffer_store_dword v%d, v%d, s[56:59], 0 offen sc1' % (T+12, T+13))
        a('s_mov_b64 exec, -1')
        lab('L_nost')
        a('v_and_b32 v%d, 28, v%d' % (T+12, AX1))
        ld('D', 'buffer_load_dword v%d, v%d, s[56:59], 0 offen sc1' % (PRE+1, T+12))
    ld('E', 'buffer_load_dword v%d, v%d, %s, 0 offen' % (NON, T+11, srd(sWS)))
    if t0: ld('t0', 'buffer_load_dword v%d, v%d, %s, s%d offen %s' % (TCH, T+11, srd(sWS), sT1, tflags))
    Gd, Gm = T+8, T+16
    def item(n):
        k, i = n[0], n[1:]
        if k == 'W':
            wait(i)
            if n in ('Wk7', 'Wf7', 'Wf5', 'Wf3'): stamp(n)
            return
        i = int(i)
        if k in 'kv' and kmap:
            o = ioff(i)
            if o >= 4096: a('%s s%d, s%d, %d' % ('s_add_u32' if kx is None else 's_xor_b32', sKVO2, sKVO, o & ~4095))
            ld(n, 'buffer_load_dwordx4 %s, v%d, %s, s%d offen offset:%d %s' % (v4((KK if k == 'k' else VV)+4*i), AKV, srd(sK if k == 'k' else sV), sKVO2 if o >= 4096 else sKVO, o & 4095, flags))
        elif k == 'k': ld(n, 'buffer_load_dwordx4 %s, v%d, %s, s%d offen offset:%d %s' % (v4(KK+4*i), AKV, srd(sK), sKVO2 if i >= 4 else sKVO, 1024*(i & 3), flags))
        elif k == 'v': ld(n, 'buffer_load_dwordx4 %s, v%d, %s, s%d offen offset:%d %s' % (v4(VV+4*i), AKV, srd(sV), sKVO2 if i >= 4 else sKVO, 1024*(i & 3), flags))
        elif k == 'f': ld(n, 'buffer_load_dwordx4 %s, v%d, %s, s%d offen offset:%d %s' % (v4(FF+4*i), AF, srd(sF), sFO2 if i >= 4 else sFO, 1280*(i & 3), wflags))
        elif k == 'p': ld(n, 'buffer_load_dwordx4 %s, v%d, %s, 0 offen nt' % (v4(PQ+4*i), AP0, srd(sWS)))
        elif k == 'r':
            gd, gm = [(Gd, Gm), (PQ, PQ+4), (PQ+8, PQ+12)][i]
            ld(n + 'm', 'buffer_load_dwordx4 %s, v%d, %s, 0 offen offset:768 nt' % (v4(gm), AML, srd(sWS)))
            ld(n, 'buffer_load_dwordx4 %s, v%d, %s, 0 offen nt' % (v4(gd), AP1, srd(sWS)))
        elif k == 'u':
            ld(n, 'buffer_load_dwordx4 %s, v%d, %s, s%d offen %s' % (v4(W1+4*i), AW1, srd(sW1b if i == 2 else sW1), sW1O, wflags))
            if i < 2: a('s_add_u32 s%d, s%d, %d' % (sW1O, sW1O, 32*3456))
        elif k == 't':
            a('s_mov_b64 exec, %d' % {1: 63, 2: 3, 3: 60}[i])
            ld(n, 'buffer_load_dword v%d, v%d, %s, 0 offen %s' % (TCH, ATC, srd(sWS), tflags))
            a('s_mov_b64 exec, -1')
        elif k == 'z': a('s_sleep %d' % i)
        else: raise ValueError(n)
    def items(s):
        for n in s.split(): item(n)
    LATE = ('b', 'qs', 'dot', 's', 'e') + tuple('pv%d' % i for i in range(8))
    def pt(name):
        txt = pts.get(name, '')
        if not txt: return
        if name in LATE:
            a('s_cmp_eq_u32 s%d, 9' % sNF); a('s_cbranch_scc1 L_sk_%s' % name)
            items(txt)
            lab('L_sk_%s' % name)
        else: items(txt)
    nk = [0]
    def morek(n):
        for _ in range(n):
            if nk[0] < 8: item('k%d' % nk[0]); nk[0] += 1
    morek(kpts[0])
    base(sV, 8); base(sW1, 16); base(sW1b, 16); size(sV, 33554432)
    for r in (sW1, sW1b, sF): a('s_mov_b32 s%d, 0x20000' % (r+3))
    for k in range(4): a('s_mov_b32 s%d, 0x%08x' % (sTG+k, 0x07060500 + k))
    a('s_mov_b32 s%d, 0x0c0c0400' % sCK); a('s_mov_b32 s%d, 0x05040100' % (sCK+1))
    a('v_lshrrev_b32 v%d, 3, v%d' % (T+3, M))
    a('v_lshl_add_u32 v%d, v%d, 2, v%d' % (T+4, T+3, Gq))
    a('v_lshl_add_u32 v%d, v%d, 3, v%d' % (T+4, T, T+4))
    a('v_and_b32 v%d, 7, v%d' % (T+5, M))
    a('v_mul_u32_u24 v%d, 3456, v%d' % (AW1, T+4))
    a('v_lshl_add_u32 v%d, v%d, 4, v%d' % (AW1, T+5, AW1))
    a('s_lshl_b32 s%d, s%d, 7' % (sT1, sH))
    a('s_mul_i32 s%d, s%d, %d' % (sW1O, sS, 80*3456)); a('s_add_u32 s%d, s%d, s%d' % (sW1O, sW1O, sT1))
    a('s_cmp_lt_u32 s%d, 27' % sH); a('s_cselect_b32 s%d, 2211840, 0' % (sW1+2)); a('s_cselect_b32 s%d, 8, 5' % sIDLE)
    a('s_cmp_lt_u32 s%d, 2' % sW); a('s_cselect_b32 s%d, s%d, 0' % (sW1b+2, sW1+2))
    a('s_mul_i32 s%d, s%d, 160' % (sT0, sS))
    a('v_lshl_add_u32 v%d, v%d, 1, s%d' % (LXQ, T+1, sT0))
    a('v_lshl_add_u32 v%d, v%d, 1, s%d' % (LXW, T+4, sT0))
    a('s_cmp_lt_u32 s%d, 5' % sS)
    a('s_cselect_b64 s[%d:%d], s[12:13], s[18:19]' % (sF, sF+1))
    a('s_cselect_b32 s%d, 3, 1' % sT0); a('s_and_b32 s%d, s%d, s%d' % (sT0, sT0, sW)); a('s_lshl_b32 s%d, s%d, 2' % (sT0, sT0))
    a('v_add_u32 v%d, s%d, v%d' % (T+6, sT0, Gq))
    a('v_mul_u32_u24 v%d, %d, v%d' % (AF, 8*1280, T+6))
    a('v_add_u32 v%d, v%d, v%d' % (AF, AF, T+2))
    a('s_lshr_b32 s%d, s%d, 1' % (sT0, sW)); a('s_lshl_b32 s%d, s%d, 1' % (sT1, sS)); a('s_add_u32 s%d, s%d, s%d' % (sT0, sT0, sT1)); a('s_sub_u32 s%d, s%d, 10' % (sT0, sT0))
    a('s_cmp_lt_u32 s%d, 5' % sS)
    a('s_cselect_b32 s%d, s%d, s%d' % (sT0, sS, sT0))
    a('s_mov_b32 s%d, %d' % (sT1, 64*1280)); a('s_cselect_b32 s%d, %d, s%d' % (sT1, 128*1280, sT1))
    a('s_mul_i32 s%d, s%d, s%d' % (sFO, sH, sT1))
    a('s_lshl_b32 s%d, s%d, 8' % (sT1, sT0)); a('s_add_u32 s%d, s%d, s%d' % (sFO, sFO, sT1))
    a('s_add_u32 s%d, s%d, 5120' % (sFO2, sFO))
    a('s_cmp_lt_u32 s%d, 5' % sT0); a('s_cselect_b32 s%d, s%d, 0' % (sF+2, sW1+2))
    a('s_cmp_lt_u32 s%d, 5' % sS); a('s_cselect_b32 s%d, 5242880, s%d' % (sF+2, sF+2))
    a('s_cselect_b32 s%d, 0, 512' % sT1)
    a('s_lshl_b32 s%d, s%d, 13' % (sT0, sH)); a('s_add_u32 s%d, s%d, %d' % (sT0, sT0, R1))
    a('v_lshl_add_u32 v%d, v%d, 10, s%d' % (AML, T+5, sT0))
    a('v_lshl_add_u32 v%d, v%d, 5, v%d' % (AP1, T+6, AML))
    a('v_lshl_add_u32 v%d, v%d, 4, v%d' % (AP1, T+3, AP1))
    a('v_add_u32 v%d, s%d, v%d' % (AP1, sT1, AP1))
    a('s_lshl_b32 s%d, s%d, 2' % (sT0, sH)); a('s_add_u32 s%d, s%d, s%d' % (sT0, sT0, sW)); a('s_lshl_b32 s%d, s%d, 10' % (sT0, sT0)); a('s_add_u32 s%d, s%d, %d' % (sT0, sT0, R0))
    a('v_add_u32 v%d, s%d, v%d' % (AP0, sT0, AX4))
    a('v_and_b32 v%d, 1, v%d' % (T+7, Gq))
    a('v_lshrrev_b32 v%d, 1, v%d' % (T+8, Gq))
    a('v_lshl_add_u32 v%d, v%d, 1, v%d' % (T+8, T, T+8))
    a('v_lshlrev_b32 v%d, 9, v%d' % (LD, T+8))
    a('v_lshl_add_u32 v%d, v%d, 5, v%d' % (LD, M, LD))
    a('v_lshl_add_u32 v%d, v%d, 4, v%d' % (LD, T+7, LD))
    a('v_lshlrev_b32 v%d, 8, v%d' % (LH, T+8))
    a('v_lshl_add_u32 v%d, v%d, 5, v%d' % (LH, T+5, LH))
    a('v_lshl_add_u32 v%d, v%d, 4, v%d' % (LH, T+7, LH))
    a('v_and_b32 v%d, 7, v%d' % (PART, LN_))
    a('v_lshrrev_b32 v%d, 3, v%d' % (T+9, LN_))
    a('v_lshl_add_u32 v%d, v%d, 3, v%d' % (T+10, T, T+9)); a('v_lshlrev_b32 v%d, 4, v%d' % (C16, T+10))
    a('v_lshl_add_u32 v%d, v%d, 9, v%d' % (LCB, PART, C16))
    a('v_lshl_add_u32 v%d, v%d, 2, v%d' % (AH, T, T+9)); a('v_lshlrev_b32 v%d, 4, v%d' % (AH, AH))
    a('v_lshlrev_b32 v%d, 4, v%d' % (T+9, T+9)); a('v_add_u32 v%d, 768, v%d' % (T+9, T+9))
    a('v_cmp_eq_u32 vcc, 0, v%d' % PART)
    a('v_lshrrev_b32 v%d, 2, v%d' % (T+7, PART)); a('v_lshrrev_b32 v%d, 2, v%d' % (T+8, T+10))
    a('v_cndmask_b32 v%d, v%d, v%d, vcc' % (AOS, T+9, C16))
    a('v_lshl_add_u32 v%d, v%d, 3, v%d' % (T+7, T+7, T+8)); a('v_and_b32 v%d, 48, v%d' % (T+8, C16))
    a('v_lshl_add_u32 v%d, v%d, 13, v%d' % (AFS, T+7, T+8))
    a('s_lshl_b32 s%d, s%d, 17' % (sREC, sS)); a('s_sub_u32 s%d, s%d, %d' % (sREC, sREC, (10 << 16) - 32*128))
    a('s_lshl_b32 s%d, s%d, 16' % (sNF, sS))
    a('s_cmp_lt_u32 s%d, 5' % sS); a('s_cselect_b32 s%d, s%d, s%d' % (sREC, sNF, sREC))
    a('s_lshl_b32 s%d, s%d, 7' % (sNF, sH)); a('s_add_u32 s%d, s%d, s%d' % (sREC, sREC, sNF)); a('s_add_u32 s%d, s%d, %d' % (sREC, sREC, R2))
    a('s_lshl_b32 s%d, s%d, 14' % (sT0, sW)); a('s_add_u32 s%d, s%d, s%d' % (sT0, sT0, sREC))
    a('v_and_b32 v%d, 1, v%d' % (T+7, LN_)); a('v_bfe_u32 v%d, v%d, 2, 1' % (T+8, LN_))
    a('v_lshlrev_b32 v%d, 13, v%d' % (ATC, T+7)); a('v_lshl_add_u32 v%d, v%d, 16, v%d' % (ATC, T+8, ATC)); a('v_add_u32 v%d, s%d, v%d' % (ATC, sT0, ATC))
    a('s_lshl_b32 s%d, s%d, 7' % (sT0, sW)); a('s_add_u32 s%d, s%d, s%d' % (sT0, sT0, sR1))
    a('v_writelane_b32 v%d, s%d, 0' % (ATC, sT0)); a('s_add_u32 s%d, s%d, 512' % (sT0, sT0)); a('v_writelane_b32 v%d, s%d, 1' % (ATC, sT0))
    a('s_getreg_b32 s%d, hwreg(HW_REG_XCC_ID)' % sXC); a('s_lshl_b32 s%d, s%d, 8' % (sXC, sXC))
    pt('setup')
    a('v_and_b32 v%d, 1, v%d' % (T+7, M))
    a('v_cmp_eq_u32 vcc, 1, v%d' % (T+7))
    a('v_mov_b32 v%d, 0x0c0c0100' % (T+8)); a('v_mov_b32 v%d, 0x01000c0c' % (T+9))
    a('v_cndmask_b32 v%d, v%d, v%d, vcc' % (T+8, T+8, T+9))
    a('v_mov_b32 v%d, 0x0c0c0302' % (T+9)); a('v_mov_b32 v%d, 0x03020c0c' % (T+10))
    a('v_cndmask_b32 v%d, v%d, v%d, vcc' % (T+9, T+9, T+10))
    a('v_lshrrev_b32 v%d, 1, v%d' % (T+7, T+5))
    a('v_mov_b32 v%d, 0x0c0c0c0c' % (T+10))
    for r in range(4):
        a('v_cmp_eq_u32 vcc, %d, v%d' % (r, T+7))
        a('s_nop 1')
        a('v_cndmask_b32 v%d, v%d, v%d, vcc' % (SLO+r, T+10, T+8))
        a('v_cndmask_b32 v%d, v%d, v%d, vcc' % (SHI+r, T+10, T+9))
    a('s_mov_b32 s%d, %s' % (sLG, f32(LOG2E)))
    def reduce64(r, sdst):
        for k in (8, 4, 2, 1):
            a('s_nop 1'); dpp('v_add_f32', r, r, r, 'row_ror:%d' % k)
        a('s_nop 1'); dpp('v_add_f32', r, r, r, 'row_bcast:15', rm=0xa)
        a('s_nop 1'); dpp('v_add_f32', r, r, r, 'row_bcast:31', rm=0xc)
        a('s_nop 0'); a('v_readlane_b32 s%d, v%d, 63' % (sdst, r)); a('s_nop 1')
    if stream:
        order, cap = stream
        big = [n for n in issued if n[0] in 'wk' ]
        if adapt:
            wait('D')
            a('v_sub_u32 v%d, s96, v%d' % (T+12, PRE+1))
            a('v_add_u32 v%d, %d, v%d' % (T+12, -adapt[0], T+12))
            a('v_cmp_gt_u32 vcc, 1000, v%d' % (T+12))
            a('s_nop 1'); a('s_cmp_lg_u64 vcc, 0'); a('s_cselect_b32 s97, 1, 0')
            vstamp(97, 0, '-late')
        for idx, n in enumerate(order.split()):
            if adapt:
                c1 = adapt[1] if idx < adapt[3] else adapt[2]
                if len(big) >= c1:
                    a('s_cmp_lg_u32 s97, 0'); a('s_cbranch_scc1 L_ad%d' % idx); wait(big[-c1]); lab('L_ad%d' % idx)
            if len(big) >= cap: wait(big[-cap])
            item(n); big.append(n)
            if n in ('k7', 'v7'): stamp('i' + n)
        stamp('iss')
        wait('v7'); stamp('v7')
        a('s_waitcnt vmcnt(0)'); stamp('all')
        a('s_branch L_done')
    wait('x1')
    morek(kpts[1])
    stamp('x')
    Fx = T
    for k in range(4): unpack(Fx+2*k, X4+k)
    unpack(Fx+8, X1)
    S, D, Q = T+10, T+11, T+22
    a('v_add_f32 v%d, v%d, v%d' % (S, Fx, Fx+1))
    for k in range(2, 10): a('v_add_f32 v%d, v%d, v%d' % (S, S, Fx+k))
    reduce64(S, sT0)
    a('v_mov_b32 v%d, %s' % (T+21, f32(1.0/640)))
    a('v_mul_f32 v%d, s%d, v%d' % (S, sT0, T+21))
    for k in range(10): a('v_sub_f32 v%d, v%d, v%d' % (D+k, Fx+k, S))
    a('v_mul_f32 v%d, v%d, v%d' % (Q, D, D))
    for k in range(1, 10): a('v_fmac_f32 v%d, v%d, v%d' % (Q, D+k, D+k))
    rnd(S)
    morek(kpts[2])
    reduce64(Q, sT0)
    a('v_mul_f32 v%d, s%d, v%d' % (Q, sT0, T+21))
    rnd(Q); a('v_add_f32 v%d, %s, v%d' % (Q, f32(1e-5), Q)); rnd(Q)
    a('v_sqrt_f32 v%d, v%d' % (Q, Q))
    for k in range(10): a('v_sub_f32 v%d, v%d, v%d' % (D+k, Fx+k, S))
    rnd(Q)
    a('v_rcp_f32 v%d, v%d' % (Q, Q))
    for k in range(5): cvt(Fx+k, D+2*k, D+2*k+1)
    for k in range(5): unpack(D+2*k, Fx+k)
    for k in range(10): a('v_mul_f32 v%d, v%d, v%d' % (D+k, D+k, Q))
    for k in range(5): cvt(Fx+k, D+2*k, D+2*k+1)
    a('ds_write_b128 v%d, %s offset:%d' % (AX4, v4(Fx), XN))
    a('ds_write_b32 v%d, v%d offset:%d' % (AX1, Fx+4, XN+1024))
    a('s_cmp_lt_u32 s%d, 2' % sW); a('s_cselect_b32 s%d, 128, 0' % sT0)
    a('v_add_u32 v%d, s%d, v%d' % (T+5, sT0, LXW))
    a('s_waitcnt lgkmcnt(0)')
    for t in range(5): a('ds_read_u16 v%d, v%d offset:%d' % (XV+t, LXQ, XN+(32 if qmap else 8)*t))
    a('ds_read_u16 v%d, v%d offset:%d' % (XW, LXW, XN))
    a('ds_read_u16 v%d, v%d offset:%d' % (XW+1, LXW, XN+64))
    a('ds_read_u16 v%d, v%d offset:%d' % (XW+2, T+5, XN))
    morek(kpts[3])
    stamp('ln')
    def perms(buf, src, sel):
        for r in range(4): a('v_perm_b32 v%d, v%d, v%d, v%d' % (buf+r, src, src, sel+r))
    def mfma(acc, A, B, first): a('v_mfma_f32_16x16x32_bf16 %s, %s, %s, %s' % (v4(acc), v4(A), v4(B), '0' if first else v4(acc)))
    a('v_lshlrev_b32 v%d, 5, v%d' % (T+20, M)); a('v_lshl_add_u32 v%d, v%d, 4, v%d' % (T+20, Gq, T+20))
    a('s_lshl_b32 s%d, s%d, 9' % (sT0, sW)); a('v_add_u32 v%d, s%d, v%d' % (T+20, sT0, T+20))
    a('v_and_b32 v%d, 3, v%d' % (T+21, LN_)); a('v_lshrrev_b32 v%d, 2, v%d' % (T+22, LN_)); a('v_lshlrev_b32 v%d, 4, v%d' % (T+22, T+22))
    a('s_lshl_b32 s%d, s%d, 7' % (sT0, sW)); a('v_add_u32 v%d, s%d, v%d' % (T+22, sT0, T+22))
    a('v_lshl_add_u32 v%d, v%d, 9, v%d' % (T+21, T+21, T+22))
    A5 = [AB[0], AB[1], T, T+4, T+8]
    a('s_waitcnt lgkmcnt(3)')
    for t in range(5): perms(A5[t], XV+t, SLO)
    for t in range(5):
        wait('wq%d' % t); mfma(ACA, A5[t], WQ+4*t, t == 0); pt('q%d' % t)
    wait('E')
    a('s_mov_b32 s%d, 1664525' % sT0)
    a('v_mul_lo_u32 v%d, v%d, s%d' % (NON, NON, sT0))
    a('v_add_u32 v%d, 1013904223, v%d' % (NON, NON))
    if qnib: qnon(T+4, 2)
    a('s_mov_b32 exec_hi, 0')
    if not qnib: a('s_nop 3')
    a('ds_write_b128 v%d, %s offset:%d' % (T+20, v4(ACA), QP))
    a('s_waitcnt lgkmcnt(0)')
    stamp('qpart')
    a('s_barrier')
    a('ds_read_b128 %s, v%d offset:%d' % (v4(T), T+21, QP))
    a('s_waitcnt lgkmcnt(0)')
    for ctl in (X1c, X2c):
        for j in range(4): dpp('v_add_f32', T+j, T+j, T+j, ctl)
    a('s_mov_b32 exec_lo, 0x11111111')
    qtag(T, T+4) if qnib else tag(T)
    ld('sq', 'buffer_store_dwordx4 %s, v%d, %s, s%d offen' % (v4(T), T+22, srd(sWS), sR0))
    a('s_mov_b64 exec, -1')
    stamp('qpub')
    first, rest = post_a.split('|') if '|' in post_a else ('', post_a)
    items(first)
    for t in range(3): perms(WQ+4*t, XW+t, SLO)
    if qnib: qnon(NQ, 0)
    ACH = WQ + 12
    a('s_lshl_b32 s%d, s%d, 10' % (sCNT, sW)); a('v_add_u32 v%d, s%d, v%d' % (T+14, sCNT, AX4))
    a('s_mov_b32 s%d, 0' % sNF)
    a('v_lshlrev_b32 v%d, 3, v%d' % (T+20, LN_))
    a('v_lshlrev_b32 v%d, 4, v%d' % (T+21, M))
    items(rest)
    def mirror(label, both):
        GA, GB = XV, X4
        a('s_mov_b32 s%d, %d' % (sW1O, SPIN))
        lab(label)
        ex(0xffffffff, 0)
        a('buffer_load_dwordx4 %s, v%d, %s, s%d offen nt' % (v4(GA), AX4, srd(sWS), sR0))
        if both:
            a('s_mov_b32 exec_hi, 0x00ffffff')
            a('buffer_load_dwordx4 %s, v%d, %s, s%d offen nt' % (v4(GB), AX4, srd(sWS), sR1))
        a('s_sub_u32 s%d, s%d, 1' % (sW1O, sW1O)); a('s_cbranch_scc1 %s_y' % label)
        a('s_waitcnt vmcnt(0)')
        if both:
            tagcheck(GB); a('s_cbranch_vccnz %s' % label); a('s_mov_b32 exec_hi, 0')
        qcheck(GA); a('s_cbranch_vccnz %s' % label)
        lab(label + '_y')
        a('s_add_u32 s%d, s%d, %d' % (sW1O, sR0, RB))
        a('buffer_store_dwordx4 %s, v%d, %s, s%d offen sc1' % (v4(GA), AX4, srd(sWS), sW1O))
        if both:
            a('s_mov_b32 exec_hi, 0x00ffffff'); a('s_add_u32 s%d, s%d, %d' % (sKVO2, sR1, RB))
            a('buffer_store_dwordx4 %s, v%d, %s, s%d offen sc1' % (v4(GB), AX4, srd(sWS), sKVO2))
        a('s_mov_b64 exec, -1')
    def slow(label, loads, both, out, nfast=nfast):
        def rd(flag, soff):
            for G, ad, off in loads: a('buffer_load_dwordx4 %s, v%d, %s, %s offen offset:%d %s' % (v4(G), ad, srd(sWS), soff, off, flag))
            for k, (G, ad, off) in enumerate(loads):
                a('s_waitcnt vmcnt(%d)' % (len(loads) - 1 - k)); (tagcheck if both else qcheck)(G, 'vcc' if k == len(loads) - 1 else 's[4:5]')
            if len(loads) > 1: a('s_nop 0'); a('s_or_b64 vcc, vcc, s[4:5]')
        a('s_mov_b32 s%d, %d' % (sCNT, SPIN)); a('s_mov_b32 s%d, %d' % (sQO, RB))
        lab(label)
        rd('nt', '0')
        a('s_cbranch_vccz %s' % out)
        a('s_sub_u32 s%d, s%d, 1' % (sCNT, sCNT)); a('s_cbranch_scc1 %s' % out)
        a('s_cmp_gt_u32 s%d, %d' % (sCNT, SPIN - nfast)); a('s_cbranch_scc1 %s' % label)
        a('s_cmp_lt_u32 s%d, %d' % (sCNT, SPIN - nfast)); a('s_cbranch_scc1 %s_b' % label)
        mirror(label + '_m', both)
        lab(label + '_b')
        rd('sc1', 's%d' % sQO)
        a('s_cbranch_vccnz %s' % label)
        a('s_branch %s' % out)
    polls = [n for n in issued if n[0] == 'p']
    assert polls[0] == 'p0'
    wait('p0'); pt('p0'); qcheck(PQ)
    a('s_cbranch_vccnz L_q0')
    lab('L_qw')
    a('ds_write_b128 v%d, %s offset:%d' % (T+14, v4(PQ), QX))
    lab('L_qok')
    with cold():
        for j, n in enumerate(polls):
            if j:
                G = PQ + 4*int(n[1:])
                wait(n); pt('p%d' % j); qcheck(G)
                a('s_cbranch_vccnz L_q%d' % j)
                a('ds_write_b128 v%d, %s offset:%d' % (T+14, v4(G), QX))
                a('s_branch L_qok')
            lab('L_q%d' % j)
            a('s_mov_b32 s%d, %d' % (sNF, j+1))
        keep = issued[:]
        for nme in LATE: items(pts.get(nme, ''))
        del issued[:]; issued.extend(keep)
        a('s_mov_b32 s%d, 9' % sNF)
        slow('L_qs', [(PQ, AP0, 0)], False, 'L_qw')
    stamp('qok')
    vstamp(sNF, 0, '-nf')
    a('s_waitcnt lgkmcnt(0)')
    a('s_barrier')
    for k in range(8): a('ds_read_b64 %s, v%d offset:%d' % (v2(T+2*k), T+20, QX + 512*k))
    for j in range(1, len(polls)):
        if pts.get('p%d' % j):
            a('s_cmp_ge_u32 s%d, %d' % (sNF, j)); a('s_cbranch_scc1 L_skipf%d' % j)
            keep = issued[:]; pt('p%d' % j); del issued[:]; issued.extend(keep)
            lab('L_skipf%d' % j)
    pt('b')
    a('s_waitcnt lgkmcnt(6)'); a('v_pk_add_f32 %s, %s, %s' % (v2(T), v2(T), v2(T+2)))
    a('s_waitcnt lgkmcnt(4)'); a('v_pk_add_f32 %s, %s, %s' % (v2(T+4), v2(T+4), v2(T+6)))
    a('s_waitcnt lgkmcnt(2)'); a('v_pk_add_f32 %s, %s, %s' % (v2(T+8), v2(T+8), v2(T+10)))
    a('v_pk_add_f32 %s, %s, %s' % (v2(T), v2(T), v2(T+4)))
    a('s_waitcnt lgkmcnt(0)'); a('v_pk_add_f32 %s, %s, %s' % (v2(T+12), v2(T+12), v2(T+14)))
    a('v_pk_add_f32 %s, %s, %s' % (v2(T+8), v2(T+8), v2(T+12)))
    a('v_pk_add_f32 %s, %s, %s' % (v2(T), v2(T), v2(T+8)))
    cvt(T, T, T+1)
    a('ds_write_b32 v%d, v%d offset:%d' % (AX1, T, QB))
    a('s_waitcnt lgkmcnt(0)')
    Q4 = T+16
    a('ds_read_b128 %s, v%d offset:%d' % (v4(Q4), T+21, QB))
    pt('qs')
    wait('k7', ' lgkmcnt(0)')
    S8 = T
    for d in range(4):
        for i in range(8):
            a('v_dot2_f32_bf16 v%d, v%d, v%d, %s' % (S8+i, KK+4*i+d, Q4+d, ('v%d' % (S8+i)) if d else '0'))
    S = T+8
    pt('dot')
    for k in range(4): dpp('v_add_f32', S+k, S8+k, S8+k, 'row_ror:8', bm=0x3)
    for k in range(4): dpp('v_add_f32', S+k, S8+4+k, S8+4+k, 'row_ror:8', bm=0xc)
    for ctl in (HM, X2c, X1c):
        for k in range(4): dpp('v_add_f32', S+k, S+k, S+k, ctl)
    P = T+4
    cvt(P, S, S+1); cvt(P+1, S+2, S+3)
    unpack(S, P); unpack(S+2, P+1)
    for i in range(4): a('v_mul_f32 v%d, %s, v%d' % (S+i, f32(128 ** -0.5), S+i))
    cvt(P, S, S+1); cvt(P+1, S+2, S+3)
    unpack(S, P); unpack(S+2, P+1)
    MX, TM, LS = T+23, T+14, T+13
    a('v_max3_f32 v%d, v%d, v%d, v%d' % (MX, S, S+1, S+2)); a('v_max_f32 v%d, v%d, v%d' % (MX, MX, S+3))
    def xrow(r, op):
        a('s_nop 1'); dpp(op, r, r, r, 'row_ror:8')
        for sw in ('v_permlane16_swap_b32', 'v_permlane32_swap_b32'):
            a('v_mov_b32 v%d, v%d' % (TM, r)); a('s_nop 1'); a('%s v%d, v%d' % (sw, r, TM)); a('%s v%d, v%d, v%d' % (op, r, r, TM))
    xrow(MX, 'v_max_f32')
    a('s_lshl_b32 s%d, s%d, 2' % (sCNT, sW)); a('v_mov_b32 v%d, s%d' % (T+15, sCNT))
    a('ds_write_b32 v%d, v%d offset:%d' % (T+15, MX, ML))
    a('v_mov_b32 v%d, 0' % (T+22))
    pt('s')
    a('s_waitcnt lgkmcnt(0)')
    a('s_barrier')
    a('ds_read_b128 %s, v%d offset:%d' % (v4(T), T+22, ML))
    a('s_waitcnt lgkmcnt(0)')
    a('v_max3_f32 v%d, v%d, v%d, v%d' % (MX, T, T+1, T+2)); a('v_max_f32 v%d, v%d, v%d' % (MX, MX, T+3))
    a('v_mul_f32 v%d, %s, v%d' % (T+17, f32(-LOG2E), MX))
    for i in range(4): a('v_fma_f32 v%d, v%d, s%d, v%d' % (S+i, S+i, sLG, T+17))
    for i in range(4): a('v_exp_f32 v%d, v%d' % (S+i, S+i))
    a('s_nop 0')
    cvt(P, S, S+1); cvt(P+1, S+2, S+3)
    a('v_add_f32 v%d, v%d, v%d' % (LS, S, S+1)); a('v_add_f32 v%d, v%d, v%d' % (T+17, S+2, S+3)); a('v_add_f32 v%d, v%d, v%d' % (LS, LS, T+17))
    pt('e')
    stamp('exp')
    A4 = [AB[0], AB[1], T, T+8]
    def dwrite(off):
        a('s_mov_b32 exec_hi, 0')
        a('ds_write_b128 v%d, %s offset:%d' % (LD, v4(ACA), off))
        a('s_mov_b32 exec_lo, 0'); a('s_mov_b32 exec_hi, -1')
        a('ds_write_b128 v%d, %s offset:%d' % (LD, v4(ACB), off))
        a('s_mov_b32 exec_lo, -1')
    perms(A4[0], P, SLO); perms(A4[1], P, SHI); perms(A4[2], P+1, SLO); perms(A4[3], P+1, SHI)
    xrow(LS, 'v_add_f32')
    a('ds_write_b32 v%d, v%d offset:%d' % (T+15, LS, ML+16))
    a('v_lshl_add_u32 v%d, v%d, 8, v%d' % (T+17, PART, AH))
    for t in range(3): wait('u%d' % t); mfma(ACH, WQ+4*t, W1+4*t, t == 0)
    a('s_cmp_eq_u32 s%d, 0' % sW); a('s_cselect_b32 s%d, 0x03030303, 0' % sCNT); a('s_or_b32 s%d, s%d, 0x01010101' % (sCNT, sCNT))
    a('s_nop 4')
    ex(0x00ff00ff, 0xff00ff00)
    a('ds_write_b128 v%d, %s offset:%d' % (LH, v4(ACH), HP))
    a('s_mov_b64 exec, -1')
    for i in range(8):
        wait('v%d' % i)
        mfma(ACA if i < 4 else ACB, A4[i & 3], VV+4*i, (i & 3) == 0)
        pt('pv%d' % i)
    a('s_mov_b32 exec_hi, 0'); a('s_nop 2')
    a('ds_write_b128 v%d, %s offset:%d' % (LD, v4(ACA), OP))
    a('s_mov_b32 exec_lo, 0'); a('s_mov_b32 exec_hi, -1'); a('s_nop 0')
    a('ds_write_b128 v%d, %s offset:%d' % (LD, v4(ACB), OP))
    a('s_mov_b32 exec_lo, -1')
    a('s_cmp_ge_u32 s%d, s%d' % (sS, sIDLE))
    a('s_waitcnt lgkmcnt(0)')
    stamp('pv')
    a('s_barrier')
    a('ds_read_b128 %s, v%d offset:%d' % (v4(T), LCB, OP))
    a('ds_read_b128 %s, v%d offset:%d' % (v4(AB[0]), T+22, ML+16))
    a('ds_read_b128 %s, v%d offset:%d' % (v4(AB[1]), T+17, HP))
    a('s_waitcnt lgkmcnt(2)')
    for j in range(4): dpp('v_add_f32', T+j, T+j, T+j, X1c)
    a('s_waitcnt lgkmcnt(1)')
    a('v_add_f32 v%d, v%d, v%d' % (AB[0], AB[0], AB[0]+1)); a('v_add_f32 v%d, v%d, v%d' % (AB[0]+2, AB[0]+2, AB[0]+3))
    for ctl in (X2c, HM):
        for j in range(4): dpp('v_add_f32', T+j, T+j, T+j, ctl)
    ex(0x02020202)
    a('v_mov_b32 v%d, v%d' % (T, MX)); a('v_add_f32 v%d, v%d, v%d' % (T+1, AB[0], AB[0]+2)); a('v_mov_b32 v%d, s%d' % (T+2, sXC))
    a('s_mov_b32 exec_lo, s%d' % sCNT); a('s_mov_b32 exec_hi, s%d' % sCNT)
    tag(T)
    ld('so', 'buffer_store_dwordx4 %s, v%d, %s, s%d offen' % (v4(T), AOS, srd(sWS), sR1))
    a('s_mov_b64 exec, -1')
    stamp('opub')
    pt('o')
    a('s_waitcnt lgkmcnt(0)')
    for ctl in (X1c, X2c, HM):
        for j in range(4): dpp('v_add_f32', AB[1]+j, AB[1]+j, AB[1]+j, ctl)
    ex(0x01010101, 0)
    tag(AB[1])
    ld('sh', 'buffer_store_dwordx4 %s, v%d, %s, s%d offen offset:512' % (v4(AB[1]), AH, srd(sWS), sR1))
    a('s_mov_b64 exec, -1')
    a('s_cbranch_scc1 L_red')
    a('s_sub_u32 s%d, s%d, 5' % (sT0, sS)); a('s_cmp_lt_u32 s%d, 2' % sT0)
    a('s_cselect_b32 s%d, 0x10101010, 0' % sNF); a('s_or_b32 s%d, s%d, 0x01010101' % (sNF, sNF))
    if tight1:
        items(post_o.replace('r0', ''))
        a('s_movk_i32 s%d, %d' % (sCNT, nfast))
        a('s_branch L_t1') if False else None
        lab('L_t1')
        a('buffer_load_dwordx4 %s, v%d, %s, 0 offen offset:768 nt' % (v4(Gm), AML, srd(sWS)))
        a('buffer_load_dwordx4 %s, v%d, %s, 0 offen nt' % (v4(Gd), AP1, srd(sWS)))
        a('s_sub_u32 s%d, s%d, 1' % (sCNT, sCNT)); a('s_cbranch_scc1 L_p1s')
        a('s_waitcnt vmcnt(1)'); tagcheck(Gm, 's[4:5]')
        a('v_and_b32 v%d, 0xffff0000, v%d' % (T+15, Gm))
        a('s_waitcnt vmcnt(0)'); tagcheck(Gd)
        a('s_or_b64 vcc, vcc, s[4:5]')
        a('s_cbranch_vccnz L_t1')
        lab('L_p1x')
        with cold():
            lab('L_p1s')
            a('s_waitcnt vmcnt(0)')
            slow('L_p1', [(Gm, AML, 768), (Gd, AP1, 0)], True, 'L_p1y', 1)
            lab('L_p1y')
            a('v_and_b32 v%d, 0xffff0000, v%d' % (T+15, Gm))
            a('s_nop 0')
            a('s_branch L_p1x')
        issued.extend(['r0m', 'r0'])
    else:
        items(post_o)
        wait('r0m'); tagcheck(Gm, 's[4:5]')
        wait('r0'); tagcheck(Gd)
        a('v_and_b32 v%d, 0xffff0000, v%d' % (T+15, Gm))
        a('s_or_b64 vcc, vcc, s[4:5]')
        a('s_cbranch_vccnz L_p1s')
        lab('L_p1x')
        with cold():
            lab('L_p1s')
            for j in (1, 2):
                if 'r%d' % j in issued:
                    gd, gm = [(Gd, Gm), (PQ, PQ+4), (PQ+8, PQ+12)][j]
                    wait('r%dm' % j); tagcheck(gm, 's[4:5]')
                    wait('r%d' % j); tagcheck(gd)
                    a('s_nop 0'); a('s_or_b64 vcc, vcc, s[4:5]')
                    a('s_cbranch_vccnz L_r%d' % j)
                    for k in range(4): a('v_mov_b32 v%d, v%d' % (Gd+k, gd+k))
                    for k in range(3): a('v_mov_b32 v%d, v%d' % (Gm+k, gm+k))
                    a('s_branch L_p1y')
                    lab('L_r%d' % j)
            slow('L_p1', [(Gm, AML, 768), (Gd, AP1, 0)], True, 'L_p1y')
            lab('L_p1y')
            a('v_and_b32 v%d, 0xffff0000, v%d' % (T+15, Gm))
            a('s_nop 0')
            a('s_branch L_p1x')
    stamp('p1')
    a('s_cmp_ge_u32 s%d, 5' % sS); a('s_cbranch_scc1 L_hpath')
    def ftail(third, sfx):
        cvt(P, Gd, Gd+1); cvt(P+1, Gd+2, Gd+3)
        perms(A4[0], P, SLO); perms(A4[1], P, SHI)
        wait('f7')
        mfma(ACA, A4[0], FF, True); mfma(ACB, A4[0], FF+16, True)
        perms(A4[2], P+1, SLO)
        mfma(ACA, A4[1], FF+4, False); mfma(ACB, A4[1], FF+20, False)
        perms(A4[3], P+1, SHI)
        mfma(ACA, A4[2], FF+8, False); mfma(ACB, A4[2], FF+24, False)
        mfma(ACA, A4[3], FF+12, False); mfma(ACB, A4[3], FF+28, False)
        a('v_and_b32 v%d, 0xffffff00, v%d' % (Gm+2, Gm+2))
        a('v_cmp_ne_u32 s[22:23], s%d, v%d' % (sXC, Gm+2))
        a('s_nop 3')
        dwrite(FP)
        a('s_waitcnt lgkmcnt(0)')
        stamp('fmm')
        a('s_barrier')
        a('ds_read_b128 %s, v%d offset:%d' % (v4(T), LCB, FP))
        a('s_cmp_eq_u64 s[22:23], 0')
        a('s_waitcnt lgkmcnt(0)')
        for ctl in (X1c, X2c) + ((HM,) if third else ()):
            for j in range(4): dpp('v_add_f32', T+j, T+j, T+j, ctl)
        a('s_mov_b32 exec_lo, s%d' % sNF); a('s_mov_b32 exec_hi, s%d' % sNF)
        tag(T)
        a('buffer_store_dwordx4 %s, v%d, %s, s%d offen sc1' % (v4(T), AFS, srd(sWS), sREC))
        stamp('fpub')
        if stamps and probe is None and 'ack' not in skip: a('s_waitcnt vmcnt(0)'); stamp('ack')
        if spread and not third:
            a('s_cbranch_scc0 L_em')
            a('s_lshl_b32 s%d, s%d, 2' % (sT0, sS)); a('s_add_u32 s%d, s%d, s%d' % (sT0, sT0, sW))
            a('s_cmp_lg_u32 s%d, 30' % sT0); a('s_cbranch_scc1 L_done')
            a('s_mov_b64 exec, -1')
            a('s_mov_b32 s%d, s%d' % (sREC, sH)); a('s_branch L_red3')
        elif stamps or probe is not None:
            a('s_cbranch_scc1 L_done'); a('s_branch L_em')
        else:
            a('s_cbranch_scc0 L_em'); a('s_endpgm')
    Mp, Mx, Wt = T+15, T+13, T+14
    dpp('v_max_f32', Mx, Mp, Mp, X1c)
    a('s_nop 1'); dpp('v_max_f32', Mx, Mx, Mx, X2c)
    a('s_nop 1'); dpp('v_max_f32', Mx, Mx, Mx, HM)
    a('v_sub_f32 v%d, v%d, v%d' % (Wt, Mp, Mx)); a('v_mul_f32 v%d, s%d, v%d' % (Wt, sLG, Wt)); a('v_exp_f32 v%d, v%d' % (Wt, Wt))
    a('s_nop 0')
    a('v_mul_f32 v%d, v%d, v%d' % (Mx, Wt, Gm+1))
    for j in range(4): a('v_mul_f32 v%d, v%d, v%d' % (Gd+j, Wt, Gd+j))
    for ctl in (X1c, X2c):
        dpp('v_add_f32', Mx, Mx, Mx, ctl)
        for j in range(4): dpp('v_add_f32', Gd+j, Gd+j, Gd+j, ctl)
    dpp('v_add_f32', Mx, Mx, Mx, HM)
    a('v_rcp_f32 v%d, v%d' % (Mx, Mx))
    for j in range(4): dpp('v_add_f32', Gd+j, Gd+j, Gd+j, HM)
    for j in range(4): a('v_mul_f32 v%d, v%d, v%d' % (Gd+j, Mx, Gd+j))
    ftail(True, 'a')
    lab('L_hpath')
    for ctl in (X1c, X2c, HM):
        for j in range(4): dpp('v_add_f32', Gd+j, Gd+j, Gd+j, ctl)
    cvt(P, Gd, Gd+1); cvt(P+1, Gd+2, Gd+3)
    unpack(Gd, P); unpack(Gd+2, P+1)
    for j in range(4): a('v_mul_f32 v%d, %s, v%d' % (T+12+j, f32(-LOG2E), Gd+j))
    for j in range(4): a('v_exp_f32 v%d, v%d' % (T+12+j, T+12+j))
    for j in range(4): a('v_add_f32 v%d, 1.0, v%d' % (T+12+j, T+12+j))
    for j in range(4): a('v_rcp_f32 v%d, v%d' % (T+12+j, T+12+j))
    for j in range(4): a('v_mul_f32 v%d, v%d, v%d' % (Gd+j, Gd+j, T+12+j))
    ftail(False, 'b')
    lab('L_red')
    XA, XB, AO, AP2, XF = 72, 73, 74, 75, 76
    a('s_cmp_eq_u32 s%d, 3' % sW); a('s_cbranch_scc1 L_em')
    a('s_sub_u32 s%d, s%d, 5' % (sQO, sS)); a('s_mul_i32 s%d, s%d, 5' % (sQO, sQO)); a('s_add_u32 s%d, s%d, s%d' % (sQO, sQO, sH)); a('s_sub_u32 s%d, s%d, 27' % (sQO, sQO))
    if spread:
        a('s_cmp_lg_u32 s%d, 0' % sW); a('s_cbranch_scc1 L_done')
        a('s_add_u32 s%d, s%d, 27' % (sREC, sQO))
    else:
        a('s_mul_i32 s%d, s%d, 3' % (sQO, sQO)); a('s_add_u32 s%d, s%d, s%d' % (sREC, sQO, sW))
    a('s_cmp_ge_u32 s%d, 40' % sREC); a('s_cbranch_scc1 L_done')
    lab('L_red3')
    base(sOUT, 20); size(sOUT, 1280)
    a('v_and_b32 v%d, 3, v%d' % (T+2, LN_)); a('v_lshrrev_b32 v%d, 2, v%d' % (T+3, LN_))
    a('v_lshlrev_b32 v%d, 7, v%d' % (AP2, T+3)); a('v_lshl_add_u32 v%d, v%d, 4, v%d' % (AP2, T+2, AP2))
    a('s_lshl_b32 s%d, s%d, 13' % (sQO, sREC)); a('s_add_u32 s%d, s%d, %d' % (sQO, sQO, R2)); a('v_add_u32 v%d, s%d, v%d' % (AP2, sQO, AP2))
    a('s_lshl_b32 s%d, s%d, 5' % (sQO, sREC)); a('v_lshl_add_u32 v%d, v%d, 3, s%d' % (AO, T+2, sQO))
    a('buffer_load_dwordx2 %s, v%d, %s, 0 offen' % (v2(XF), AO, srd(sX)))
    a('v_and_b32 v%d, 1, v%d' % (T+4, Gq)); a('v_lshl_add_u32 v%d, v%d, 1, v%d' % (AO, T+4, AO))
    a('v_lshlrev_b32 v%d, 4, v%d' % (T+4, T+4)); a('v_sub_u32 v%d, 16, v%d' % (T+4, T+4))
    for j in range(12, 16): a('v_mov_b32 v%d, 0' % (KK+j))
    a('s_waitcnt vmcnt(0)')
    a('v_lshlrev_b32 v%d, v%d, v%d' % (XA, T+4, XF)); a('v_lshlrev_b32 v%d, v%d, v%d' % (XB, T+4, XF+1))
    a('v_and_b32 v%d, 0xffff0000, v%d' % (XA, XA)); a('v_and_b32 v%d, 0xffff0000, v%d' % (XB, XB))
    if delay2: a('s_sleep %d' % delay2)
    PM = [32, 34, 36, 38]
    for j in range(3): a('s_mov_b64 s[%d:%d], -1' % (PM[j], PM[j]+1))
    a('s_mov_b32 s%d, -1' % PM[3]); a('s_mov_b32 s%d, 0xfff' % (PM[3]+1))
    a('s_mov_b32 s%d, %d' % (sCNT, SPIN))
    a('s_movk_i32 s%d, 4096' % sQO)
    if depth2 == 1:
        lab('L_p2')
        for j in range(4):
            a('s_mov_b64 exec, s[%d:%d]' % (PM[j], PM[j]+1)); a('s_cbranch_execz L_p2s%d' % j)
            a('buffer_load_dwordx4 %s, v%d, %s, %s offen offset:%d sc1' % (v4(KK+4*j), AP2, srd(sWS), ('s%d' % sQO) if j >= 2 else '0', 2048*(j & 1)))
            lab('L_p2s%d' % j)
        stamp('lastiss')
        a('s_sub_u32 s%d, s%d, 1' % (sCNT, sCNT)); a('s_cbranch_scc1 L_p2x')
        a('s_waitcnt vmcnt(0)')
        for j in range(4):
            a('s_mov_b64 exec, s[%d:%d]' % (PM[j], PM[j]+1))
            tagcheck(KK+4*j, 's[%d:%d]' % (PM[j], PM[j]+1))
        a('s_or_b64 s[4:5], s[%d:%d], s[%d:%d]' % (PM[0], PM[0]+1, PM[1], PM[1]+1)); a('s_or_b64 s[4:5], s[4:5], s[%d:%d]' % (PM[2], PM[2]+1))
        a('s_or_b64 s[4:5], s[4:5], s[%d:%d]' % (PM[3], PM[3]+1))
        if backoff2:
            a('s_cbranch_scc0 L_p2x'); a('s_sleep %d' % backoff2); a('s_branch L_p2')
        else:
            a('s_cbranch_scc1 L_p2')
    else:
        SETS = [VV + 16*k for k in range(depth2)]
        def issue(G):
            for j in range(4):
                a('s_or_b64 exec, s[%d:%d], 1' % (PM[j], PM[j]+1))
                a('buffer_load_dwordx4 %s, v%d, %s, %s offen offset:%d sc1' % (v4(G+4*j), AP2, srd(sWS), ('s%d' % sQO) if j >= 2 else '0', 2048*(j & 1)))
        for k in range(depth2 - 1):
            issue(SETS[k]); a('s_sleep %d' % gap2)
        lab('L_p2')
        for k in range(depth2):
            issue(SETS[(k + depth2 - 1) % depth2])
            stamp('lastiss')
            a('s_waitcnt vmcnt(%d)' % (4*(depth2 - 1)))
            G = SETS[k]
            for j in range(4):
                a('s_mov_b64 exec, s[%d:%d]' % (PM[j], PM[j]+1)); a('s_cbranch_execz L_p2c%d_%d' % (k, j))
                tagcheck(G+4*j, 's[%d:%d]' % (PM[j], PM[j]+1))
                for c in range(4): a('v_mov_b32 v%d, v%d' % (KK+4*j+c, G+4*j+c))
                lab('L_p2c%d_%d' % (k, j))
            a('s_or_b64 s[4:5], s[%d:%d], s[%d:%d]' % (PM[0], PM[0]+1, PM[1], PM[1]+1)); a('s_or_b64 s[4:5], s[4:5], s[%d:%d]' % (PM[2], PM[2]+1))
            a('s_or_b64 s[4:5], s[4:5], s[%d:%d]' % (PM[3], PM[3]+1))
            a('s_cbranch_scc0 L_p2x')
        a('s_sub_u32 s%d, s%d, 1' % (sCNT, sCNT)); a('s_cbranch_scc0 L_p2')
    lab('L_p2x')
    stamp('p2')
    a('s_mov_b64 exec, -1')
    A_, B_ = KK, KK+8
    for j in range(4): a('v_add_f32 v%d, v%d, v%d' % (A_+j, A_+j, A_+4+j))
    for j in range(4): a('v_add_f32 v%d, v%d, v%d' % (B_+j, B_+j, B_+4+j))
    for j in range(4): a('v_permlane32_swap_b32 v%d, v%d' % (A_+j, B_+j))
    for j in range(4): a('v_add_f32 v%d, v%d, v%d' % (A_+j, A_+j, B_+j))
    a('v_permlane16_swap_b32 v%d, v%d' % (A_, A_+1)); a('s_nop 0'); a('v_permlane16_swap_b32 v%d, v%d' % (A_+2, A_+3))
    a('v_add_f32 v%d, v%d, v%d' % (A_, A_, A_+1)); a('v_add_f32 v%d, v%d, v%d' % (A_+2, A_+2, A_+3))
    for k in (4, 8):
        a('s_nop 0'); dpp('v_add_f32', A_, A_, A_, 'row_ror:%d' % k); dpp('v_add_f32', A_+2, A_+2, A_+2, 'row_ror:%d' % k)
    cvt(A_, A_, A_+2); a('v_mov_b32 v%d, v%d' % (A_+1, A_))
    a('s_nop 1')
    a('v_permlane32_swap_b32 v%d, v%d' % (A_, A_+1))
    unpack(B_, A_); unpack(B_+2, A_+1)
    a('v_add_f32 v%d, v%d, v%d' % (B_, B_, XA)); a('v_add_f32 v%d, v%d, v%d' % (B_+1, B_+1, XB))
    cvt(A_, B_, B_+1); unpack(B_, A_)
    a('v_add_f32 v%d, v%d, v%d' % (B_, B_, B_+2)); a('v_add_f32 v%d, v%d, v%d' % (B_+1, B_+1, B_+3))
    cvt(A_, B_, B_+1)
    a('s_mov_b64 exec, 0x000f000f')
    a('buffer_store_short v%d, v%d, %s, 0 offen' % (A_, AO, srd(sOUT)))
    a('buffer_store_short_d16_hi v%d, v%d, %s, 0 offen offset:4' % (A_, AO, srd(sOUT)))
    a('s_cmp_lg_u32 s%d, 0' % sREC); a('s_cbranch_scc1 L_done')
    a('s_mov_b64 exec, 1')
    a('buffer_store_dword v%d, v%d, %s, 0 offen' % (NON, AO, srd(sWS)))
    a('s_branch L_done')
    L.extend(COLD)
    lab('L_em')
    mirror('L_emm', True)
    if spread:
        a('s_lshl_b32 s%d, s%d, 2' % (sT0, sS)); a('s_add_u32 s%d, s%d, s%d' % (sT0, sT0, sW))
        a('s_cmp_lg_u32 s%d, 30' % sT0); a('s_cbranch_scc1 L_done')
        a('s_mov_b32 s%d, s%d' % (sREC, sH)); a('s_branch L_red3')
    lab('L_done')
    if probe is not None:
        stamp('end')
        a('s_waitcnt vmcnt(0) lgkmcnt(0)')
        a('s_sub_u32 s76, s76, s74'); a('s_mul_i32 s76, s76, %d' % amp); a('s_add_u32 s76, s76, %d' % base_ticks)
        lab('L_spin')
        a('s_memrealtime s[78:79]'); a('s_waitcnt lgkmcnt(0)')
        a('s_sub_u32 s78, s78, s74'); a('s_cmp_lt_u32 s78, s76'); a('s_cbranch_scc1 L_spin')
    elif stamps:
        a('s_mov_b64 exec, -1')
        stamp('end')
        a('s_waitcnt vmcnt(0) lgkmcnt(0)')
        a('v_mov_b32 v%d, 0' % T)
        for j, r in enumerate(st): a('v_writelane_b32 v%d, s%d, %d' % (T, r, j))
        a('s_mul_i32 s3, s2, 4'); a('s_add_u32 s3, s3, s%d' % sW); a('s_lshl_b32 s3, s3, 8'); a('s_add_u32 s3, s3, 0x8000000')
        a('buffer_store_dword v%d, v%d, %s, s3 offen' % (T, AX1, srd(sWS)))
    lab('L_end')
    a('s_endpgm')
    L += ['.section .rodata,"a"', '.p2align 6', '.amdhsa_kernel %s_kernel' % NAME,
          '  .amdhsa_next_free_vgpr %d' % NV, '  .amdhsa_next_free_sgpr 102', '  .amdhsa_accum_offset %d' % ((NV+3)//4*4),
          '  .amdhsa_group_segment_fixed_size 0', '  .amdhsa_kernarg_size 88', '  .amdhsa_user_sgpr_count 2',
          '  .amdhsa_user_sgpr_kernarg_segment_ptr 1', '  .amdhsa_system_sgpr_workgroup_id_x 1', '.end_amdhsa_kernel']
    if stamps and probe is None: L.insert(1, '; STAMPS ' + ' '.join(names))
    return '\n'.join(L) + '\n', names

def emit(name, probes=(), **kw):
    for sfx, extra in [('', {}), ('_s', dict(stamps=True))] + [('_p' + p, dict(probe=p)) for p in probes]:
        s, ns = gen(**kw, **extra); open(name + sfx + '.s', 'w').write(s)
        e = check(s)
        if e: print(name + sfx, 'HAZARDS'); [print('  ', x) for x in e]
```

```python
from gen9 import *
M4 = 'i2 i1 i0 w1 w0 s2 s1 s0 g1 g0'
PA = 'k6 k7 | Wk1 u0 Wk2 u1 Wk3 p0 u2 Wk4 v0 Wk5 p1 v1 Wk6 v2 p2 Wk7 v3 p3'
PT = dict(setup='t2', p0='v4', p1='v5 v6', p2='v7 f0', p3='f1', qs='f2 f3', dot='f4', s='f5', e='f6', pv1='f7')
C = dict(tflags='sc1', pl='sc1', kmap=M4, post_a=PA, pts=PT, nfast=32, tight1=True, post_o='Wf6 r0', wmax=True, kpts=(2, 2, 2, 0))
s, _ = gen(**C)
DOC = """;
"""
i = s.index('.amdgcn_target')
s = s[:i] + DOC + s[i:]
open('cdna_kernels/%s.s' % NAME, 'w').write(s)
print(len(s), check(s))
```

```python
import sys, struct
from hazcheck import check
NAME = 'parallel_sum__sliding_block_cached__dense_activation_silu__decode'
HDR = open('cdna_kernels/%s.s.ref' % NAME).read().split('; Override launch')[0]
def f32(x): return '0x%08x' % struct.unpack('<I', struct.pack('<f', x))[0]
LOG2E = 1.4426950408889634
XN, QP, HP, QB, OP, ML, FP, QX = 0, 1280, 3328, 5376, 5632, 9728, 9792, 13888
LDS_BYTES = 83968
R0 = 4096
R1 = R0 + 256*512
R2 = R1 + 256*1024
RB = 1 << 20
SPIN = 1 << 18

def gen(stamps=False, flags='nt', wflags='nt', qflags=None, probe=None, amp=10, base_ticks=5000, lds=LDS_BYTES,
        kpts=(1, 2, 1, 0), post_a=None, pts=None, post_o='Wf5 r0', nfast=16, backoff2=0, delay2=0, skip=(), fence0=True, stream=None, tflags='', t0=True, kmap=None, kx=None, qmap=0, spread=False, tight1=False, depth2=1, gap2=2, karg2=False, adapt=None, qnib=True, clean=False, otouch=False, r4=False, eflags='', xflags='', pflags='', pl='nt'):
    qflags = wflags if qflags is None else qflags
    L = []; COLD = []
    cur = [L]
    def a(s): cur[0].append('  ' + s)
    def lab(s): cur[0].append(s + ':')
    class cold:
        def __enter__(self): cur[0] = COLD
        def __exit__(self, *x): cur[0] = L
    st = []; names = []; pool = list(range(74, 95, 2)) + [12, 14, 16, 18, 0]; cnt = [0]; slot = {}
    def stamp(name=''):
        k = cnt[0]; cnt[0] += 1
        if probe is not None:
            if k == 0: a('s_memrealtime s[74:75]')
            elif name == probe: a('s_memrealtime s[76:77]')
        elif stamps and name not in skip:
            if name not in slot: slot[name] = pool.pop(0); st.append(slot[name]); names.append(name)
            r = slot[name]; a('s_memrealtime s[%d:%d]' % (r, r+1))
    def vstamp(reg, neg, name):
        if stamps and probe is None and name not in skip:
            r = pool.pop(0)
            a('s_sub_u32 s%d, %d, s%d' % (r, neg, reg))
            a('s_mul_i32 s%d, s%d, 100' % (r, r)); a('s_waitcnt lgkmcnt(0)'); a('s_add_u32 s%d, s%d, s74' % (r, r)); st.append(r); names.append(name)
    L.append(HDR.rstrip())
    L.append('; @launch grid=(256,1,1) block=(256,1,1) lds=%d' % lds)
    L.append('.amdgcn_target "amdgcn-amd-amdhsa--gfx950"'); L.append('.text')
    L.append('.globl %s_kernel' % NAME); L.append('.p2align 8'); L.append('.type %s_kernel,@function' % NAME)
    lab('%s_kernel' % NAME)
    M, Gq, LN_, AWQ, AKV, AF, AW1, AX4, AX1, LXQ, LXW, LD, LH, AP1, NON = range(1, 16)
    SLO, SHI = 16, 20
    ACA, ACB = 24, 28
    AB = [32, 36]
    T = 40
    X4, X1 = 64, 68
    XV, XW = 72, 77
    AP0, AML, PART, C16, LCB, AFS, AOS, AH, TCH, ATC, PRE = range(80, 91)
    WQ, W1, KK, VV, FF = 96, 116, 128, 160, 192
    PQ = 224
    NV = 240
    sH, sS, sW = 24, 25, 26
    sX, sK, sV, sWQ, sW1, sF, sWS, sOUT, sW1b = 28, 32, 36, 40, 44, 48, 52, 56, 60
    sQO, sKVO, sFO, sW1O, sT0, sT1, sLG, sCNT, sKVO2, sFO2, sREC, sNF = 64, 65, 66, 67, 68, 69, 27, 3, 70, 71, 72, 73
    sR0, sR1, sXC, sIDLE = 100, 101, 99, 98
    sTG, sCK = 6, 10
    srd = lambda r: 's[%d:%d]' % (r, r+3)
    v4 = lambda r: 'v[%d:%d]' % (r, r+3)
    v2 = lambda r: 'v[%d:%d]' % (r, r+1)
    dpp = lambda op, d, s0, s1, ctl, bm=0xf, rm=0xf: a('%s_dpp v%d, v%d, v%d %s row_mask:0x%x bank_mask:0x%x' % (op, d, s0, s1, ctl, rm, bm))
    X1c, X2c, HM = 'quad_perm:[1,0,3,2]', 'quad_perm:[2,3,0,1]', 'row_half_mirror'
    def ex(lo, hi=None):
        hi = lo if hi is None else hi
        a('s_mov_b32 exec_lo, 0x%x' % lo); a('s_mov_b32 exec_hi, 0x%x' % hi)
    def base(r, p): a('s_mov_b64 s[%d:%d], s[%d:%d]' % (r, r+1, p, p+1))
    def size(r, n): a('s_mov_b32 s%d, 0x%x' % (r+2, n)); a('s_mov_b32 s%d, 0x20000' % (r+3))
    def unpack(dst, src):
        a('v_lshlrev_b32 v%d, 16, v%d' % (dst, src)); a('v_and_b32 v%d, 0xffff0000, v%d' % (dst+1, src))
    def cvt(d, x, y): a('v_cvt_pk_bf16_f32 v%d, v%d, v%d' % (d, x, y))
    def rnd(r): cvt(r, r, r); a('v_and_b32 v%d, 0xffff0000, v%d' % (r, r))
    NQ = 92
    def qnon(dst, parity_bit):
        a('v_bfe_u32 v%d, v%d, %d, 1' % (dst, LN_, parity_bit)); a('v_lshlrev_b32 v%d, 4, v%d' % (dst, dst))
        a('v_lshrrev_b32 v%d, v%d, v%d' % (dst, dst, NON))
        for k in range(1, 4): a('v_lshrrev_b32 v%d, %d, v%d' % (dst+k, 4*k, dst))
    def qtag(r, nq):
        for k in range(4): a('v_bfi_b32 v%d, 15, v%d, v%d' % (r+k, nq+k, r+k))
    def qcheck(G, dst='vcc'):
        if not qnib: return tagcheck(G, dst)
        a('v_xor_b32 v%d, v%d, v%d' % (T+12, G, NQ))
        for k in range(1, 4): a('v_bitop3_b32 v%d, v%d, v%d, v%d bitop3:0xbe' % (T+12, G+k, NQ+k, T+12))
        a('v_and_b32 v%d, 15, v%d' % (T+12, T+12))
        a('v_cmp_ne_u32 %s, 0, v%d' % (dst, T+12))
    def tag(r):
        for k in range(4): a('v_perm_b32 v%d, v%d, v%d, s%d' % (r+k, r+k, NON, sTG+k))
    def tagcheck(G, dst='vcc'):
        a('v_perm_b32 v%d, v%d, v%d, s%d' % (T+12, G+1, G, sCK))
        a('v_perm_b32 v%d, v%d, v%d, s%d' % (T+13, G+3, G+2, sCK))
        a('v_perm_b32 v%d, v%d, v%d, s%d' % (T+12, T+13, T+12, sCK+1))
        a('v_cmp_ne_u32 %s, v%d, v%d' % (dst, T+12, NON))
    stamp('start')
    a('s_load_dwordx16 s[4:19], s[0:1], 0')
    if not karg2:
        a('s_load_dwordx2 s[20:21], s[0:1], 64')
        a('s_load_dwordx2 s[%d:%d], s[0:1], 80' % (sWS, sWS+1))
    a('s_getpc_b64 s[28:29]')
    lab('L_pc')
    a('s_cmpk_ge_u32 s2, 256'); a('s_cbranch_scc1 L_end')
    a('v_lshlrev_b32 v%d, 7, v0' % (T+8))
    a('v_min_u32 v%d, L_end - L_pc, v%d' % (T+8, T+8))
    a('v_lshrrev_b32 v%d, 6, v0' % T)
    a('v_and_b32 v%d, 63, v0' % LN_)
    a('v_readfirstlane_b32 s%d, v%d' % (sW, T))
    a('global_load_dword v%d, v%d, s[28:29] %s' % (PRE, T+8, pflags))
    a('v_and_b32 v%d, 15, v0' % M)
    a('v_bfe_u32 v%d, v0, 4, 2' % Gq)
    a('s_and_b32 s%d, s2, 31' % sH)
    a('s_lshr_b32 s%d, s2, 5' % sS)
    a('v_lshlrev_b32 v%d, 4, v%d' % (AX4, LN_))
    a('v_lshlrev_b32 v%d, 2, v%d' % (AX1, LN_))
    a('v_lshlrev_b32 v%d, 4, v%d' % (T+2, M))
    a('v_mad_u32_u24 v%d, v%d, %d, v%d' % (T+1, T, 4 if qmap else 20, Gq))
    a('v_lshl_add_u32 v%d, v%d, 13, v%d' % (AWQ, T+1, T+2))
    a('s_movk_i32 s%d, 1280' % (sX+2)); a('s_mov_b32 s%d, 0x20000' % (sX+3))
    a('s_mov_b32 s%d, 5242880' % (sWQ+2)); a('s_mov_b32 s%d, 0x20000' % (sWQ+3))
    a('s_mul_i32 s%d, s%d, %d' % (sQO, sS, 80*8192)); a('s_lshl_b32 s%d, s%d, 8' % (sT0, sH)); a('s_add_u32 s%d, s%d, s%d' % (sQO, sQO, sT0))
    if adapt: a('s_memrealtime s[96:97]'); a('s_load_dwordx2 s[56:57], s[0:1], 72')
    stamp('pre')
    a('s_waitcnt lgkmcnt(0)')
    stamp('karg')
    issued = []
    def ld(name, text): a(text); issued.append(name)
    def wait(name, extra=''):
        n = len(issued) - 1 - issued.index(name)
        a('s_waitcnt vmcnt(%d)%s' % (n, extra))
    base(sX, 4)
    ld('x4', 'buffer_load_dwordx4 %s, v%d, %s, 0 offen %s' % (v4(X4), AX4, srd(sX), xflags))
    ld('x1', 'buffer_load_dword v%d, v%d, %s, 0 offen offset:1024 %s' % (X1, AX1, srd(sX), xflags))
    base(sWQ, 10)
    for t in range(5):
        ld('wq%d' % t, 'buffer_load_dwordx4 %s, v%d, %s, s%d offen %s' % (v4(WQ+4*t), AWQ, srd(sWQ), sQO, qflags))
        if t < 4: a('s_add_u32 s%d, s%d, 0x%x' % (sQO, sQO, 0x20000 if qmap else 0x8000))
    if karg2:
        a('s_load_dwordx2 s[20:21], s[0:1], 64')
        a('s_load_dwordx2 s[%d:%d], s[0:1], 80' % (sWS, sWS+1))
    if probe is not None: a('s_mov_b32 s76, s74')
    km = (kmap or 's2 s1 s0 w1 w0 i2 i1 i0 g1 g0').split()
    pos = {f: 9 - j for j, f in enumerate(km)}
    ioff = lambda i: sum(((i >> b) & 1) << (pos['i%d' % b] + 8) for b in range(3))
    if kmap:
        a('v_mov_b32 v%d, v%d' % (AKV, T+2))
        for f, src in (('w', T), ('g', Gq)):
            for b in range(2):
                a('v_bfe_u32 v%d, v%d, %d, 1' % (T+6, src, b)); a('v_lshl_add_u32 v%d, v%d, %d, v%d' % (AKV, T+6, pos[f + str(b)] + 8, AKV))
    else:
        a('v_lshl_add_u32 v%d, v%d, 5, v%d' % (T+6, T, Gq))
        a('v_lshl_add_u32 v%d, v%d, 8, v%d' % (AKV, T+6, T+2))
    base(sK, 6); size(sK, 33554432); size(sWS, 268435456)
    a('s_lshl_b32 s%d, s%d, 20' % (sKVO, sH)); a('s_add_u32 s%d, s%d, %d' % (sKVO, sKVO, 3072*256))
    if pos['s0'] + 1 == pos['s1'] and pos['s1'] + 1 == pos['s2']:
        a('s_lshl_b32 s%d, s%d, %d' % (sT0, sS, pos['s0'] + 8)); a('s_add_u32 s%d, s%d, s%d' % (sKVO, sKVO, sT0))
    else:
        for b in range(3):
            a('s_bfe_u32 s%d, s%d, 0x%x' % (sT0, sS, (1 << 16) | b)); a('s_lshl_b32 s%d, s%d, %d' % (sT0, sT0, pos['s%d' % b] + 8)); a('s_add_u32 s%d, s%d, s%d' % (sKVO, sKVO, sT0))
    if kx is not None:
        assert [pos['i2'], pos['i1'], pos['i0']] == [9, 8, 7]
        a('s_lshr_b32 s%d, s%d, %d' % (sT0, sH, kx)); a('s_and_b32 s%d, s%d, 7' % (sT0, sT0)); a('s_lshl_b32 s%d, s%d, 15' % (sT0, sT0)); a('s_add_u32 s%d, s%d, s%d' % (sKVO, sKVO, sT0))
    a('s_add_u32 s%d, s%d, 4096' % (sKVO2, sKVO))
    a('s_lshl_b32 s%d, s%d, 3' % (sREC, sH)); a('s_add_u32 s%d, s%d, s%d' % (sREC, sREC, sS))
    a('s_lshl_b32 s%d, s%d, 9' % (sR0, sREC)); a('s_add_u32 s%d, s%d, %d' % (sR0, sR0, R0))
    a('s_lshl_b32 s%d, s%d, 10' % (sR1, sREC)); a('s_add_u32 s%d, s%d, %d' % (sR1, sR1, R1))
    a('s_lshl_b32 s%d, s%d, 7' % (sT1, sW)); a('s_add_u32 s%d, s%d, s%d' % (sT1, sT1, sR0))
    a('v_mov_b32 v%d, 0' % (T+11))
    if karg2: a('s_waitcnt lgkmcnt(0)')
    stamp('iss')
    if fence0: a('s_barrier')
    if adapt:
        a('s_movk_i32 s58, 256'); a('s_mov_b32 s59, 0x20000')
        a('s_or_b32 s96, s96, 1')
        a('s_lshl_b32 s%d, s2, 2' % sCNT); a('s_add_u32 s%d, s%d, s%d' % (sCNT, sCNT, sW))
        a('s_and_b32 s97, s%d, 0xffffffe3' % sCNT)
        a('s_cbranch_scc1 L_nost')
        a('v_mov_b32 v%d, s96' % (T+12)); a('v_mov_b32 v%d, s%d' % (T+13, sCNT))
        a('s_mov_b64 exec, 1')
        a('buffer_store_dword v%d, v%d, s[56:59], 0 offen sc1' % (T+12, T+13))
        a('s_mov_b64 exec, -1')
        lab('L_nost')
        a('v_and_b32 v%d, 28, v%d' % (T+12, AX1))
        ld('D', 'buffer_load_dword v%d, v%d, s[56:59], 0 offen sc1' % (PRE+1, T+12))
    ld('E', 'buffer_load_dword v%d, v%d, %s, 0 offen %s' % (NON, T+11, srd(sWS), eflags))
    if t0: ld('t0', 'buffer_load_dword v%d, v%d, %s, s%d offen %s' % (TCH, T+11, srd(sWS), sT1, tflags))
    Gd, Gm = T+8, T+16
    def item(n):
        k, i = n[0], n[1:]
        if k == 'W':
            wait(i)
            if n in ('Wk7', 'Wf7', 'Wf5', 'Wf3'): stamp(n)
            return
        i = int(i)
        if k in 'kv' and kmap:
            o = ioff(i)
            if o >= 4096: a('%s s%d, s%d, %d' % ('s_add_u32' if kx is None else 's_xor_b32', sKVO2, sKVO, o & ~4095))
            ld(n, 'buffer_load_dwordx4 %s, v%d, %s, s%d offen offset:%d %s' % (v4((KK if k == 'k' else VV)+4*i), AKV, srd(sK if k == 'k' else sV), sKVO2 if o >= 4096 else sKVO, o & 4095, flags))
        elif k == 'k': ld(n, 'buffer_load_dwordx4 %s, v%d, %s, s%d offen offset:%d %s' % (v4(KK+4*i), AKV, srd(sK), sKVO2 if i >= 4 else sKVO, 1024*(i & 3), flags))
        elif k == 'v': ld(n, 'buffer_load_dwordx4 %s, v%d, %s, s%d offen offset:%d %s' % (v4(VV+4*i), AKV, srd(sV), sKVO2 if i >= 4 else sKVO, 1024*(i & 3), flags))
        elif k == 'f': ld(n, 'buffer_load_dwordx4 %s, v%d, %s, s%d offen offset:%d %s' % (v4(FF+4*i), AF, srd(sF), sFO2 if i >= 4 else sFO, 1280*(i & 3), wflags))
        elif k == 'p': ld(n, 'buffer_load_dwordx4 %s, v%d, %s, 0 offen %s' % (v4(PQ+4*i), AP0, srd(sWS), pl))
        elif k == 'r':
            gd, gm = [(Gd, Gm), (PQ, PQ+4), (PQ+8, PQ+12)][i]
            ld(n + 'm', 'buffer_load_dwordx4 %s, v%d, %s, 0 offen offset:768 %s' % (v4(gm), AML, srd(sWS), pl))
            ld(n, 'buffer_load_dwordx4 %s, v%d, %s, 0 offen %s' % (v4(gd), AP1, srd(sWS), pl))
        elif k == 'u':
            ld(n, 'buffer_load_dwordx4 %s, v%d, %s, s%d offen %s' % (v4(W1+4*i), AW1, srd(sW1b if i == 2 else sW1), sW1O, wflags))
            if i < 2: a('s_add_u32 s%d, s%d, %d' % (sW1O, sW1O, 32*3456))
        elif k == 't':
            a('s_mov_b64 exec, %d' % {1: 63, 2: 3, 3: 60}[i])
            ld(n, 'buffer_load_dword v%d, v%d, %s, 0 offen %s' % (TCH, ATC, srd(sWS), tflags))
            a('s_mov_b64 exec, -1')
        elif k == 'z': a('s_sleep %d' % i)
        else: raise ValueError(n)
    def items(s):
        for n in s.split(): item(n)
    LATE = ('b', 'qs', 'dot', 's', 'e') + tuple('pv%d' % i for i in range(8))
    def pt(name):
        txt = pts.get(name, '')
        if not txt: return
        if name in LATE:
            a('s_cmp_eq_u32 s%d, 9' % sNF); a('s_cbranch_scc1 L_sk_%s' % name)
            items(txt)
            lab('L_sk_%s' % name)
        else: items(txt)
    nk = [0]
    def morek(n):
        for _ in range(n):
            if nk[0] < 8: item('k%d' % nk[0]); nk[0] += 1
    morek(kpts[0])
    base(sV, 8); base(sW1, 16); base(sW1b, 16); size(sV, 33554432)
    for r in (sW1, sW1b, sF): a('s_mov_b32 s%d, 0x20000' % (r+3))
    for k in range(4): a('s_mov_b32 s%d, 0x%08x' % (sTG+k, 0x07060500 + k))
    a('s_mov_b32 s%d, 0x0c0c0400' % sCK); a('s_mov_b32 s%d, 0x05040100' % (sCK+1))
    a('v_lshrrev_b32 v%d, 3, v%d' % (T+3, M))
    a('v_lshl_add_u32 v%d, v%d, 2, v%d' % (T+4, T+3, Gq))
    a('v_lshl_add_u32 v%d, v%d, 3, v%d' % (T+4, T, T+4))
    a('v_and_b32 v%d, 7, v%d' % (T+5, M))
    a('v_mul_u32_u24 v%d, 3456, v%d' % (AW1, T+4))
    a('v_lshl_add_u32 v%d, v%d, 4, v%d' % (AW1, T+5, AW1))
    a('s_lshl_b32 s%d, s%d, 7' % (sT1, sH))
    a('s_mul_i32 s%d, s%d, %d' % (sW1O, sS, 80*3456)); a('s_add_u32 s%d, s%d, s%d' % (sW1O, sW1O, sT1))
    a('s_cmp_lt_u32 s%d, 27' % sH); a('s_cselect_b32 s%d, 2211840, 0' % (sW1+2)); a('s_cselect_b32 s%d, 8, 5' % sIDLE)
    a('s_cmp_lt_u32 s%d, 2' % sW); a('s_cselect_b32 s%d, s%d, 0' % (sW1b+2, sW1+2))
    a('s_mul_i32 s%d, s%d, 160' % (sT0, sS))
    a('v_lshl_add_u32 v%d, v%d, 1, s%d' % (LXQ, T+1, sT0))
    a('v_lshl_add_u32 v%d, v%d, 1, s%d' % (LXW, T+4, sT0))
    a('s_cmp_lt_u32 s%d, 5' % sS)
    a('s_cselect_b64 s[%d:%d], s[12:13], s[18:19]' % (sF, sF+1))
    a('s_cselect_b32 s%d, 3, 1' % sT0); a('s_and_b32 s%d, s%d, s%d' % (sT0, sT0, sW)); a('s_lshl_b32 s%d, s%d, 2' % (sT0, sT0))
    a('v_add_u32 v%d, s%d, v%d' % (T+6, sT0, Gq))
    a('v_mul_u32_u24 v%d, %d, v%d' % (AF, 8*1280, T+6))
    a('v_add_u32 v%d, v%d, v%d' % (AF, AF, T+2))
    a('s_lshr_b32 s%d, s%d, 1' % (sT0, sW)); a('s_lshl_b32 s%d, s%d, 1' % (sT1, sS)); a('s_add_u32 s%d, s%d, s%d' % (sT0, sT0, sT1)); a('s_sub_u32 s%d, s%d, 10' % (sT0, sT0))
    a('s_cmp_lt_u32 s%d, 5' % sS)
    a('s_cselect_b32 s%d, s%d, s%d' % (sT0, sS, sT0))
    a('s_mov_b32 s%d, %d' % (sT1, 64*1280)); a('s_cselect_b32 s%d, %d, s%d' % (sT1, 128*1280, sT1))
    a('s_mul_i32 s%d, s%d, s%d' % (sFO, sH, sT1))
    a('s_lshl_b32 s%d, s%d, 8' % (sT1, sT0)); a('s_add_u32 s%d, s%d, s%d' % (sFO, sFO, sT1))
    a('s_add_u32 s%d, s%d, 5120' % (sFO2, sFO))
    a('s_cmp_lt_u32 s%d, 5' % sT0); a('s_cselect_b32 s%d, s%d, 0' % (sF+2, sW1+2))
    a('s_cmp_lt_u32 s%d, 5' % sS); a('s_cselect_b32 s%d, 5242880, s%d' % (sF+2, sF+2))
    a('s_cselect_b32 s%d, 0, 512' % sT1)
    a('s_lshl_b32 s%d, s%d, 13' % (sT0, sH)); a('s_add_u32 s%d, s%d, %d' % (sT0, sT0, R1))
    a('v_lshl_add_u32 v%d, v%d, 10, s%d' % (AML, T+5, sT0))
    a('v_lshl_add_u32 v%d, v%d, 5, v%d' % (AP1, T+6, AML))
    a('v_lshl_add_u32 v%d, v%d, 4, v%d' % (AP1, T+3, AP1))
    a('v_add_u32 v%d, s%d, v%d' % (AP1, sT1, AP1))
    a('s_lshl_b32 s%d, s%d, 2' % (sT0, sH)); a('s_add_u32 s%d, s%d, s%d' % (sT0, sT0, sW)); a('s_lshl_b32 s%d, s%d, 10' % (sT0, sT0)); a('s_add_u32 s%d, s%d, %d' % (sT0, sT0, R0))
    a('v_add_u32 v%d, s%d, v%d' % (AP0, sT0, AX4))
    a('v_and_b32 v%d, 1, v%d' % (T+7, Gq))
    a('v_lshrrev_b32 v%d, 1, v%d' % (T+8, Gq))
    a('v_lshl_add_u32 v%d, v%d, 1, v%d' % (T+8, T, T+8))
    a('v_lshlrev_b32 v%d, 9, v%d' % (LD, T+8))
    a('v_lshl_add_u32 v%d, v%d, 5, v%d' % (LD, M, LD))
    a('v_lshl_add_u32 v%d, v%d, 4, v%d' % (LD, T+7, LD))
    a('v_lshlrev_b32 v%d, 8, v%d' % (LH, T+8))
    a('v_lshl_add_u32 v%d, v%d, 5, v%d' % (LH, T+5, LH))
    a('v_lshl_add_u32 v%d, v%d, 4, v%d' % (LH, T+7, LH))
    a('v_and_b32 v%d, 7, v%d' % (PART, LN_))
    a('v_lshrrev_b32 v%d, 3, v%d' % (T+9, LN_))
    a('v_lshl_add_u32 v%d, v%d, 3, v%d' % (T+10, T, T+9)); a('v_lshlrev_b32 v%d, 4, v%d' % (C16, T+10))
    a('v_lshl_add_u32 v%d, v%d, 9, v%d' % (LCB, PART, C16))
    a('v_lshl_add_u32 v%d, v%d, 2, v%d' % (AH, T, T+9)); a('v_lshlrev_b32 v%d, 4, v%d' % (AH, AH))
    a('v_lshlrev_b32 v%d, 4, v%d' % (T+9, T+9)); a('v_add_u32 v%d, 768, v%d' % (T+9, T+9))
    a('v_cmp_eq_u32 vcc, 0, v%d' % PART)
    a('v_lshrrev_b32 v%d, 2, v%d' % (T+7, PART)); a('v_lshrrev_b32 v%d, 2, v%d' % (T+8, T+10))
    a('v_cndmask_b32 v%d, v%d, v%d, vcc' % (AOS, T+9, C16))
    a('v_lshl_add_u32 v%d, v%d, 3, v%d' % (T+7, T+7, T+8)); a('v_and_b32 v%d, 48, v%d' % (T+8, C16))
    a('v_lshl_add_u32 v%d, v%d, 13, v%d' % (AFS, T+7, T+8))
    a('s_lshl_b32 s%d, s%d, 17' % (sREC, sS)); a('s_sub_u32 s%d, s%d, %d' % (sREC, sREC, (10 << 16) - 32*128))
    a('s_lshl_b32 s%d, s%d, 16' % (sNF, sS))
    a('s_cmp_lt_u32 s%d, 5' % sS); a('s_cselect_b32 s%d, s%d, s%d' % (sREC, sNF, sREC))
    a('s_lshl_b32 s%d, s%d, 7' % (sNF, sH)); a('s_add_u32 s%d, s%d, s%d' % (sREC, sREC, sNF)); a('s_add_u32 s%d, s%d, %d' % (sREC, sREC, R2))
    a('s_lshl_b32 s%d, s%d, 14' % (sT0, sW)); a('s_add_u32 s%d, s%d, s%d' % (sT0, sT0, sREC))
    a('v_and_b32 v%d, 1, v%d' % (T+7, LN_)); a('v_bfe_u32 v%d, v%d, 2, 1' % (T+8, LN_))
    a('v_lshlrev_b32 v%d, 13, v%d' % (ATC, T+7)); a('v_lshl_add_u32 v%d, v%d, 16, v%d' % (ATC, T+8, ATC)); a('v_add_u32 v%d, s%d, v%d' % (ATC, sT0, ATC))
    a('s_lshl_b32 s%d, s%d, 7' % (sT0, sW)); a('s_add_u32 s%d, s%d, s%d' % (sT0, sT0, sR1))
    a('v_writelane_b32 v%d, s%d, 0' % (ATC, sT0)); a('s_add_u32 s%d, s%d, 512' % (sT0, sT0)); a('v_writelane_b32 v%d, s%d, 1' % (ATC, sT0))
    a('s_getreg_b32 s%d, hwreg(HW_REG_XCC_ID)' % sXC); a('s_lshl_b32 s%d, s%d, 8' % (sXC, sXC))
    pt('setup')
    a('v_and_b32 v%d, 1, v%d' % (T+7, M))
    a('v_cmp_eq_u32 vcc, 1, v%d' % (T+7))
    a('v_mov_b32 v%d, 0x0c0c0100' % (T+8)); a('v_mov_b32 v%d, 0x01000c0c' % (T+9))
    a('v_cndmask_b32 v%d, v%d, v%d, vcc' % (T+8, T+8, T+9))
    a('v_mov_b32 v%d, 0x0c0c0302' % (T+9)); a('v_mov_b32 v%d, 0x03020c0c' % (T+10))
    a('v_cndmask_b32 v%d, v%d, v%d, vcc' % (T+9, T+9, T+10))
    a('v_lshrrev_b32 v%d, 1, v%d' % (T+7, T+5))
    a('v_mov_b32 v%d, 0x0c0c0c0c' % (T+10))
    for r in range(4):
        a('v_cmp_eq_u32 vcc, %d, v%d' % (r, T+7))
        a('s_nop 1')
        a('v_cndmask_b32 v%d, v%d, v%d, vcc' % (SLO+r, T+10, T+8))
        a('v_cndmask_b32 v%d, v%d, v%d, vcc' % (SHI+r, T+10, T+9))
    a('s_mov_b32 s%d, %s' % (sLG, f32(LOG2E)))
    def reduce64(r, sdst):
        for k in (8, 4, 2, 1):
            a('s_nop 1'); dpp('v_add_f32', r, r, r, 'row_ror:%d' % k)
        a('s_nop 1'); dpp('v_add_f32', r, r, r, 'row_bcast:15', rm=0xa)
        a('s_nop 1'); dpp('v_add_f32', r, r, r, 'row_bcast:31', rm=0xc)
        a('s_nop 0'); a('v_readlane_b32 s%d, v%d, 63' % (sdst, r)); a('s_nop 1')
    if stream:
        order, cap = stream
        big = [n for n in issued if n[0] in 'wk' ]
        if adapt:
            wait('D')
            a('v_sub_u32 v%d, s96, v%d' % (T+12, PRE+1))
            a('v_add_u32 v%d, %d, v%d' % (T+12, -adapt[0], T+12))
            a('v_cmp_gt_u32 vcc, 1000, v%d' % (T+12))
            a('s_nop 1'); a('s_cmp_lg_u64 vcc, 0'); a('s_cselect_b32 s97, 1, 0')
            vstamp(97, 0, '-late')
        for idx, n in enumerate(order.split()):
            if adapt:
                c1 = adapt[1] if idx < adapt[3] else adapt[2]
                if len(big) >= c1:
                    a('s_cmp_lg_u32 s97, 0'); a('s_cbranch_scc1 L_ad%d' % idx); wait(big[-c1]); lab('L_ad%d' % idx)
            if len(big) >= cap: wait(big[-cap])
            item(n); big.append(n)
            if n in ('k7', 'v7'): stamp('i' + n)
        stamp('iss')
        wait('v7'); stamp('v7')
        a('s_waitcnt vmcnt(0)'); stamp('all')
        a('s_branch L_done')
    wait('x1')
    morek(kpts[1])
    stamp('x')
    Fx = T
    for k in range(4): unpack(Fx+2*k, X4+k)
    unpack(Fx+8, X1)
    S, D, Q = T+10, T+11, T+22
    a('v_add_f32 v%d, v%d, v%d' % (S, Fx, Fx+1))
    for k in range(2, 10): a('v_add_f32 v%d, v%d, v%d' % (S, S, Fx+k))
    reduce64(S, sT0)
    a('v_mov_b32 v%d, %s' % (T+21, f32(1.0/640)))
    a('v_mul_f32 v%d, s%d, v%d' % (S, sT0, T+21))
    for k in range(10): a('v_sub_f32 v%d, v%d, v%d' % (D+k, Fx+k, S))
    a('v_mul_f32 v%d, v%d, v%d' % (Q, D, D))
    for k in range(1, 10): a('v_fmac_f32 v%d, v%d, v%d' % (Q, D+k, D+k))
    rnd(S)
    morek(kpts[2])
    reduce64(Q, sT0)
    a('v_mul_f32 v%d, s%d, v%d' % (Q, sT0, T+21))
    rnd(Q); a('v_add_f32 v%d, %s, v%d' % (Q, f32(1e-5), Q)); rnd(Q)
    a('v_sqrt_f32 v%d, v%d' % (Q, Q))
    for k in range(10): a('v_sub_f32 v%d, v%d, v%d' % (D+k, Fx+k, S))
    rnd(Q)
    a('v_rcp_f32 v%d, v%d' % (Q, Q))
    for k in range(5): cvt(Fx+k, D+2*k, D+2*k+1)
    for k in range(5): unpack(D+2*k, Fx+k)
    for k in range(10): a('v_mul_f32 v%d, v%d, v%d' % (D+k, D+k, Q))
    for k in range(5): cvt(Fx+k, D+2*k, D+2*k+1)
    a('ds_write_b128 v%d, %s offset:%d' % (AX4, v4(Fx), XN))
    a('ds_write_b32 v%d, v%d offset:%d' % (AX1, Fx+4, XN+1024))
    a('s_cmp_lt_u32 s%d, 2' % sW); a('s_cselect_b32 s%d, 128, 0' % sT0)
    a('v_add_u32 v%d, s%d, v%d' % (T+5, sT0, LXW))
    a('s_waitcnt lgkmcnt(0)')
    for t in range(5): a('ds_read_u16 v%d, v%d offset:%d' % (XV+t, LXQ, XN+(32 if qmap else 8)*t))
    a('ds_read_u16 v%d, v%d offset:%d' % (XW, LXW, XN))
    a('ds_read_u16 v%d, v%d offset:%d' % (XW+1, LXW, XN+64))
    a('ds_read_u16 v%d, v%d offset:%d' % (XW+2, T+5, XN))
    morek(kpts[3])
    stamp('ln')
    def perms(buf, src, sel):
        for r in range(4): a('v_perm_b32 v%d, v%d, v%d, v%d' % (buf+r, src, src, sel+r))
    def mfma(acc, A, B, first): a('v_mfma_f32_16x16x32_bf16 %s, %s, %s, %s' % (v4(acc), v4(A), v4(B), '0' if first else v4(acc)))
    a('v_lshlrev_b32 v%d, 5, v%d' % (T+20, M)); a('v_lshl_add_u32 v%d, v%d, 4, v%d' % (T+20, Gq, T+20))
    a('s_lshl_b32 s%d, s%d, 9' % (sT0, sW)); a('v_add_u32 v%d, s%d, v%d' % (T+20, sT0, T+20))
    a('v_and_b32 v%d, 3, v%d' % (T+21, LN_)); a('v_lshrrev_b32 v%d, 2, v%d' % (T+22, LN_)); a('v_lshlrev_b32 v%d, 4, v%d' % (T+22, T+22))
    a('s_lshl_b32 s%d, s%d, 7' % (sT0, sW)); a('v_add_u32 v%d, s%d, v%d' % (T+22, sT0, T+22))
    a('v_lshl_add_u32 v%d, v%d, 9, v%d' % (T+21, T+21, T+22))
    A5 = [AB[0], AB[1], T, T+4, T+8]
    a('s_waitcnt lgkmcnt(3)')
    for t in range(5): perms(A5[t], XV+t, SLO)
    for t in range(5):
        wait('wq%d' % t); mfma(ACA, A5[t], WQ+4*t, t == 0); pt('q%d' % t)
    wait('E')
    a('s_mov_b32 s%d, 1664525' % sT0)
    a('v_mul_lo_u32 v%d, v%d, s%d' % (NON, NON, sT0))
    a('v_add_u32 v%d, 1013904223, v%d' % (NON, NON))
    if qnib: qnon(T+4, 2)
    a('s_mov_b32 exec_hi, 0')
    if not qnib: a('s_nop 3')
    a('ds_write_b128 v%d, %s offset:%d' % (T+20, v4(ACA), QP))
    a('s_waitcnt lgkmcnt(0)')
    stamp('qpart')
    a('s_barrier')
    a('ds_read_b128 %s, v%d offset:%d' % (v4(T), T+21, QP))
    a('s_waitcnt lgkmcnt(0)')
    for ctl in (X1c, X2c):
        for j in range(4): dpp('v_add_f32', T+j, T+j, T+j, ctl)
    a('s_mov_b32 exec_lo, 0x11111111')
    qtag(T, T+4) if qnib else tag(T)
    ld('sq', 'buffer_store_dwordx4 %s, v%d, %s, s%d offen' % (v4(T), T+22, srd(sWS), sR0))
    a('s_mov_b64 exec, -1')
    stamp('qpub')
    first, rest = post_a.split('|') if '|' in post_a else ('', post_a)
    items(first)
    for t in range(3): perms(WQ+4*t, XW+t, SLO)
    if qnib: qnon(NQ, 0)
    ACH = WQ + 12
    a('s_lshl_b32 s%d, s%d, 10' % (sCNT, sW)); a('v_add_u32 v%d, s%d, v%d' % (T+14, sCNT, AX4))
    a('s_mov_b32 s%d, 0' % sNF)
    a('v_lshlrev_b32 v%d, 3, v%d' % (T+20, LN_))
    a('v_lshlrev_b32 v%d, 4, v%d' % (T+21, M))
    items(rest)
    def mirror(label, both, final=False):
        GA, GB = XV, X4
        a('s_mov_b32 s%d, %d' % (sW1O, SPIN))
        lab(label)
        ex(0xffffffff, 0)
        a('buffer_load_dwordx4 %s, v%d, %s, s%d offen %s' % (v4(GA), AX4, srd(sWS), sR0, pl))
        if both:
            a('s_mov_b32 exec_hi, 0x00ffffff')
            a('buffer_load_dwordx4 %s, v%d, %s, s%d offen %s' % (v4(GB), AX4, srd(sWS), sR1, pl))
        a('s_sub_u32 s%d, s%d, 1' % (sW1O, sW1O)); a('s_cbranch_scc1 %s_y' % label)
        a('s_waitcnt vmcnt(0)')
        if both:
            tagcheck(GB); a('s_cbranch_vccnz %s' % label); a('s_mov_b32 exec_hi, 0')
        qcheck(GA); a('s_cbranch_vccnz %s' % label)
        lab(label + '_y')
        if final and clean:
            a('buffer_store_dwordx4 %s, v%d, %s, s%d offen sc1' % (v4(GA), AX4, srd(sWS), sR0))
            a('s_cmp_ge_u32 s%d, s%d' % (sS, sIDLE)); a('s_cbranch_scc1 %s_z' % label)
            a('s_mov_b32 exec_hi, 0x00ffffff')
            a('buffer_store_dwordx4 %s, v%d, %s, s%d offen sc1' % (v4(GB), AX4, srd(sWS), sR1))
            a('s_mov_b32 exec_hi, 0')
            lab(label + '_z')
            a('s_cmp_eq_u64 s[22:23], 0'); a('s_cbranch_scc1 L_done')
        a('s_add_u32 s%d, s%d, %d' % (sW1O, sR0, RB))
        a('buffer_store_dwordx4 %s, v%d, %s, s%d offen sc1' % (v4(GA), AX4, srd(sWS), sW1O))
        if both:
            a('s_mov_b32 exec_hi, 0x00ffffff'); a('s_add_u32 s%d, s%d, %d' % (sKVO2, sR1, RB))
            a('buffer_store_dwordx4 %s, v%d, %s, s%d offen sc1' % (v4(GB), AX4, srd(sWS), sKVO2))
        a('s_mov_b64 exec, -1')
    def slow(label, loads, both, out, nfast=nfast):
        def rd(flag, soff):
            for G, ad, off in loads: a('buffer_load_dwordx4 %s, v%d, %s, %s offen offset:%d %s' % (v4(G), ad, srd(sWS), soff, off, flag))
            for k, (G, ad, off) in enumerate(loads):
                a('s_waitcnt vmcnt(%d)' % (len(loads) - 1 - k)); (tagcheck if both else qcheck)(G, 'vcc' if k == len(loads) - 1 else 's[4:5]')
            if len(loads) > 1: a('s_nop 0'); a('s_or_b64 vcc, vcc, s[4:5]')
        a('s_mov_b32 s%d, %d' % (sCNT, SPIN)); a('s_mov_b32 s%d, %d' % (sQO, RB))
        lab(label)
        rd(pl, '0')
        a('s_cbranch_vccz %s' % out)
        a('s_sub_u32 s%d, s%d, 1' % (sCNT, sCNT)); a('s_cbranch_scc1 %s' % out)
        a('s_cmp_gt_u32 s%d, %d' % (sCNT, SPIN - nfast)); a('s_cbranch_scc1 %s' % label)
        a('s_cmp_lt_u32 s%d, %d' % (sCNT, SPIN - nfast)); a('s_cbranch_scc1 %s_b' % label)
        mirror(label + '_m', both)
        lab(label + '_b')
        rd('sc1', 's%d' % sQO)
        a('s_cbranch_vccnz %s' % label)
        a('s_branch %s' % out)
    polls = [n for n in issued if n[0] == 'p']
    assert polls[0] == 'p0'
    wait('p0'); pt('p0'); qcheck(PQ)
    a('s_cbranch_vccnz L_q0')
    lab('L_qw')
    a('ds_write_b128 v%d, %s offset:%d' % (T+14, v4(PQ), QX))
    lab('L_qok')
    with cold():
        for j, n in enumerate(polls):
            if j:
                G = PQ + 4*int(n[1:])
                wait(n); pt('p%d' % j); qcheck(G)
                a('s_cbranch_vccnz L_q%d' % j)
                a('ds_write_b128 v%d, %s offset:%d' % (T+14, v4(G), QX))
                a('s_branch L_qok')
            lab('L_q%d' % j)
            a('s_mov_b32 s%d, %d' % (sNF, j+1))
        keep = issued[:]
        for nme in LATE: items(pts.get(nme, ''))
        del issued[:]; issued.extend(keep)
        a('s_mov_b32 s%d, 9' % sNF)
        slow('L_qs', [(PQ, AP0, 0)], False, 'L_qw')
    stamp('qok')
    vstamp(sNF, 0, '-nf')
    a('s_waitcnt lgkmcnt(0)')
    a('s_barrier')
    for k in range(8): a('ds_read_b64 %s, v%d offset:%d' % (v2(T+2*k), T+20, QX + 512*k))
    for j in range(1, len(polls)):
        if pts.get('p%d' % j):
            a('s_cmp_ge_u32 s%d, %d' % (sNF, j)); a('s_cbranch_scc1 L_skipf%d' % j)
            keep = issued[:]; pt('p%d' % j); del issued[:]; issued.extend(keep)
            lab('L_skipf%d' % j)
    pt('b')
    a('s_waitcnt lgkmcnt(6)'); a('v_pk_add_f32 %s, %s, %s' % (v2(T), v2(T), v2(T+2)))
    a('s_waitcnt lgkmcnt(4)'); a('v_pk_add_f32 %s, %s, %s' % (v2(T+4), v2(T+4), v2(T+6)))
    a('s_waitcnt lgkmcnt(2)'); a('v_pk_add_f32 %s, %s, %s' % (v2(T+8), v2(T+8), v2(T+10)))
    a('v_pk_add_f32 %s, %s, %s' % (v2(T), v2(T), v2(T+4)))
    a('s_waitcnt lgkmcnt(0)'); a('v_pk_add_f32 %s, %s, %s' % (v2(T+12), v2(T+12), v2(T+14)))
    a('v_pk_add_f32 %s, %s, %s' % (v2(T+8), v2(T+8), v2(T+12)))
    a('v_pk_add_f32 %s, %s, %s' % (v2(T), v2(T), v2(T+8)))
    cvt(T, T, T+1)
    a('ds_write_b32 v%d, v%d offset:%d' % (AX1, T, QB))
    a('s_waitcnt lgkmcnt(0)')
    Q4 = T+16
    a('ds_read_b128 %s, v%d offset:%d' % (v4(Q4), T+21, QB))
    pt('qs')
    wait('k7', ' lgkmcnt(0)')
    S8 = T
    for d in range(4):
        for i in range(8):
            a('v_dot2_f32_bf16 v%d, v%d, v%d, %s' % (S8+i, KK+4*i+d, Q4+d, ('v%d' % (S8+i)) if d else '0'))
    S = T+8
    pt('dot')
    for k in range(4): dpp('v_add_f32', S+k, S8+k, S8+k, 'row_ror:8', bm=0x3)
    for k in range(4): dpp('v_add_f32', S+k, S8+4+k, S8+4+k, 'row_ror:8', bm=0xc)
    for ctl in (HM, X2c, X1c):
        for k in range(4): dpp('v_add_f32', S+k, S+k, S+k, ctl)
    P = T+4
    cvt(P, S, S+1); cvt(P+1, S+2, S+3)
    unpack(S, P); unpack(S+2, P+1)
    for i in range(4): a('v_mul_f32 v%d, %s, v%d' % (S+i, f32(128 ** -0.5), S+i))
    cvt(P, S, S+1); cvt(P+1, S+2, S+3)
    unpack(S, P); unpack(S+2, P+1)
    MX, TM, LS = T+23, T+14, T+13
    a('v_max3_f32 v%d, v%d, v%d, v%d' % (MX, S, S+1, S+2)); a('v_max_f32 v%d, v%d, v%d' % (MX, MX, S+3))
    def xrow(r, op):
        a('s_nop 1'); dpp(op, r, r, r, 'row_ror:8')
        for sw in ('v_permlane16_swap_b32', 'v_permlane32_swap_b32'):
            a('v_mov_b32 v%d, v%d' % (TM, r)); a('s_nop 1'); a('%s v%d, v%d' % (sw, r, TM)); a('%s v%d, v%d, v%d' % (op, r, r, TM))
    xrow(MX, 'v_max_f32')
    a('s_lshl_b32 s%d, s%d, 2' % (sCNT, sW)); a('v_mov_b32 v%d, s%d' % (T+15, sCNT))
    a('ds_write_b32 v%d, v%d offset:%d' % (T+15, MX, ML))
    a('v_mov_b32 v%d, 0' % (T+22))
    pt('s')
    a('s_waitcnt lgkmcnt(0)')
    a('s_barrier')
    a('ds_read_b128 %s, v%d offset:%d' % (v4(T), T+22, ML))
    a('s_waitcnt lgkmcnt(0)')
    a('v_max3_f32 v%d, v%d, v%d, v%d' % (MX, T, T+1, T+2)); a('v_max_f32 v%d, v%d, v%d' % (MX, MX, T+3))
    a('v_mul_f32 v%d, %s, v%d' % (T+17, f32(-LOG2E), MX))
    for i in range(4): a('v_fma_f32 v%d, v%d, s%d, v%d' % (S+i, S+i, sLG, T+17))
    for i in range(4): a('v_exp_f32 v%d, v%d' % (S+i, S+i))
    a('s_nop 0')
    cvt(P, S, S+1); cvt(P+1, S+2, S+3)
    a('v_add_f32 v%d, v%d, v%d' % (LS, S, S+1)); a('v_add_f32 v%d, v%d, v%d' % (T+17, S+2, S+3)); a('v_add_f32 v%d, v%d, v%d' % (LS, LS, T+17))
    pt('e')
    stamp('exp')
    A4 = [AB[0], AB[1], T, T+8]
    def dwrite(off):
        a('s_mov_b32 exec_hi, 0')
        a('ds_write_b128 v%d, %s offset:%d' % (LD, v4(ACA), off))
        a('s_mov_b32 exec_lo, 0'); a('s_mov_b32 exec_hi, -1')
        a('ds_write_b128 v%d, %s offset:%d' % (LD, v4(ACB), off))
        a('s_mov_b32 exec_lo, -1')
    perms(A4[0], P, SLO); perms(A4[1], P, SHI); perms(A4[2], P+1, SLO); perms(A4[3], P+1, SHI)
    xrow(LS, 'v_add_f32')
    a('ds_write_b32 v%d, v%d offset:%d' % (T+15, LS, ML+16))
    a('v_lshl_add_u32 v%d, v%d, 8, v%d' % (T+17, PART, AH))
    for t in range(3): wait('u%d' % t); mfma(ACH, WQ+4*t, W1+4*t, t == 0)
    a('s_cmp_eq_u32 s%d, 0' % sW); a('s_cselect_b32 s%d, 0x03030303, 0' % sCNT); a('s_or_b32 s%d, s%d, 0x01010101' % (sCNT, sCNT))
    a('s_nop 4')
    ex(0x00ff00ff, 0xff00ff00)
    a('ds_write_b128 v%d, %s offset:%d' % (LH, v4(ACH), HP))
    a('s_mov_b64 exec, -1')
    for i in range(8):
        wait('v%d' % i)
        mfma(ACA if i < 4 else ACB, A4[i & 3], VV+4*i, (i & 3) == 0)
        pt('pv%d' % i)
    a('s_mov_b32 exec_hi, 0'); a('s_nop 2')
    a('ds_write_b128 v%d, %s offset:%d' % (LD, v4(ACA), OP))
    a('s_mov_b32 exec_lo, 0'); a('s_mov_b32 exec_hi, -1'); a('s_nop 0')
    a('ds_write_b128 v%d, %s offset:%d' % (LD, v4(ACB), OP))
    a('s_mov_b32 exec_lo, -1')
    a('s_cmp_ge_u32 s%d, s%d' % (sS, sIDLE))
    a('s_waitcnt lgkmcnt(0)')
    stamp('pv')
    a('s_barrier')
    a('ds_read_b128 %s, v%d offset:%d' % (v4(T), LCB, OP))
    a('ds_read_b128 %s, v%d offset:%d' % (v4(AB[0]), T+22, ML+16))
    a('ds_read_b128 %s, v%d offset:%d' % (v4(AB[1]), T+17, HP))
    a('s_waitcnt lgkmcnt(2)')
    for j in range(4): dpp('v_add_f32', T+j, T+j, T+j, X1c)
    a('s_waitcnt lgkmcnt(1)')
    a('v_add_f32 v%d, v%d, v%d' % (AB[0], AB[0], AB[0]+1)); a('v_add_f32 v%d, v%d, v%d' % (AB[0]+2, AB[0]+2, AB[0]+3))
    for ctl in (X2c, HM):
        for j in range(4): dpp('v_add_f32', T+j, T+j, T+j, ctl)
    ex(0x02020202)
    a('v_mov_b32 v%d, v%d' % (T, MX)); a('v_add_f32 v%d, v%d, v%d' % (T+1, AB[0], AB[0]+2)); a('v_mov_b32 v%d, s%d' % (T+2, sXC))
    a('s_mov_b32 exec_lo, s%d' % sCNT); a('s_mov_b32 exec_hi, s%d' % sCNT)
    tag(T)
    if clean:
        a('s_cbranch_scc1 L_so1')
    ld('so', 'buffer_store_dwordx4 %s, v%d, %s, s%d offen' % (v4(T), AOS, srd(sWS), sR1))
    if clean:
        lab('L_so2')
        txt = L[-2]
        with cold():
            lab('L_so1'); cur[0].append(txt + ' sc1'); a('s_branch L_so2')
    a('s_mov_b64 exec, -1')
    stamp('opub')
    pt('o')
    a('s_waitcnt lgkmcnt(0)')
    for ctl in (X1c, X2c, HM):
        for j in range(4): dpp('v_add_f32', AB[1]+j, AB[1]+j, AB[1]+j, ctl)
    ex(0x01010101, 0)
    tag(AB[1])
    if clean:
        a('s_cbranch_scc1 L_sh1')
    ld('sh', 'buffer_store_dwordx4 %s, v%d, %s, s%d offen offset:512' % (v4(AB[1]), AH, srd(sWS), sR1))
    if clean:
        lab('L_sh2')
        txt = L[-2]
        with cold():
            lab('L_sh1'); cur[0].append(txt + ' sc1'); a('s_branch L_sh2')
    a('s_mov_b64 exec, -1')
    a('s_cbranch_scc1 L_red')
    a('s_sub_u32 s%d, s%d, 5' % (sT0, sS)); a('s_cmp_lt_u32 s%d, 2' % sT0)
    a('s_cselect_b32 s%d, 0x10101010, 0' % sNF); a('s_or_b32 s%d, s%d, 0x01010101' % (sNF, sNF))
    if tight1:
        items(post_o.replace('r0', ''))
        a('s_movk_i32 s%d, %d' % (sCNT, nfast))
        a('s_branch L_t1') if False else None
        lab('L_t1')
        a('buffer_load_dwordx4 %s, v%d, %s, 0 offen offset:768 %s' % (v4(Gm), AML, srd(sWS), pl))
        a('buffer_load_dwordx4 %s, v%d, %s, 0 offen %s' % (v4(Gd), AP1, srd(sWS), pl))
        a('s_sub_u32 s%d, s%d, 1' % (sCNT, sCNT)); a('s_cbranch_scc1 L_p1s')
        a('s_waitcnt vmcnt(1)'); tagcheck(Gm, 's[4:5]')
        a('v_and_b32 v%d, 0xffff0000, v%d' % (T+15, Gm))
        a('s_waitcnt vmcnt(0)'); tagcheck(Gd)
        a('s_or_b64 vcc, vcc, s[4:5]')
        a('s_cbranch_vccnz L_t1')
        lab('L_p1x')
        with cold():
            lab('L_p1s')
            a('s_waitcnt vmcnt(0)')
            slow('L_p1', [(Gm, AML, 768), (Gd, AP1, 0)], True, 'L_p1y', 1)
            lab('L_p1y')
            a('v_and_b32 v%d, 0xffff0000, v%d' % (T+15, Gm))
            a('s_nop 0')
            a('s_branch L_p1x')
        issued.extend(['r0m', 'r0'])
    else:
        items(post_o)
        wait('r0m'); tagcheck(Gm, 's[4:5]')
        wait('r0'); tagcheck(Gd)
        a('v_and_b32 v%d, 0xffff0000, v%d' % (T+15, Gm))
        a('s_or_b64 vcc, vcc, s[4:5]')
        a('s_cbranch_vccnz L_p1s')
        lab('L_p1x')
        with cold():
            lab('L_p1s')
            for j in (1, 2):
                if 'r%d' % j in issued:
                    gd, gm = [(Gd, Gm), (PQ, PQ+4), (PQ+8, PQ+12)][j]
                    wait('r%dm' % j); tagcheck(gm, 's[4:5]')
                    wait('r%d' % j); tagcheck(gd)
                    a('s_nop 0'); a('s_or_b64 vcc, vcc, s[4:5]')
                    a('s_cbranch_vccnz L_r%d' % j)
                    for k in range(4): a('v_mov_b32 v%d, v%d' % (Gd+k, gd+k))
                    for k in range(3): a('v_mov_b32 v%d, v%d' % (Gm+k, gm+k))
                    a('s_branch L_p1y')
                    lab('L_r%d' % j)
            slow('L_p1', [(Gm, AML, 768), (Gd, AP1, 0)], True, 'L_p1y')
            lab('L_p1y')
            a('v_and_b32 v%d, 0xffff0000, v%d' % (T+15, Gm))
            a('s_nop 0')
            a('s_branch L_p1x')
    stamp('p1')
    a('s_cmp_ge_u32 s%d, 5' % sS); a('s_cbranch_scc1 L_hpath')
    def ftail(third, sfx):
        cvt(P, Gd, Gd+1); cvt(P+1, Gd+2, Gd+3)
        perms(A4[0], P, SLO); perms(A4[1], P, SHI)
        wait('f7')
        mfma(ACA, A4[0], FF, True); mfma(ACB, A4[0], FF+16, True)
        perms(A4[2], P+1, SLO)
        mfma(ACA, A4[1], FF+4, False); mfma(ACB, A4[1], FF+20, False)
        perms(A4[3], P+1, SHI)
        mfma(ACA, A4[2], FF+8, False); mfma(ACB, A4[2], FF+24, False)
        mfma(ACA, A4[3], FF+12, False); mfma(ACB, A4[3], FF+28, False)
        a('v_and_b32 v%d, 0xffffff00, v%d' % (Gm+2, Gm+2))
        a('v_cmp_ne_u32 s[22:23], s%d, v%d' % (sXC, Gm+2))
        a('s_nop 3')
        dwrite(FP)
        a('s_waitcnt lgkmcnt(0)')
        stamp('fmm')
        a('s_barrier')
        a('ds_read_b128 %s, v%d offset:%d' % (v4(T), LCB, FP))
        a('s_cmp_eq_u64 s[22:23], 0')
        a('s_waitcnt lgkmcnt(0)')
        for ctl in (X1c, X2c) + ((HM,) if third else ()):
            for j in range(4): dpp('v_add_f32', T+j, T+j, T+j, ctl)
        a('s_mov_b32 exec_lo, s%d' % sNF); a('s_mov_b32 exec_hi, s%d' % sNF)
        tag(T)
        a('buffer_store_dwordx4 %s, v%d, %s, s%d offen sc1' % (v4(T), AFS, srd(sWS), sREC))
        stamp('fpub')
        if stamps and probe is None and 'ack' not in skip: a('s_waitcnt vmcnt(0)'); stamp('ack')
        if spread and not third:
            a('s_cbranch_scc0 L_em')
            a('s_lshl_b32 s%d, s%d, 2' % (sT0, sS)); a('s_add_u32 s%d, s%d, s%d' % (sT0, sT0, sW))
            a('s_cmp_lg_u32 s%d, 30' % sT0); a('s_cbranch_scc1 L_done')
            a('s_mov_b64 exec, -1')
            a('s_mov_b32 s%d, s%d' % (sREC, sH)); a('s_branch L_red3')
        elif clean:
            a('s_cbranch_scc0 L_em')
            a('s_cmp_eq_u32 s%d, 3' % sW); a('s_cbranch_scc1 L_em')
            a('s_branch L_done') if stamps or probe is not None else a('s_endpgm')
        elif stamps or probe is not None:
            a('s_cbranch_scc1 L_done'); a('s_branch L_em')
        else:
            a('s_cbranch_scc0 L_em'); a('s_endpgm')
    Mp, Mx, Wt = T+15, T+13, T+14
    dpp('v_max_f32', Mx, Mp, Mp, X1c)
    a('s_nop 1'); dpp('v_max_f32', Mx, Mx, Mx, X2c)
    a('s_nop 1'); dpp('v_max_f32', Mx, Mx, Mx, HM)
    a('v_sub_f32 v%d, v%d, v%d' % (Wt, Mp, Mx)); a('v_mul_f32 v%d, s%d, v%d' % (Wt, sLG, Wt)); a('v_exp_f32 v%d, v%d' % (Wt, Wt))
    a('s_nop 0')
    a('v_mul_f32 v%d, v%d, v%d' % (Mx, Wt, Gm+1))
    for j in range(4): a('v_mul_f32 v%d, v%d, v%d' % (Gd+j, Wt, Gd+j))
    for ctl in (X1c, X2c):
        dpp('v_add_f32', Mx, Mx, Mx, ctl)
        for j in range(4): dpp('v_add_f32', Gd+j, Gd+j, Gd+j, ctl)
    dpp('v_add_f32', Mx, Mx, Mx, HM)
    a('v_rcp_f32 v%d, v%d' % (Mx, Mx))
    for j in range(4): dpp('v_add_f32', Gd+j, Gd+j, Gd+j, HM)
    for j in range(4): a('v_mul_f32 v%d, v%d, v%d' % (Gd+j, Mx, Gd+j))
    ftail(True, 'a')
    lab('L_hpath')
    for ctl in (X1c, X2c, HM):
        for j in range(4): dpp('v_add_f32', Gd+j, Gd+j, Gd+j, ctl)
    cvt(P, Gd, Gd+1); cvt(P+1, Gd+2, Gd+3)
    unpack(Gd, P); unpack(Gd+2, P+1)
    for j in range(4): a('v_mul_f32 v%d, %s, v%d' % (T+12+j, f32(-LOG2E), Gd+j))
    for j in range(4): a('v_exp_f32 v%d, v%d' % (T+12+j, T+12+j))
    for j in range(4): a('v_add_f32 v%d, 1.0, v%d' % (T+12+j, T+12+j))
    for j in range(4): a('v_rcp_f32 v%d, v%d' % (T+12+j, T+12+j))
    for j in range(4): a('v_mul_f32 v%d, v%d, v%d' % (Gd+j, Gd+j, T+12+j))
    ftail(False, 'b')
    lab('L_red')
    XA, XB, AO, AP2, XF = 72, 73, 74, 75, 76
    a('s_mov_b64 s[22:23], -1')
    a('s_cmp_eq_u32 s%d, 3' % sW); a('s_cbranch_scc1 L_em')
    lab('L_red2')
    a('s_sub_u32 s%d, s%d, 5' % (sQO, sS)); a('s_mul_i32 s%d, s%d, 5' % (sQO, sQO)); a('s_add_u32 s%d, s%d, s%d' % (sQO, sQO, sH)); a('s_sub_u32 s%d, s%d, 27' % (sQO, sQO))
    if spread:
        a('s_cmp_lg_u32 s%d, 0' % sW); a('s_cbranch_scc1 L_done')
        a('s_add_u32 s%d, s%d, 27' % (sREC, sQO))
    else:
        a('s_mul_i32 s%d, s%d, %d' % (sQO, sQO, 4 if r4 else 3)); a('s_add_u32 s%d, s%d, s%d' % (sREC, sQO, sW))
    a('s_cmp_ge_u32 s%d, 40' % sREC); a('s_cbranch_scc1 L_done')
    lab('L_red3')
    base(sOUT, 20); size(sOUT, 1280)
    a('v_and_b32 v%d, 3, v%d' % (T+2, LN_)); a('v_lshrrev_b32 v%d, 2, v%d' % (T+3, LN_))
    a('v_lshlrev_b32 v%d, 7, v%d' % (AP2, T+3)); a('v_lshl_add_u32 v%d, v%d, 4, v%d' % (AP2, T+2, AP2))
    a('s_lshl_b32 s%d, s%d, 13' % (sQO, sREC)); a('s_add_u32 s%d, s%d, %d' % (sQO, sQO, R2)); a('v_add_u32 v%d, s%d, v%d' % (AP2, sQO, AP2))
    a('s_lshl_b32 s%d, s%d, 5' % (sQO, sREC)); a('v_lshl_add_u32 v%d, v%d, 3, s%d' % (AO, T+2, sQO))
    a('buffer_load_dwordx2 %s, v%d, %s, 0 offen' % (v2(XF), AO, srd(sX)))
    if otouch: a('buffer_load_dword v%d, v%d, %s, 0 offen %s' % (TCH, AO, srd(sOUT), otouch if isinstance(otouch, str) else ''))
    a('v_and_b32 v%d, 1, v%d' % (T+4, Gq)); a('v_lshl_add_u32 v%d, v%d, 1, v%d' % (AO, T+4, AO))
    a('v_lshlrev_b32 v%d, 4, v%d' % (T+4, T+4)); a('v_sub_u32 v%d, 16, v%d' % (T+4, T+4))
    for j in range(12, 16): a('v_mov_b32 v%d, 0' % (KK+j))
    a('s_waitcnt vmcnt(0)')
    a('v_lshlrev_b32 v%d, v%d, v%d' % (XA, T+4, XF)); a('v_lshlrev_b32 v%d, v%d, v%d' % (XB, T+4, XF+1))
    a('v_and_b32 v%d, 0xffff0000, v%d' % (XA, XA)); a('v_and_b32 v%d, 0xffff0000, v%d' % (XB, XB))
    if delay2: a('s_sleep %d' % delay2)
    PM = [32, 34, 36, 38]
    for j in range(3): a('s_mov_b64 s[%d:%d], -1' % (PM[j], PM[j]+1))
    a('s_mov_b32 s%d, -1' % PM[3]); a('s_mov_b32 s%d, 0xfff' % (PM[3]+1))
    a('s_mov_b32 s%d, %d' % (sCNT, SPIN))
    a('s_movk_i32 s%d, 4096' % sQO)
    if depth2 == 1:
        lab('L_p2')
        for j in range(4):
            a('s_mov_b64 exec, s[%d:%d]' % (PM[j], PM[j]+1)); a('s_cbranch_execz L_p2s%d' % j)
            a('buffer_load_dwordx4 %s, v%d, %s, %s offen offset:%d sc1' % (v4(KK+4*j), AP2, srd(sWS), ('s%d' % sQO) if j >= 2 else '0', 2048*(j & 1)))
            lab('L_p2s%d' % j)
        stamp('lastiss')
        a('s_sub_u32 s%d, s%d, 1' % (sCNT, sCNT)); a('s_cbranch_scc1 L_p2x')
        a('s_waitcnt vmcnt(0)')
        for j in range(4):
            a('s_mov_b64 exec, s[%d:%d]' % (PM[j], PM[j]+1))
            tagcheck(KK+4*j, 's[%d:%d]' % (PM[j], PM[j]+1))
        a('s_or_b64 s[4:5], s[%d:%d], s[%d:%d]' % (PM[0], PM[0]+1, PM[1], PM[1]+1)); a('s_or_b64 s[4:5], s[4:5], s[%d:%d]' % (PM[2], PM[2]+1))
        a('s_or_b64 s[4:5], s[4:5], s[%d:%d]' % (PM[3], PM[3]+1))
        if backoff2:
            a('s_cbranch_scc0 L_p2x'); a('s_sleep %d' % backoff2); a('s_branch L_p2')
        else:
            a('s_cbranch_scc1 L_p2')
    else:
        SETS = [VV + 16*k for k in range(depth2)]
        def issue(G):
            for j in range(4):
                a('s_or_b64 exec, s[%d:%d], 1' % (PM[j], PM[j]+1))
                a('buffer_load_dwordx4 %s, v%d, %s, %s offen offset:%d sc1' % (v4(G+4*j), AP2, srd(sWS), ('s%d' % sQO) if j >= 2 else '0', 2048*(j & 1)))
        for k in range(depth2 - 1):
            issue(SETS[k]); a('s_sleep %d' % gap2)
        lab('L_p2')
        for k in range(depth2):
            issue(SETS[(k + depth2 - 1) % depth2])
            stamp('lastiss')
            a('s_waitcnt vmcnt(%d)' % (4*(depth2 - 1)))
            G = SETS[k]
            for j in range(4):
                a('s_mov_b64 exec, s[%d:%d]' % (PM[j], PM[j]+1)); a('s_cbranch_execz L_p2c%d_%d' % (k, j))
                tagcheck(G+4*j, 's[%d:%d]' % (PM[j], PM[j]+1))
                for c in range(4): a('v_mov_b32 v%d, v%d' % (KK+4*j+c, G+4*j+c))
                lab('L_p2c%d_%d' % (k, j))
            a('s_or_b64 s[4:5], s[%d:%d], s[%d:%d]' % (PM[0], PM[0]+1, PM[1], PM[1]+1)); a('s_or_b64 s[4:5], s[4:5], s[%d:%d]' % (PM[2], PM[2]+1))
            a('s_or_b64 s[4:5], s[4:5], s[%d:%d]' % (PM[3], PM[3]+1))
            a('s_cbranch_scc0 L_p2x')
        a('s_sub_u32 s%d, s%d, 1' % (sCNT, sCNT)); a('s_cbranch_scc0 L_p2')
    lab('L_p2x')
    stamp('p2')
    a('s_mov_b64 exec, -1')
    A_, B_ = KK, KK+8
    for j in range(4): a('v_add_f32 v%d, v%d, v%d' % (A_+j, A_+j, A_+4+j))
    for j in range(4): a('v_add_f32 v%d, v%d, v%d' % (B_+j, B_+j, B_+4+j))
    for j in range(4): a('v_permlane32_swap_b32 v%d, v%d' % (A_+j, B_+j))
    for j in range(4): a('v_add_f32 v%d, v%d, v%d' % (A_+j, A_+j, B_+j))
    a('v_permlane16_swap_b32 v%d, v%d' % (A_, A_+1)); a('s_nop 0'); a('v_permlane16_swap_b32 v%d, v%d' % (A_+2, A_+3))
    a('v_add_f32 v%d, v%d, v%d' % (A_, A_, A_+1)); a('v_add_f32 v%d, v%d, v%d' % (A_+2, A_+2, A_+3))
    for k in (4, 8):
        a('s_nop 0'); dpp('v_add_f32', A_, A_, A_, 'row_ror:%d' % k); dpp('v_add_f32', A_+2, A_+2, A_+2, 'row_ror:%d' % k)
    cvt(A_, A_, A_+2); a('v_mov_b32 v%d, v%d' % (A_+1, A_))
    a('s_nop 1')
    a('v_permlane32_swap_b32 v%d, v%d' % (A_, A_+1))
    unpack(B_, A_); unpack(B_+2, A_+1)
    a('v_add_f32 v%d, v%d, v%d' % (B_, B_, XA)); a('v_add_f32 v%d, v%d, v%d' % (B_+1, B_+1, XB))
    cvt(A_, B_, B_+1); unpack(B_, A_)
    a('v_add_f32 v%d, v%d, v%d' % (B_, B_, B_+2)); a('v_add_f32 v%d, v%d, v%d' % (B_+1, B_+1, B_+3))
    cvt(A_, B_, B_+1)
    if clean:
        a('s_mov_b32 s%d, 0x05040100' % sT0); a('s_mov_b32 s%d, 0x07060302' % sT1)
        a('v_permlane16_swap_b32 v%d, v%d' % (A_, A_+1))
        a('s_mov_b64 exec, 15')
        a('v_perm_b32 v%d, v%d, v%d, s%d' % (A_+2, A_+1, A_, sT0)); a('v_perm_b32 v%d, v%d, v%d, s%d' % (A_+3, A_+1, A_, sT1))
        a('buffer_store_dwordx2 %s, v%d, %s, 0 offen sc1' % (v2(A_+2), AO, srd(sOUT)))
    else:
        a('s_mov_b64 exec, 0x000f000f')
        a('buffer_store_short v%d, v%d, %s, 0 offen' % (A_, AO, srd(sOUT)))
        a('buffer_store_short_d16_hi v%d, v%d, %s, 0 offen offset:4' % (A_, AO, srd(sOUT)))
    a('s_cmp_lg_u32 s%d, 0' % sREC); a('s_cbranch_scc1 L_done')
    a('s_mov_b64 exec, 1')
    a('buffer_store_dword v%d, v%d, %s, 0 offen %s' % (NON, AO, srd(sWS), 'sc1' if clean else ''))
    a('s_branch L_done')
    L.extend(COLD)
    lab('L_em')
    mirror('L_emm', True, True)
    if r4:
        a('s_cmp_ge_u32 s%d, s%d' % (sS, sIDLE)); a('s_cbranch_scc1 L_red2')
    if spread:
        a('s_lshl_b32 s%d, s%d, 2' % (sT0, sS)); a('s_add_u32 s%d, s%d, s%d' % (sT0, sT0, sW))
        a('s_cmp_lg_u32 s%d, 30' % sT0); a('s_cbranch_scc1 L_done')
        a('s_mov_b32 s%d, s%d' % (sREC, sH)); a('s_branch L_red3')
    lab('L_done')
    if probe is not None:
        stamp('end')
        a('s_waitcnt vmcnt(0) lgkmcnt(0)')
        a('s_sub_u32 s76, s76, s74'); a('s_mul_i32 s76, s76, %d' % amp); a('s_add_u32 s76, s76, %d' % base_ticks)
        lab('L_spin')
        a('s_memrealtime s[78:79]'); a('s_waitcnt lgkmcnt(0)')
        a('s_sub_u32 s78, s78, s74'); a('s_cmp_lt_u32 s78, s76'); a('s_cbranch_scc1 L_spin')
    elif stamps:
        a('s_mov_b64 exec, -1')
        stamp('pend')
        a('s_waitcnt vmcnt(0)')
        stamp('end')
        a('s_waitcnt vmcnt(0) lgkmcnt(0)')
        a('v_mov_b32 v%d, 0' % T)
        for j, r in enumerate(st): a('v_writelane_b32 v%d, s%d, %d' % (T, r, j))
        a('s_mul_i32 s3, s2, 4'); a('s_add_u32 s3, s3, s%d' % sW); a('s_lshl_b32 s3, s3, 8'); a('s_add_u32 s3, s3, 0x8000000')
        a('buffer_store_dword v%d, v%d, %s, s3 offen' % (T, AX1, srd(sWS)))
    lab('L_end')
    a('s_endpgm')
    L += ['.section .rodata,"a"', '.p2align 6', '.amdhsa_kernel %s_kernel' % NAME,
          '  .amdhsa_next_free_vgpr %d' % NV, '  .amdhsa_next_free_sgpr 102', '  .amdhsa_accum_offset %d' % ((NV+3)//4*4),
          '  .amdhsa_group_segment_fixed_size 0', '  .amdhsa_kernarg_size 88', '  .amdhsa_user_sgpr_count 2',
          '  .amdhsa_user_sgpr_kernarg_segment_ptr 1', '  .amdhsa_system_sgpr_workgroup_id_x 1', '.end_amdhsa_kernel']
    if stamps and probe is None: L.insert(1, '; STAMPS ' + ' '.join(names))
    return '\n'.join(L) + '\n', names

def emit(name, probes=(), **kw):
    for sfx, extra in [('', {}), ('_s', dict(stamps=True))] + [('_p' + p, dict(probe=p)) for p in probes]:
        s, ns = gen(**kw, **extra); open(name + sfx + '.s', 'w').write(s)
        e = check(s)
        if e: print(name + sfx, 'HAZARDS'); [print('  ', x) for x in e]
```

```python
import sys, struct
from hazcheck import check
NAME = 'parallel_sum__sliding_block_cached__dense_activation_silu__decode'
HDR = open('cdna_kernels/%s.s.ref' % NAME).read().split('; Override launch')[0]
def f32(x): return '0x%08x' % struct.unpack('<I', struct.pack('<f', x))[0]
LOG2E = 1.4426950408889634
XN, QP, HP, QB, OP, ML, FP, QX = 0, 1280, 3328, 5376, 5632, 9728, 9792, 13888
LDS_BYTES = 83968
R0 = 4096
R1 = R0 + 256*512
R2 = R1 + 256*1024
RB = 1 << 20
SPIN = 1 << 18

def gen(stamps=False, flags='nt', wflags='nt', qflags=None, probe=None, amp=10, base_ticks=5000, lds=LDS_BYTES,
        kpts=(1, 2, 1, 0), post_a=None, pts=None, post_o='Wf5 r0', nfast=16, backoff2=0, delay2=0, skip=(), fence0=True, stream=None, tflags='', t0=True, kmap=None, kx=None, qmap=0, spread=False, tight1=False, depth2=1, gap2=2, karg2=False, adapt=None, qnib=True, clean=False, otouch=False, r4=False, eflags='', xflags='', pflags='', pl='nt', swaps=(), tlb=0, tlbd=0, hmap=0, p2f='sc1', wbl=False, wmax=False):
    qflags = wflags if qflags is None else qflags
    L = []; COLD = []
    cur = [L]
    def a(s): cur[0].append('  ' + s)
    def lab(s): cur[0].append(s + ':')
    class cold:
        def __enter__(self): cur[0] = COLD
        def __exit__(self, *x): cur[0] = L
    st = []; names = []; pool = list(range(74, 95, 2)) + [12, 14, 16, 18, 0]; cnt = [0]; slot = {}
    def stamp(name=''):
        k = cnt[0]; cnt[0] += 1
        if probe is not None:
            if k == 0: a('s_memrealtime s[74:75]')
            elif name == probe: a('s_memrealtime s[76:77]')
        elif stamps and name not in skip:
            if name not in slot: slot[name] = pool.pop(0); st.append(slot[name]); names.append(name)
            r = slot[name]; a('s_memrealtime s[%d:%d]' % (r, r+1))
    def vstamp(reg, neg, name):
        if stamps and probe is None and name not in skip:
            r = pool.pop(0)
            a('s_sub_u32 s%d, %d, s%d' % (r, neg, reg))
            a('s_mul_i32 s%d, s%d, 100' % (r, r)); a('s_waitcnt lgkmcnt(0)'); a('s_add_u32 s%d, s%d, s74' % (r, r)); st.append(r); names.append(name)
    L.append(HDR.rstrip())
    L.append('; @launch grid=(256,1,1) block=(%d,1,1) lds=%d' % (320 if tlb else 256, lds))
    L.append('.amdgcn_target "amdgcn-amd-amdhsa--gfx950"'); L.append('.text')
    L.append('.globl %s_kernel' % NAME); L.append('.p2align 8'); L.append('.type %s_kernel,@function' % NAME)
    lab('%s_kernel' % NAME)
    M, Gq, LN_, AWQ, AKV, AF, AW1, AX4, AX1, LXQ, LXW, LD, LH, AP1, NON = range(1, 16)
    SLO, SHI = 16, 20
    ACA, ACB = 24, 28
    AB = [32, 36]
    T = 40
    X4, X1 = 64, 68
    XV, XW = 72, 77
    AP0, AML, PART, C16, LCB, AFS, AOS, AH, TCH, ATC, PRE = range(80, 91)
    WQ, W1, KK, VV, FF = 96, 116, 128, 160, 192
    PQ = 224
    NV = 240
    sH, sS, sW = 24, 25, 26
    sX, sK, sV, sWQ, sW1, sF, sWS, sOUT, sW1b = 28, 32, 36, 40, 44, 48, 52, 56, 60
    sQO, sKVO, sFO, sW1O, sT0, sT1, sLG, sCNT, sKVO2, sFO2, sREC, sNF = 64, 65, 66, 67, 68, 69, 27, 3, 70, 71, 72, 73
    sR0, sR1, sXC, sIDLE = 100, 101, 99, 98
    sTG, sCK = 6, 10
    sHM, sHS = 97, 96
    srd = lambda r: 's[%d:%d]' % (r, r+3)
    v4 = lambda r: 'v[%d:%d]' % (r, r+3)
    v2 = lambda r: 'v[%d:%d]' % (r, r+1)
    dpp = lambda op, d, s0, s1, ctl, bm=0xf, rm=0xf: a('%s_dpp v%d, v%d, v%d %s row_mask:0x%x bank_mask:0x%x' % (op, d, s0, s1, ctl, rm, bm))
    X1c, X2c, HM = 'quad_perm:[1,0,3,2]', 'quad_perm:[2,3,0,1]', 'row_half_mirror'
    def ex(lo, hi=None):
        hi = lo if hi is None else hi
        a('s_mov_b32 exec_lo, 0x%x' % lo); a('s_mov_b32 exec_hi, 0x%x' % hi)
    def base(r, p): a('s_mov_b64 s[%d:%d], s[%d:%d]' % (r, r+1, p, p+1))
    def size(r, n): a('s_mov_b32 s%d, 0x%x' % (r+2, n)); a('s_mov_b32 s%d, 0x20000' % (r+3))
    def unpack(dst, src):
        a('v_lshlrev_b32 v%d, 16, v%d' % (dst, src)); a('v_and_b32 v%d, 0xffff0000, v%d' % (dst+1, src))
    def cvt(d, x, y): a('v_cvt_pk_bf16_f32 v%d, v%d, v%d' % (d, x, y))
    def rnd(r): cvt(r, r, r); a('v_and_b32 v%d, 0xffff0000, v%d' % (r, r))
    NQ = 92
    def qnon(dst, parity_bit):
        a('v_bfe_u32 v%d, v%d, %d, 1' % (dst, LN_, parity_bit)); a('v_lshlrev_b32 v%d, 4, v%d' % (dst, dst))
        a('v_lshrrev_b32 v%d, v%d, v%d' % (dst, dst, NON))
        for k in range(1, 4): a('v_lshrrev_b32 v%d, %d, v%d' % (dst+k, 4*k, dst))
    def qtag(r, nq):
        for k in range(4): a('v_bfi_b32 v%d, 15, v%d, v%d' % (r+k, nq+k, r+k))
    def qcheck(G, dst='vcc'):
        if not qnib: return tagcheck(G, dst)
        a('v_xor_b32 v%d, v%d, v%d' % (T+12, G, NQ))
        for k in range(1, 4): a('v_bitop3_b32 v%d, v%d, v%d, v%d bitop3:0xbe' % (T+12, G+k, NQ+k, T+12))
        a('v_and_b32 v%d, 15, v%d' % (T+12, T+12))
        a('v_cmp_ne_u32 %s, 0, v%d' % (dst, T+12))
    def tag(r):
        for k in range(4): a('v_perm_b32 v%d, v%d, v%d, s%d' % (r+k, r+k, NON, sTG+k))
    def tagcheck(G, dst='vcc'):
        a('v_perm_b32 v%d, v%d, v%d, s%d' % (T+12, G+1, G, sCK))
        a('v_perm_b32 v%d, v%d, v%d, s%d' % (T+13, G+3, G+2, sCK))
        a('v_perm_b32 v%d, v%d, v%d, s%d' % (T+12, T+13, T+12, sCK+1))
        a('v_cmp_ne_u32 %s, v%d, v%d' % (dst, T+12, NON))
    stamp('start')
    a('s_load_dwordx16 s[4:19], s[0:1], 0')
    if not karg2:
        a('s_load_dwordx2 s[20:21], s[0:1], 64')
        a('s_load_dwordx2 s[%d:%d], s[0:1], 80' % (sWS, sWS+1))
    a('s_getpc_b64 s[28:29]')
    lab('L_pc')
    a('s_cmpk_ge_u32 s2, 256'); a('s_cbranch_scc1 L_end')
    a('v_lshlrev_b32 v%d, 7, v0' % (T+8))
    a('v_min_u32 v%d, L_end - L_pc, v%d' % (T+8, T+8))
    a('v_lshrrev_b32 v%d, 6, v0' % T)
    a('v_and_b32 v%d, 63, v0' % LN_)
    a('v_readfirstlane_b32 s%d, v%d' % (sW, T))
    a('global_load_dword v%d, v%d, s[28:29] %s' % (PRE, T+8, pflags))
    a('v_and_b32 v%d, 15, v0' % M)
    a('v_bfe_u32 v%d, v0, 4, 2' % Gq)
    if hmap:
        a('s_and_b32 s%d, s2, 7' % sH)
        if hmap == 2: a('s_lshr_b32 s%d, s%d, 1' % (sT0, sH)); a('s_and_b32 s%d, s%d, 2' % (sT0, sT0)); a('s_xor_b32 s%d, s%d, s%d' % (sH, sH, sT0))
        a('s_bfe_u32 s%d, s2, 0x20003' % sT0); a('s_lshl2_add_u32 s%d, s%d, s%d' % (sH, sH, sT0))
    else: a('s_and_b32 s%d, s2, 31' % sH)
    a('s_lshr_b32 s%d, s2, 5' % sS)
    a('v_lshlrev_b32 v%d, 4, v%d' % (AX4, LN_))
    a('v_lshlrev_b32 v%d, 2, v%d' % (AX1, LN_))
    a('v_lshlrev_b32 v%d, 4, v%d' % (T+2, M))
    a('v_mad_u32_u24 v%d, v%d, %d, v%d' % (T+1, T, 4 if qmap else 20, Gq))
    a('v_lshl_add_u32 v%d, v%d, 13, v%d' % (AWQ, T+1, T+2))
    a('s_movk_i32 s%d, 1280' % (sX+2)); a('s_mov_b32 s%d, 0x20000' % (sX+3))
    a('s_mov_b32 s%d, 5242880' % (sWQ+2)); a('s_mov_b32 s%d, 0x20000' % (sWQ+3))
    a('s_mul_i32 s%d, s%d, %d' % (sQO, sS, 80*8192)); a('s_lshl_b32 s%d, s%d, 8' % (sT0, sH)); a('s_add_u32 s%d, s%d, s%d' % (sQO, sQO, sT0))
    if adapt: a('s_memrealtime s[96:97]'); a('s_load_dwordx2 s[56:57], s[0:1], 72')
    if tlb: a('s_cmp_eq_u32 s%d, 4' % sW)
    stamp('pre')
    a('s_waitcnt lgkmcnt(0)')
    stamp('karg')
    if tlb:
        a('s_cbranch_scc1 L_tlb')
        with cold():
            lab('L_tlb')
            if tlbd: a('s_barrier')
            if tlbd > 1: a('s_sleep %d' % tlbd)
            def bump(p, off): a('s_add_u32 s%d, s%d, s%d' % (p, p, off)); a('s_addc_u32 s%d, s%d, 0' % (p+1, p+1))
            a('s_lshl_b32 s%d, s%d, 20' % (sT0, sH)); a('s_add_u32 s%d, s%d, %d' % (sT0, sT0, 3072*256))
            a('s_lshl_b32 s%d, s%d, 15' % (sT1, sS)); a('s_add_u32 s%d, s%d, s%d' % (sT0, sT0, sT1))
            bump(6, sT0); bump(8, sT0)
            if tlb != 3: a('s_load_dword s60, s[6:7], 0')
            a('s_load_dword s61, s[8:9], 0')
            a('s_mul_i32 s%d, s%d, %d' % (sT0, sH, 128*1280)); a('s_mul_i32 s%d, s%d, %d' % (sT1, sS, 16*1280)); a('s_add_u32 s%d, s%d, s%d' % (sT0, sT0, sT1))
            bump(12, sT0); a('s_load_dword s62, s[12:13], 0')
            a('s_mul_i32 s%d, s%d, %d' % (sT0, sS, 80*3456)); bump(16, sT0); a('s_load_dword s63, s[16:17], 0')
            a('s_min_u32 s%d, s%d, 26' % (sT0, sH)); a('s_mul_i32 s%d, s%d, %d' % (sT0, sT0, 64*1280)); bump(18, sT0); a('s_load_dword s64, s[18:19], 0')
            if tlb != 3: a('s_load_dword s65, s[%d:%d], %d' % (sWS, sWS+1, R1))
            if tlb == 2:
                a('s_load_dword s66, s[16:17], %d' % (40*3456)); a('s_load_dword s67, s[18:19], %d' % (32*1280))
                a('s_load_dword s70, s[%d:%d], %d' % (sWS, sWS+1, R2)); a('s_load_dword s71, s[20:21], 0')
            a('s_endpgm')
    issued = []
    def ld(name, text): a(text); issued.append(name)
    def wait(name, extra=''):
        n = len(issued) - 1 - issued.index(name)
        a('s_waitcnt vmcnt(%d)%s' % (n, extra))
    base(sX, 4)
    ld('x4', 'buffer_load_dwordx4 %s, v%d, %s, 0 offen %s' % (v4(X4), AX4, srd(sX), xflags))
    ld('x1', 'buffer_load_dword v%d, v%d, %s, 0 offen offset:1024 %s' % (X1, AX1, srd(sX), xflags))
    base(sWQ, 10)
    for t in range(5):
        ld('wq%d' % t, 'buffer_load_dwordx4 %s, v%d, %s, s%d offen %s' % (v4(WQ+4*t), AWQ, srd(sWQ), sQO, qflags))
        if t < 4: a('s_add_u32 s%d, s%d, 0x%x' % (sQO, sQO, 0x20000 if qmap else 0x8000))
    if karg2:
        a('s_load_dwordx2 s[20:21], s[0:1], 64')
        a('s_load_dwordx2 s[%d:%d], s[0:1], 80' % (sWS, sWS+1))
    if probe is not None: a('s_mov_b32 s76, s74')
    km = (kmap or 's2 s1 s0 w1 w0 i2 i1 i0 g1 g0').split()
    pos = {f: 9 - j for j, f in enumerate(km)}
    ioff = lambda i: sum(((i >> b) & 1) << (pos['i%d' % b] + 8) for b in range(3))
    if kmap:
        a('v_mov_b32 v%d, v%d' % (AKV, T+2))
        for f, src in (('w', T), ('g', Gq)):
            for b in range(2):
                a('v_bfe_u32 v%d, v%d, %d, 1' % (T+6, src, b)); a('v_lshl_add_u32 v%d, v%d, %d, v%d' % (AKV, T+6, pos[f + str(b)] + 8, AKV))
    else:
        a('v_lshl_add_u32 v%d, v%d, 5, v%d' % (T+6, T, Gq))
        a('v_lshl_add_u32 v%d, v%d, 8, v%d' % (AKV, T+6, T+2))
    base(sK, 6); size(sK, 33554432); size(sWS, 268435456)
    a('s_lshl_b32 s%d, s%d, 20' % (sKVO, sH)); a('s_add_u32 s%d, s%d, %d' % (sKVO, sKVO, 3072*256))
    if pos['s0'] + 1 == pos['s1'] and pos['s1'] + 1 == pos['s2']:
        a('s_lshl_b32 s%d, s%d, %d' % (sT0, sS, pos['s0'] + 8)); a('s_add_u32 s%d, s%d, s%d' % (sKVO, sKVO, sT0))
    else:
        for b in range(3):
            a('s_bfe_u32 s%d, s%d, 0x%x' % (sT0, sS, (1 << 16) | b)); a('s_lshl_b32 s%d, s%d, %d' % (sT0, sT0, pos['s%d' % b] + 8)); a('s_add_u32 s%d, s%d, s%d' % (sKVO, sKVO, sT0))
    if kx is not None:
        assert [pos['i2'], pos['i1'], pos['i0']] == [9, 8, 7]
        a('s_lshr_b32 s%d, s%d, %d' % (sT0, sH, kx)); a('s_and_b32 s%d, s%d, 7' % (sT0, sT0)); a('s_lshl_b32 s%d, s%d, 15' % (sT0, sT0)); a('s_add_u32 s%d, s%d, s%d' % (sKVO, sKVO, sT0))
    a('s_add_u32 s%d, s%d, 4096' % (sKVO2, sKVO))
    a('s_lshl_b32 s%d, s%d, 3' % (sREC, sH)); a('s_add_u32 s%d, s%d, s%d' % (sREC, sREC, sS))
    a('s_lshl_b32 s%d, s%d, 9' % (sR0, sREC)); a('s_add_u32 s%d, s%d, %d' % (sR0, sR0, R0))
    a('s_lshl_b32 s%d, s%d, 10' % (sR1, sREC)); a('s_add_u32 s%d, s%d, %d' % (sR1, sR1, R1))
    a('s_lshl_b32 s%d, s%d, 7' % (sT1, sW)); a('s_add_u32 s%d, s%d, s%d' % (sT1, sT1, sR0))
    a('v_mov_b32 v%d, 0' % (T+11))
    if karg2: a('s_waitcnt lgkmcnt(0)')
    stamp('iss')
    if fence0: a('s_barrier')
    if adapt:
        a('s_movk_i32 s58, 256'); a('s_mov_b32 s59, 0x20000')
        a('s_or_b32 s96, s96, 1')
        a('s_lshl_b32 s%d, s2, 2' % sCNT); a('s_add_u32 s%d, s%d, s%d' % (sCNT, sCNT, sW))
        a('s_and_b32 s97, s%d, 0xffffffe3' % sCNT)
        a('s_cbranch_scc1 L_nost')
        a('v_mov_b32 v%d, s96' % (T+12)); a('v_mov_b32 v%d, s%d' % (T+13, sCNT))
        a('s_mov_b64 exec, 1')
        a('buffer_store_dword v%d, v%d, s[56:59], 0 offen sc1' % (T+12, T+13))
        a('s_mov_b64 exec, -1')
        lab('L_nost')
        a('v_and_b32 v%d, 28, v%d' % (T+12, AX1))
        ld('D', 'buffer_load_dword v%d, v%d, s[56:59], 0 offen sc1' % (PRE+1, T+12))
    ld('E', 'buffer_load_dword v%d, v%d, %s, 0 offen %s' % (NON, T+11, srd(sWS), eflags))
    if t0: ld('t0', 'buffer_load_dword v%d, v%d, %s, s%d offen %s' % (TCH, T+11, srd(sWS), sT1, tflags))
    Gd, Gm = T+8, T+16
    def item(n):
        k, i = n[0], n[1:]
        if k == 'W':
            wait(i)
            if n in ('Wk7', 'Wf7', 'Wf5', 'Wf3'): stamp(n)
            return
        i = int(i)
        if k in 'kv' and kmap:
            o = ioff(i)
            if o >= 4096: a('%s s%d, s%d, %d' % ('s_add_u32' if kx is None else 's_xor_b32', sKVO2, sKVO, o & ~4095))
            ld(n, 'buffer_load_dwordx4 %s, v%d, %s, s%d offen offset:%d %s' % (v4((KK if k == 'k' else VV)+4*i), AKV, srd(sK if k == 'k' else sV), sKVO2 if o >= 4096 else sKVO, o & 4095, flags))
        elif k == 'k': ld(n, 'buffer_load_dwordx4 %s, v%d, %s, s%d offen offset:%d %s' % (v4(KK+4*i), AKV, srd(sK), sKVO2 if i >= 4 else sKVO, 1024*(i & 3), flags))
        elif k == 'v': ld(n, 'buffer_load_dwordx4 %s, v%d, %s, s%d offen offset:%d %s' % (v4(VV+4*i), AKV, srd(sV), sKVO2 if i >= 4 else sKVO, 1024*(i & 3), flags))
        elif k == 'f': ld(n, 'buffer_load_dwordx4 %s, v%d, %s, s%d offen offset:%d %s' % (v4(FF+4*i), AF, srd(sF), sFO2 if i >= 4 else sFO, 1280*(i & 3), wflags))
        elif k == 'p': ld(n, 'buffer_load_dwordx4 %s, v%d, %s, 0 offen %s' % (v4(PQ+4*i), AP0, srd(sWS), pl))
        elif k == 'r':
            gd, gm = [(Gd, Gm), (PQ, PQ+4), (PQ+8, PQ+12)][i]
            ld(n + 'm', 'buffer_load_dwordx4 %s, v%d, %s, 0 offen offset:768 %s' % (v4(gm), AML, srd(sWS), pl))
            ld(n, 'buffer_load_dwordx4 %s, v%d, %s, 0 offen %s' % (v4(gd), AP1, srd(sWS), pl))
        elif k == 'u':
            ld(n, 'buffer_load_dwordx4 %s, v%d, %s, s%d offen %s' % (v4(W1+4*i), AW1, srd(sW1b if i == 2 else sW1), sW1O, wflags))
            if i < 2: a('s_add_u32 s%d, s%d, %d' % (sW1O, sW1O, 32*3456))
        elif k == 't':
            a('s_mov_b64 exec, %d' % {1: 63, 2: 3, 3: 60}[i])
            ld(n, 'buffer_load_dword v%d, v%d, %s, 0 offen %s' % (TCH, ATC, srd(sWS), tflags))
            a('s_mov_b64 exec, -1')
        elif k == 'z': a('s_sleep %d' % i)
        else: raise ValueError(n)
    def items(s):
        for n in s.split(): item(n)
    LATE = ('b', 'qs', 'dot', 's', 'e') + tuple('pv%d' % i for i in range(8))
    def pt(name):
        txt = pts.get(name, '')
        if not txt: return
        if name in LATE:
            a('s_cmp_eq_u32 s%d, 9' % sNF); a('s_cbranch_scc1 L_sk_%s' % name)
            items(txt)
            lab('L_sk_%s' % name)
        else: items(txt)
    nk = [0]
    def morek(n):
        for _ in range(n):
            if nk[0] < 8: item('k%d' % nk[0]); nk[0] += 1
    morek(kpts[0])
    base(sV, 8); base(sW1, 16); base(sW1b, 16); size(sV, 33554432)
    for r in (sW1, sW1b, sF): a('s_mov_b32 s%d, 0x20000' % (r+3))
    for k in range(4): a('s_mov_b32 s%d, 0x%08x' % (sTG+k, 0x07060500 + k))
    a('s_mov_b32 s%d, 0x0c0c0400' % sCK); a('s_mov_b32 s%d, 0x05040100' % (sCK+1))
    a('v_lshrrev_b32 v%d, 3, v%d' % (T+3, M))
    a('v_lshl_add_u32 v%d, v%d, 2, v%d' % (T+4, T+3, Gq))
    a('v_lshl_add_u32 v%d, v%d, 3, v%d' % (T+4, T, T+4))
    a('v_and_b32 v%d, 7, v%d' % (T+5, M))
    a('v_mul_u32_u24 v%d, 3456, v%d' % (AW1, T+4))
    a('v_lshl_add_u32 v%d, v%d, 4, v%d' % (AW1, T+5, AW1))
    a('s_mov_b32 s%d, s%d' % (sHM, sH))
    for x, y in swaps:
        a('s_cmp_eq_u32 s%d, %d' % (sH, x)); a('s_cselect_b32 s%d, %d, s%d' % (sHM, y, sHM))
        a('s_cmp_eq_u32 s%d, %d' % (sH, y)); a('s_cselect_b32 s%d, %d, s%d' % (sHM, x, sHM))
    a('s_cmp_lt_u32 s%d, 5' % sS); a('s_cselect_b32 s%d, s%d, s%d' % (sHS, sH, sHM))
    a('s_lshl_b32 s%d, s%d, 7' % (sT1, sHM))
    a('s_mul_i32 s%d, s%d, %d' % (sW1O, sS, 80*3456)); a('s_add_u32 s%d, s%d, s%d' % (sW1O, sW1O, sT1))
    a('s_cmp_lt_u32 s%d, 27' % sHM); a('s_cselect_b32 s%d, 2211840, 0' % (sW1+2)); a('s_cselect_b32 s%d, 8, 5' % sIDLE)
    a('s_cmp_lt_u32 s%d, 2' % sW); a('s_cselect_b32 s%d, s%d, 0' % (sW1b+2, sW1+2))
    a('s_mul_i32 s%d, s%d, 160' % (sT0, sS))
    a('v_lshl_add_u32 v%d, v%d, 1, s%d' % (LXQ, T+1, sT0))
    a('v_lshl_add_u32 v%d, v%d, 1, s%d' % (LXW, T+4, sT0))
    a('s_cmp_lt_u32 s%d, 5' % sS)
    a('s_cselect_b64 s[%d:%d], s[12:13], s[18:19]' % (sF, sF+1))
    a('s_cselect_b32 s%d, 3, 1' % sT0); a('s_and_b32 s%d, s%d, s%d' % (sT0, sT0, sW)); a('s_lshl_b32 s%d, s%d, 2' % (sT0, sT0))
    a('v_add_u32 v%d, s%d, v%d' % (T+6, sT0, Gq))
    a('v_mul_u32_u24 v%d, %d, v%d' % (AF, 8*1280, T+6))
    a('v_add_u32 v%d, v%d, v%d' % (AF, AF, T+2))
    a('s_lshr_b32 s%d, s%d, 1' % (sT0, sW)); a('s_lshl_b32 s%d, s%d, 1' % (sT1, sS)); a('s_add_u32 s%d, s%d, s%d' % (sT0, sT0, sT1)); a('s_sub_u32 s%d, s%d, 10' % (sT0, sT0))
    a('s_cmp_lt_u32 s%d, 5' % sS)
    a('s_cselect_b32 s%d, s%d, s%d' % (sT0, sS, sT0))
    a('s_mov_b32 s%d, %d' % (sT1, 64*1280)); a('s_cselect_b32 s%d, %d, s%d' % (sT1, 128*1280, sT1))
    a('s_mul_i32 s%d, s%d, s%d' % (sFO, sHS, sT1))
    a('s_lshl_b32 s%d, s%d, 8' % (sT1, sT0)); a('s_add_u32 s%d, s%d, s%d' % (sFO, sFO, sT1))
    a('s_add_u32 s%d, s%d, 5120' % (sFO2, sFO))
    a('s_cmp_lt_u32 s%d, 5' % sT0); a('s_cselect_b32 s%d, s%d, 0' % (sF+2, sW1+2))
    a('s_cmp_lt_u32 s%d, 5' % sS); a('s_cselect_b32 s%d, 5242880, s%d' % (sF+2, sF+2))
    a('s_cselect_b32 s%d, 0, 512' % sT1)
    a('s_lshl_b32 s%d, s%d, 13' % (sT0, sH)); a('s_add_u32 s%d, s%d, %d' % (sT0, sT0, R1))
    a('v_lshl_add_u32 v%d, v%d, 10, s%d' % (AML, T+5, sT0))
    a('v_lshl_add_u32 v%d, v%d, 5, v%d' % (AP1, T+6, AML))
    a('v_lshl_add_u32 v%d, v%d, 4, v%d' % (AP1, T+3, AP1))
    a('v_add_u32 v%d, s%d, v%d' % (AP1, sT1, AP1))
    a('s_lshl_b32 s%d, s%d, 2' % (sT0, sH)); a('s_add_u32 s%d, s%d, s%d' % (sT0, sT0, sW)); a('s_lshl_b32 s%d, s%d, 10' % (sT0, sT0)); a('s_add_u32 s%d, s%d, %d' % (sT0, sT0, R0))
    a('v_add_u32 v%d, s%d, v%d' % (AP0, sT0, AX4))
    a('v_and_b32 v%d, 1, v%d' % (T+7, Gq))
    a('v_lshrrev_b32 v%d, 1, v%d' % (T+8, Gq))
    a('v_lshl_add_u32 v%d, v%d, 1, v%d' % (T+8, T, T+8))
    a('v_lshlrev_b32 v%d, 9, v%d' % (LD, T+8))
    a('v_lshl_add_u32 v%d, v%d, 5, v%d' % (LD, M, LD))
    a('v_lshl_add_u32 v%d, v%d, 4, v%d' % (LD, T+7, LD))
    a('v_lshlrev_b32 v%d, 8, v%d' % (LH, T+8))
    a('v_lshl_add_u32 v%d, v%d, 5, v%d' % (LH, T+5, LH))
    a('v_lshl_add_u32 v%d, v%d, 4, v%d' % (LH, T+7, LH))
    a('v_and_b32 v%d, 7, v%d' % (PART, LN_))
    a('v_lshrrev_b32 v%d, 3, v%d' % (T+9, LN_))
    a('v_lshl_add_u32 v%d, v%d, 3, v%d' % (T+10, T, T+9)); a('v_lshlrev_b32 v%d, 4, v%d' % (C16, T+10))
    a('v_lshl_add_u32 v%d, v%d, 9, v%d' % (LCB, PART, C16))
    a('v_lshl_add_u32 v%d, v%d, 2, v%d' % (AH, T, T+9)); a('v_lshlrev_b32 v%d, 4, v%d' % (AH, AH))
    a('v_lshlrev_b32 v%d, 4, v%d' % (T+9, T+9)); a('v_add_u32 v%d, 768, v%d' % (T+9, T+9))
    a('v_cmp_eq_u32 vcc, 0, v%d' % PART)
    a('v_lshrrev_b32 v%d, 2, v%d' % (T+7, PART)); a('v_lshrrev_b32 v%d, 2, v%d' % (T+8, T+10))
    a('v_cndmask_b32 v%d, v%d, v%d, vcc' % (AOS, T+9, C16))
    a('v_lshl_add_u32 v%d, v%d, 3, v%d' % (T+7, T+7, T+8)); a('v_and_b32 v%d, 48, v%d' % (T+8, C16))
    a('v_lshl_add_u32 v%d, v%d, 13, v%d' % (AFS, T+7, T+8))
    a('s_lshl_b32 s%d, s%d, 17' % (sREC, sS)); a('s_sub_u32 s%d, s%d, %d' % (sREC, sREC, (10 << 16) - 32*128))
    a('s_lshl_b32 s%d, s%d, 16' % (sNF, sS))
    a('s_cmp_lt_u32 s%d, 5' % sS); a('s_cselect_b32 s%d, s%d, s%d' % (sREC, sNF, sREC))
    a('s_lshl_b32 s%d, s%d, 7' % (sNF, sHS)); a('s_add_u32 s%d, s%d, s%d' % (sREC, sREC, sNF)); a('s_add_u32 s%d, s%d, %d' % (sREC, sREC, R2))
    a('s_lshl_b32 s%d, s%d, 14' % (sT0, sW)); a('s_add_u32 s%d, s%d, s%d' % (sT0, sT0, sREC))
    a('v_and_b32 v%d, 1, v%d' % (T+7, LN_)); a('v_bfe_u32 v%d, v%d, 2, 1' % (T+8, LN_))
    a('v_lshlrev_b32 v%d, 13, v%d' % (ATC, T+7)); a('v_lshl_add_u32 v%d, v%d, 16, v%d' % (ATC, T+8, ATC)); a('v_add_u32 v%d, s%d, v%d' % (ATC, sT0, ATC))
    a('s_lshl_b32 s%d, s%d, 7' % (sT0, sW)); a('s_add_u32 s%d, s%d, s%d' % (sT0, sT0, sR1))
    a('v_writelane_b32 v%d, s%d, 0' % (ATC, sT0)); a('s_add_u32 s%d, s%d, 512' % (sT0, sT0)); a('v_writelane_b32 v%d, s%d, 1' % (ATC, sT0))
    a('s_getreg_b32 s%d, hwreg(HW_REG_XCC_ID)' % sXC); a('s_lshl_b32 s%d, s%d, 8' % (sXC, sXC))
    pt('setup')
    a('v_and_b32 v%d, 1, v%d' % (T+7, M))
    a('v_cmp_eq_u32 vcc, 1, v%d' % (T+7))
    a('v_mov_b32 v%d, 0x0c0c0100' % (T+8)); a('v_mov_b32 v%d, 0x01000c0c' % (T+9))
    a('v_cndmask_b32 v%d, v%d, v%d, vcc' % (T+8, T+8, T+9))
    a('v_mov_b32 v%d, 0x0c0c0302' % (T+9)); a('v_mov_b32 v%d, 0x03020c0c' % (T+10))
    a('v_cndmask_b32 v%d, v%d, v%d, vcc' % (T+9, T+9, T+10))
    a('v_lshrrev_b32 v%d, 1, v%d' % (T+7, T+5))
    a('v_mov_b32 v%d, 0x0c0c0c0c' % (T+10))
    for r in range(4):
        a('v_cmp_eq_u32 vcc, %d, v%d' % (r, T+7))
        a('s_nop 1')
        a('v_cndmask_b32 v%d, v%d, v%d, vcc' % (SLO+r, T+10, T+8))
        a('v_cndmask_b32 v%d, v%d, v%d, vcc' % (SHI+r, T+10, T+9))
    a('s_mov_b32 s%d, %s' % (sLG, f32(LOG2E)))
    def reduce64(r, sdst):
        for k in (8, 4, 2, 1):
            a('s_nop 1'); dpp('v_add_f32', r, r, r, 'row_ror:%d' % k)
        a('s_nop 1'); dpp('v_add_f32', r, r, r, 'row_bcast:15', rm=0xa)
        a('s_nop 1'); dpp('v_add_f32', r, r, r, 'row_bcast:31', rm=0xc)
        a('s_nop 0'); a('v_readlane_b32 s%d, v%d, 63' % (sdst, r)); a('s_nop 1')
    if stream:
        order, cap = stream
        big = [n for n in issued if n[0] in 'wk' ]
        if adapt:
            wait('D')
            a('v_sub_u32 v%d, s96, v%d' % (T+12, PRE+1))
            a('v_add_u32 v%d, %d, v%d' % (T+12, -adapt[0], T+12))
            a('v_cmp_gt_u32 vcc, 1000, v%d' % (T+12))
            a('s_nop 1'); a('s_cmp_lg_u64 vcc, 0'); a('s_cselect_b32 s97, 1, 0')
            vstamp(97, 0, '-late')
        for idx, n in enumerate(order.split()):
            if adapt:
                c1 = adapt[1] if idx < adapt[3] else adapt[2]
                if len(big) >= c1:
                    a('s_cmp_lg_u32 s97, 0'); a('s_cbranch_scc1 L_ad%d' % idx); wait(big[-c1]); lab('L_ad%d' % idx)
            if len(big) >= cap: wait(big[-cap])
            item(n); big.append(n)
            if n in ('k7', 'v7'): stamp('i' + n)
        stamp('iss')
        wait('v7'); stamp('v7')
        a('s_waitcnt vmcnt(0)'); stamp('all')
        a('s_branch L_done')
    stamp('set')
    wait('x1')
    morek(kpts[1])
    stamp('x')
    Fx = T
    for k in range(4): unpack(Fx+2*k, X4+k)
    unpack(Fx+8, X1)
    S, D, Q = T+10, T+11, T+22
    a('v_add_f32 v%d, v%d, v%d' % (S, Fx, Fx+1))
    for k in range(2, 10): a('v_add_f32 v%d, v%d, v%d' % (S, S, Fx+k))
    reduce64(S, sT0)
    a('v_mov_b32 v%d, %s' % (T+21, f32(1.0/640)))
    a('v_mul_f32 v%d, s%d, v%d' % (S, sT0, T+21))
    for k in range(10): a('v_sub_f32 v%d, v%d, v%d' % (D+k, Fx+k, S))
    a('v_mul_f32 v%d, v%d, v%d' % (Q, D, D))
    for k in range(1, 10): a('v_fmac_f32 v%d, v%d, v%d' % (Q, D+k, D+k))
    rnd(S)
    morek(kpts[2])
    reduce64(Q, sT0)
    a('v_mul_f32 v%d, s%d, v%d' % (Q, sT0, T+21))
    rnd(Q); a('v_add_f32 v%d, %s, v%d' % (Q, f32(1e-5), Q)); rnd(Q)
    a('v_sqrt_f32 v%d, v%d' % (Q, Q))
    for k in range(10): a('v_sub_f32 v%d, v%d, v%d' % (D+k, Fx+k, S))
    rnd(Q)
    a('v_rcp_f32 v%d, v%d' % (Q, Q))
    for k in range(5): cvt(Fx+k, D+2*k, D+2*k+1)
    for k in range(5): unpack(D+2*k, Fx+k)
    for k in range(10): a('v_mul_f32 v%d, v%d, v%d' % (D+k, D+k, Q))
    for k in range(5): cvt(Fx+k, D+2*k, D+2*k+1)
    a('ds_write_b128 v%d, %s offset:%d' % (AX4, v4(Fx), XN))
    a('ds_write_b32 v%d, v%d offset:%d' % (AX1, Fx+4, XN+1024))
    a('s_cmp_lt_u32 s%d, 2' % sW); a('s_cselect_b32 s%d, 128, 0' % sT0)
    a('v_add_u32 v%d, s%d, v%d' % (T+5, sT0, LXW))
    a('s_waitcnt lgkmcnt(0)')
    for t in range(5): a('ds_read_u16 v%d, v%d offset:%d' % (XV+t, LXQ, XN+(32 if qmap else 8)*t))
    a('ds_read_u16 v%d, v%d offset:%d' % (XW, LXW, XN))
    a('ds_read_u16 v%d, v%d offset:%d' % (XW+1, LXW, XN+64))
    a('ds_read_u16 v%d, v%d offset:%d' % (XW+2, T+5, XN))
    morek(kpts[3])
    stamp('ln')
    if stamps and probe is None and 'xcc' not in skip:
        a('s_lshr_b32 s%d, s%d, 8' % (sT0, sXC)); vstamp(sT0, 0, 'xcc')
    def perms(buf, src, sel):
        for r in range(4): a('v_perm_b32 v%d, v%d, v%d, v%d' % (buf+r, src, src, sel+r))
    def mfma(acc, A, B, first): a('v_mfma_f32_16x16x32_bf16 %s, %s, %s, %s' % (v4(acc), v4(A), v4(B), '0' if first else v4(acc)))
    a('v_lshlrev_b32 v%d, 5, v%d' % (T+20, M)); a('v_lshl_add_u32 v%d, v%d, 4, v%d' % (T+20, Gq, T+20))
    a('s_lshl_b32 s%d, s%d, 9' % (sT0, sW)); a('v_add_u32 v%d, s%d, v%d' % (T+20, sT0, T+20))
    a('v_and_b32 v%d, 3, v%d' % (T+21, LN_)); a('v_lshrrev_b32 v%d, 2, v%d' % (T+22, LN_)); a('v_lshlrev_b32 v%d, 4, v%d' % (T+22, T+22))
    a('s_lshl_b32 s%d, s%d, 7' % (sT0, sW)); a('v_add_u32 v%d, s%d, v%d' % (T+22, sT0, T+22))
    a('v_lshl_add_u32 v%d, v%d, 9, v%d' % (T+21, T+21, T+22))
    A5 = [AB[0], AB[1], T, T+4, T+8]
    a('s_waitcnt lgkmcnt(3)')
    for t in range(5): perms(A5[t], XV+t, SLO)
    for t in range(5):
        wait('wq%d' % t); mfma(ACA, A5[t], WQ+4*t, t == 0); pt('q%d' % t)
    wait('E')
    a('s_mov_b32 s%d, 1664525' % sT0)
    a('v_mul_lo_u32 v%d, v%d, s%d' % (NON, NON, sT0))
    a('v_add_u32 v%d, 1013904223, v%d' % (NON, NON))
    if qnib: qnon(T+4, 2)
    a('s_mov_b32 exec_hi, 0')
    if not qnib: a('s_nop 3')
    a('ds_write_b128 v%d, %s offset:%d' % (T+20, v4(ACA), QP))
    a('s_waitcnt lgkmcnt(0)')
    stamp('qpart')
    a('s_barrier')
    a('ds_read_b128 %s, v%d offset:%d' % (v4(T), T+21, QP))
    a('s_waitcnt lgkmcnt(0)')
    for ctl in (X1c, X2c):
        for j in range(4): dpp('v_add_f32', T+j, T+j, T+j, ctl)
    a('s_mov_b32 exec_lo, 0x11111111')
    qtag(T, T+4) if qnib else tag(T)
    ld('sq', 'buffer_store_dwordx4 %s, v%d, %s, s%d offen' % (v4(T), T+22, srd(sWS), sR0))
    a('s_mov_b64 exec, -1')
    stamp('qpub')
    first, rest = post_a.split('|') if '|' in post_a else ('', post_a)
    items(first)
    for t in range(3): perms(WQ+4*t, XW+t, SLO)
    if qnib: qnon(NQ, 0)
    ACH = WQ + 12
    a('s_lshl_b32 s%d, s%d, 10' % (sCNT, sW)); a('v_add_u32 v%d, s%d, v%d' % (T+14, sCNT, AX4))
    a('s_mov_b32 s%d, 0' % sNF)
    a('v_lshlrev_b32 v%d, 3, v%d' % (T+20, LN_))
    a('v_lshlrev_b32 v%d, 4, v%d' % (T+21, M))
    items(rest)
    def mirror(label, both, final=False):
        GA, GB = XV, X4
        a('s_mov_b32 s%d, %d' % (sW1O, SPIN))
        lab(label)
        ex(0xffffffff, 0)
        a('buffer_load_dwordx4 %s, v%d, %s, s%d offen %s' % (v4(GA), AX4, srd(sWS), sR0, pl))
        if both:
            a('s_mov_b32 exec_hi, 0x00ffffff')
            a('buffer_load_dwordx4 %s, v%d, %s, s%d offen %s' % (v4(GB), AX4, srd(sWS), sR1, pl))
        a('s_sub_u32 s%d, s%d, 1' % (sW1O, sW1O)); a('s_cbranch_scc1 %s_y' % label)
        a('s_waitcnt vmcnt(0)')
        if both:
            tagcheck(GB); a('s_cbranch_vccnz %s' % label); a('s_mov_b32 exec_hi, 0')
        qcheck(GA); a('s_cbranch_vccnz %s' % label)
        lab(label + '_y')
        if final and clean:
            a('buffer_store_dwordx4 %s, v%d, %s, s%d offen sc1' % (v4(GA), AX4, srd(sWS), sR0))
            a('s_cmp_ge_u32 s%d, s%d' % (sS, sIDLE)); a('s_cbranch_scc1 %s_z' % label)
            a('s_mov_b32 exec_hi, 0x00ffffff')
            a('buffer_store_dwordx4 %s, v%d, %s, s%d offen sc1' % (v4(GB), AX4, srd(sWS), sR1))
            a('s_mov_b32 exec_hi, 0')
            lab(label + '_z')
            a('s_cmp_eq_u64 s[22:23], 0'); a('s_cbranch_scc1 L_done')
        a('s_add_u32 s%d, s%d, %d' % (sW1O, sR0, RB))
        a('buffer_store_dwordx4 %s, v%d, %s, s%d offen sc1' % (v4(GA), AX4, srd(sWS), sW1O))
        if both:
            a('s_mov_b32 exec_hi, 0x00ffffff'); a('s_add_u32 s%d, s%d, %d' % (sKVO2, sR1, RB))
            a('buffer_store_dwordx4 %s, v%d, %s, s%d offen sc1' % (v4(GB), AX4, srd(sWS), sKVO2))
        a('s_mov_b64 exec, -1')
    def slow(label, loads, both, out, nfast=nfast):
        def rd(flag, soff):
            for G, ad, off in loads: a('buffer_load_dwordx4 %s, v%d, %s, %s offen offset:%d %s' % (v4(G), ad, srd(sWS), soff, off, flag))
            for k, (G, ad, off) in enumerate(loads):
                a('s_waitcnt vmcnt(%d)' % (len(loads) - 1 - k)); (tagcheck if both else qcheck)(G, 'vcc' if k == len(loads) - 1 else 's[4:5]')
            if len(loads) > 1: a('s_nop 0'); a('s_or_b64 vcc, vcc, s[4:5]')
        a('s_mov_b32 s%d, %d' % (sCNT, SPIN)); a('s_mov_b32 s%d, %d' % (sQO, RB))
        lab(label)
        rd(pl, '0')
        a('s_cbranch_vccz %s' % out)
        a('s_sub_u32 s%d, s%d, 1' % (sCNT, sCNT)); a('s_cbranch_scc1 %s' % out)
        a('s_cmp_gt_u32 s%d, %d' % (sCNT, SPIN - nfast)); a('s_cbranch_scc1 %s' % label)
        a('s_cmp_lt_u32 s%d, %d' % (sCNT, SPIN - nfast)); a('s_cbranch_scc1 %s_b' % label)
        mirror(label + '_m', both)
        lab(label + '_b')
        rd('sc1', 's%d' % sQO)
        a('s_cbranch_vccnz %s' % label)
        a('s_branch %s' % out)
    polls = [n for n in issued if n[0] == 'p']
    assert polls[0] == 'p0'
    wait('p0'); pt('p0'); qcheck(PQ)
    a('s_cbranch_vccnz L_q0')
    lab('L_qw')
    a('ds_write_b128 v%d, %s offset:%d' % (T+14, v4(PQ), QX))
    lab('L_qok')
    with cold():
        for j, n in enumerate(polls):
            if j:
                G = PQ + 4*int(n[1:])
                wait(n); pt('p%d' % j); qcheck(G)
                a('s_cbranch_vccnz L_q%d' % j)
                a('ds_write_b128 v%d, %s offset:%d' % (T+14, v4(G), QX))
                a('s_branch L_qok')
            lab('L_q%d' % j)
            a('s_mov_b32 s%d, %d' % (sNF, j+1))
        keep = issued[:]
        for nme in LATE: items(pts.get(nme, ''))
        del issued[:]; issued.extend(keep)
        a('s_mov_b32 s%d, 9' % sNF)
        slow('L_qs', [(PQ, AP0, 0)], False, 'L_qw')
    stamp('qok')
    vstamp(sNF, 0, '-nf')
    a('s_waitcnt lgkmcnt(0)')
    a('s_barrier')
    for k in range(8): a('ds_read_b64 %s, v%d offset:%d' % (v2(T+2*k), T+20, QX + 512*k))
    for j in range(1, len(polls)):
        if pts.get('p%d' % j):
            a('s_cmp_ge_u32 s%d, %d' % (sNF, j)); a('s_cbranch_scc1 L_skipf%d' % j)
            keep = issued[:]; pt('p%d' % j); del issued[:]; issued.extend(keep)
            lab('L_skipf%d' % j)
    pt('b')
    a('s_waitcnt lgkmcnt(6)'); a('v_pk_add_f32 %s, %s, %s' % (v2(T), v2(T), v2(T+2)))
    a('s_waitcnt lgkmcnt(4)'); a('v_pk_add_f32 %s, %s, %s' % (v2(T+4), v2(T+4), v2(T+6)))
    a('s_waitcnt lgkmcnt(2)'); a('v_pk_add_f32 %s, %s, %s' % (v2(T+8), v2(T+8), v2(T+10)))
    a('v_pk_add_f32 %s, %s, %s' % (v2(T), v2(T), v2(T+4)))
    a('s_waitcnt lgkmcnt(0)'); a('v_pk_add_f32 %s, %s, %s' % (v2(T+12), v2(T+12), v2(T+14)))
    a('v_pk_add_f32 %s, %s, %s' % (v2(T+8), v2(T+8), v2(T+12)))
    a('v_pk_add_f32 %s, %s, %s' % (v2(T), v2(T), v2(T+8)))
    cvt(T, T, T+1)
    a('ds_write_b32 v%d, v%d offset:%d' % (AX1, T, QB))
    a('s_waitcnt lgkmcnt(0)')
    Q4 = T+16
    a('ds_read_b128 %s, v%d offset:%d' % (v4(Q4), T+21, QB))
    pt('qs')
    wait('k7', ' lgkmcnt(0)')
    S8 = T
    for d in range(4):
        for i in range(8):
            a('v_dot2_f32_bf16 v%d, v%d, v%d, %s' % (S8+i, KK+4*i+d, Q4+d, ('v%d' % (S8+i)) if d else '0'))
    S = T+8
    pt('dot')
    for k in range(4): dpp('v_add_f32', S+k, S8+k, S8+k, 'row_ror:8', bm=0x3)
    for k in range(4): dpp('v_add_f32', S+k, S8+4+k, S8+4+k, 'row_ror:8', bm=0xc)
    for ctl in (HM, X2c, X1c):
        for k in range(4): dpp('v_add_f32', S+k, S+k, S+k, ctl)
    P = T+4
    cvt(P, S, S+1); cvt(P+1, S+2, S+3)
    unpack(S, P); unpack(S+2, P+1)
    for i in range(4): a('v_mul_f32 v%d, %s, v%d' % (S+i, f32(128 ** -0.5), S+i))
    cvt(P, S, S+1); cvt(P+1, S+2, S+3)
    unpack(S, P); unpack(S+2, P+1)
    MX, TM, LS = T+23, T+14, T+13
    a('v_max3_f32 v%d, v%d, v%d, v%d' % (MX, S, S+1, S+2)); a('v_max_f32 v%d, v%d, v%d' % (MX, MX, S+3))
    def xrow(r, op):
        a('s_nop 1'); dpp(op, r, r, r, 'row_ror:8')
        for sw in ('v_permlane16_swap_b32', 'v_permlane32_swap_b32'):
            a('v_mov_b32 v%d, v%d' % (TM, r)); a('s_nop 1'); a('%s v%d, v%d' % (sw, r, TM)); a('%s v%d, v%d, v%d' % (op, r, r, TM))
    xrow(MX, 'v_max_f32')
    if wmax:
        pt('s')
    else:
        a('s_lshl_b32 s%d, s%d, 2' % (sCNT, sW)); a('v_mov_b32 v%d, s%d' % (T+15, sCNT))
        a('ds_write_b32 v%d, v%d offset:%d' % (T+15, MX, ML))
        a('v_mov_b32 v%d, 0' % (T+22))
        pt('s')
        a('s_waitcnt lgkmcnt(0)')
        a('s_barrier')
        a('ds_read_b128 %s, v%d offset:%d' % (v4(T), T+22, ML))
        a('s_waitcnt lgkmcnt(0)')
        a('v_max3_f32 v%d, v%d, v%d, v%d' % (MX, T, T+1, T+2)); a('v_max_f32 v%d, v%d, v%d' % (MX, MX, T+3))
    a('v_mul_f32 v%d, %s, v%d' % (T+17, f32(-LOG2E), MX))
    for i in range(4): a('v_fma_f32 v%d, v%d, s%d, v%d' % (S+i, S+i, sLG, T+17))
    for i in range(4): a('v_exp_f32 v%d, v%d' % (S+i, S+i))
    a('s_nop 0')
    cvt(P, S, S+1); cvt(P+1, S+2, S+3)
    a('v_add_f32 v%d, v%d, v%d' % (LS, S, S+1)); a('v_add_f32 v%d, v%d, v%d' % (T+17, S+2, S+3)); a('v_add_f32 v%d, v%d, v%d' % (LS, LS, T+17))
    pt('e')
    stamp('exp')
    A4 = [AB[0], AB[1], T, T+8]
    def dwrite(off):
        a('s_mov_b32 exec_hi, 0')
        a('ds_write_b128 v%d, %s offset:%d' % (LD, v4(ACA), off))
        a('s_mov_b32 exec_lo, 0'); a('s_mov_b32 exec_hi, -1')
        a('ds_write_b128 v%d, %s offset:%d' % (LD, v4(ACB), off))
        a('s_mov_b32 exec_lo, -1')
    perms(A4[0], P, SLO); perms(A4[1], P, SHI); perms(A4[2], P+1, SLO); perms(A4[3], P+1, SHI)
    xrow(LS, 'v_add_f32')
    if wmax:
        a('s_lshl_b32 s%d, s%d, 3' % (sCNT, sW)); a('v_mov_b32 v%d, s%d' % (T+15, sCNT))
        a('ds_write2_b32 v%d, v%d, v%d offset0:%d offset1:%d' % (T+15, MX, LS, 0, 1)) if False else None
        a('ds_write_b32 v%d, v%d offset:%d' % (T+15, MX, ML)); a('ds_write_b32 v%d, v%d offset:%d' % (T+15, LS, ML+4))
        a('v_mov_b32 v%d, 0' % (T+22))
        a('v_and_b32 v%d, 6, v%d' % (T+21, PART)); a('v_lshlrev_b32 v%d, 2, v%d' % (T+21, T+21))
    else: a('ds_write_b32 v%d, v%d offset:%d' % (T+15, LS, ML+16))
    a('v_lshl_add_u32 v%d, v%d, 8, v%d' % (T+17, PART, AH))
    for t in range(3): wait('u%d' % t); mfma(ACH, WQ+4*t, W1+4*t, t == 0)
    a('s_cmp_eq_u32 s%d, 0' % sW); a('s_cselect_b32 s%d, 0x03030303, 0' % sCNT); a('s_or_b32 s%d, s%d, 0x01010101' % (sCNT, sCNT))
    a('s_nop 4')
    ex(0x00ff00ff, 0xff00ff00)
    a('ds_write_b128 v%d, %s offset:%d' % (LH, v4(ACH), HP))
    a('s_mov_b64 exec, -1')
    for i in range(8):
        wait('v%d' % i)
        mfma(ACA if i < 4 else ACB, A4[i & 3], VV+4*i, (i & 3) == 0)
        pt('pv%d' % i)
    a('s_mov_b32 exec_hi, 0'); a('s_nop 2')
    a('ds_write_b128 v%d, %s offset:%d' % (LD, v4(ACA), OP))
    a('s_mov_b32 exec_lo, 0'); a('s_mov_b32 exec_hi, -1'); a('s_nop 0')
    a('ds_write_b128 v%d, %s offset:%d' % (LD, v4(ACB), OP))
    a('s_mov_b32 exec_lo, -1')
    a('s_cmp_ge_u32 s%d, s%d' % (sS, sIDLE))
    a('s_waitcnt lgkmcnt(0)')
    stamp('pv')
    a('s_barrier')
    if wmax:
        a('ds_read_b128 %s, v%d offset:%d' % (v4(T+8), T+22, ML)); a('ds_read_b128 %s, v%d offset:%d' % (v4(AB[0]), T+22, ML+16))
        a('ds_read_b64 %s, v%d offset:%d' % (v2(T+4), T+21, ML))
        a('ds_read_b128 %s, v%d offset:%d' % (v4(T), LCB, OP))
        a('ds_read_b128 %s, v%d offset:%d' % (v4(AB[1]), T+17, HP))
        a('s_waitcnt lgkmcnt(3)')
        a('v_max3_f32 v%d, v%d, v%d, v%d' % (MX, T+8, T+10, AB[0])); a('v_max_f32 v%d, v%d, v%d' % (MX, MX, AB[0]+2))
        a('s_waitcnt lgkmcnt(2)')
        a('v_sub_f32 v%d, v%d, v%d' % (T+4, T+4, MX)); a('v_mul_f32 v%d, s%d, v%d' % (T+4, sLG, T+4)); a('v_exp_f32 v%d, v%d' % (T+4, T+4))
        a('v_mul_f32 v%d, 0.5, v%d' % (T+5, T+5))
        a('s_waitcnt lgkmcnt(1)')
        a('v_mul_f32 v%d, v%d, v%d' % (T+5, T+5, T+4))
        for j in range(4): a('v_mul_f32 v%d, v%d, v%d' % (T+j, T+j, T+4))
        for ctl in (X1c, X2c, HM):
            dpp('v_add_f32', T+5, T+5, T+5, ctl)
            for j in range(4): dpp('v_add_f32', T+j, T+j, T+j, ctl)
        ex(0x02020202)
        a('v_mov_b32 v%d, v%d' % (T, MX)); a('v_mov_b32 v%d, v%d' % (T+1, T+5)); a('v_mov_b32 v%d, s%d' % (T+2, sXC))
    else:
        a('ds_read_b128 %s, v%d offset:%d' % (v4(T), LCB, OP))
        a('ds_read_b128 %s, v%d offset:%d' % (v4(AB[0]), T+22, ML+16))
        a('ds_read_b128 %s, v%d offset:%d' % (v4(AB[1]), T+17, HP))
        a('s_waitcnt lgkmcnt(2)')
        for j in range(4): dpp('v_add_f32', T+j, T+j, T+j, X1c)
        a('s_waitcnt lgkmcnt(1)')
        a('v_add_f32 v%d, v%d, v%d' % (AB[0], AB[0], AB[0]+1)); a('v_add_f32 v%d, v%d, v%d' % (AB[0]+2, AB[0]+2, AB[0]+3))
        for ctl in (X2c, HM):
            for j in range(4): dpp('v_add_f32', T+j, T+j, T+j, ctl)
        ex(0x02020202)
        a('v_mov_b32 v%d, v%d' % (T, MX)); a('v_add_f32 v%d, v%d, v%d' % (T+1, AB[0], AB[0]+2)); a('v_mov_b32 v%d, s%d' % (T+2, sXC))
    a('s_mov_b32 exec_lo, s%d' % sCNT); a('s_mov_b32 exec_hi, s%d' % sCNT)
    tag(T)
    if clean:
        a('s_cbranch_scc1 L_so1')
    ld('so', 'buffer_store_dwordx4 %s, v%d, %s, s%d offen' % (v4(T), AOS, srd(sWS), sR1))
    if clean:
        lab('L_so2')
        txt = L[-2]
        with cold():
            lab('L_so1'); cur[0].append(txt + ' sc1'); a('s_branch L_so2')
    a('s_mov_b64 exec, -1')
    stamp('opub')
    pt('o')
    a('s_waitcnt lgkmcnt(0)')
    for ctl in (X1c, X2c, HM):
        for j in range(4): dpp('v_add_f32', AB[1]+j, AB[1]+j, AB[1]+j, ctl)
    ex(0x01010101, 0)
    tag(AB[1])
    if clean:
        a('s_cbranch_scc1 L_sh1')
    ld('sh', 'buffer_store_dwordx4 %s, v%d, %s, s%d offen offset:512' % (v4(AB[1]), AH, srd(sWS), sR1))
    if clean:
        lab('L_sh2')
        txt = L[-2]
        with cold():
            lab('L_sh1'); cur[0].append(txt + ' sc1'); a('s_branch L_sh2')
    a('s_mov_b64 exec, -1')
    a('s_cbranch_scc1 L_red')
    a('s_sub_u32 s%d, s%d, 5' % (sT0, sS)); a('s_cmp_lt_u32 s%d, 2' % sT0)
    a('s_cselect_b32 s%d, 0x10101010, 0' % sNF); a('s_or_b32 s%d, s%d, 0x01010101' % (sNF, sNF))
    if tight1:
        items(post_o.replace('r0', ''))
        a('s_movk_i32 s%d, %d' % (sCNT, nfast))
        a('s_branch L_t1') if False else None
        lab('L_t1')
        a('buffer_load_dwordx4 %s, v%d, %s, 0 offen offset:768 %s' % (v4(Gm), AML, srd(sWS), pl))
        a('buffer_load_dwordx4 %s, v%d, %s, 0 offen %s' % (v4(Gd), AP1, srd(sWS), pl))
        a('s_sub_u32 s%d, s%d, 1' % (sCNT, sCNT)); a('s_cbranch_scc1 L_p1s')
        a('s_waitcnt vmcnt(1)'); tagcheck(Gm, 's[4:5]')
        a('v_and_b32 v%d, 0xffff0000, v%d' % (T+15, Gm))
        a('s_waitcnt vmcnt(0)'); tagcheck(Gd)
        a('s_or_b64 vcc, vcc, s[4:5]')
        a('s_cbranch_vccnz L_t1')
        lab('L_p1x')
        with cold():
            lab('L_p1s')
            a('s_waitcnt vmcnt(0)')
            slow('L_p1', [(Gm, AML, 768), (Gd, AP1, 0)], True, 'L_p1y', 1)
            lab('L_p1y')
            a('v_and_b32 v%d, 0xffff0000, v%d' % (T+15, Gm))
            a('s_nop 0')
            a('s_branch L_p1x')
        issued.extend(['r0m', 'r0'])
    else:
        items(post_o)
        wait('r0m'); tagcheck(Gm, 's[4:5]')
        wait('r0'); tagcheck(Gd)
        a('v_and_b32 v%d, 0xffff0000, v%d' % (T+15, Gm))
        a('s_or_b64 vcc, vcc, s[4:5]')
        a('s_cbranch_vccnz L_p1s')
        lab('L_p1x')
        with cold():
            lab('L_p1s')
            for j in (1, 2):
                if 'r%d' % j in issued:
                    gd, gm = [(Gd, Gm), (PQ, PQ+4), (PQ+8, PQ+12)][j]
                    wait('r%dm' % j); tagcheck(gm, 's[4:5]')
                    wait('r%d' % j); tagcheck(gd)
                    a('s_nop 0'); a('s_or_b64 vcc, vcc, s[4:5]')
                    a('s_cbranch_vccnz L_r%d' % j)
                    for k in range(4): a('v_mov_b32 v%d, v%d' % (Gd+k, gd+k))
                    for k in range(3): a('v_mov_b32 v%d, v%d' % (Gm+k, gm+k))
                    a('s_branch L_p1y')
                    lab('L_r%d' % j)
            slow('L_p1', [(Gm, AML, 768), (Gd, AP1, 0)], True, 'L_p1y')
            lab('L_p1y')
            a('v_and_b32 v%d, 0xffff0000, v%d' % (T+15, Gm))
            a('s_nop 0')
            a('s_branch L_p1x')
    stamp('p1')
    a('s_cmp_ge_u32 s%d, 5' % sS); a('s_cbranch_scc1 L_hpath')
    def ftail(third, sfx):
        cvt(P, Gd, Gd+1); cvt(P+1, Gd+2, Gd+3)
        perms(A4[0], P, SLO); perms(A4[1], P, SHI)
        wait('f7')
        mfma(ACA, A4[0], FF, True); mfma(ACB, A4[0], FF+16, True)
        perms(A4[2], P+1, SLO)
        mfma(ACA, A4[1], FF+4, False); mfma(ACB, A4[1], FF+20, False)
        perms(A4[3], P+1, SHI)
        mfma(ACA, A4[2], FF+8, False); mfma(ACB, A4[2], FF+24, False)
        mfma(ACA, A4[3], FF+12, False); mfma(ACB, A4[3], FF+28, False)
        a('v_and_b32 v%d, 0xffffff00, v%d' % (Gm+2, Gm+2))
        a('v_cmp_ne_u32 s[22:23], s%d, v%d' % (sXC, Gm+2))
        a('s_nop 3')
        dwrite(FP)
        a('s_waitcnt lgkmcnt(0)')
        stamp('fmm')
        a('s_barrier')
        a('ds_read_b128 %s, v%d offset:%d' % (v4(T), LCB, FP))
        a('s_cmp_eq_u64 s[22:23], 0')
        a('s_waitcnt lgkmcnt(0)')
        for ctl in (X1c, X2c) + ((HM,) if third else ()):
            for j in range(4): dpp('v_add_f32', T+j, T+j, T+j, ctl)
        a('s_mov_b32 exec_lo, s%d' % sNF); a('s_mov_b32 exec_hi, s%d' % sNF)
        tag(T)
        a('buffer_store_dwordx4 %s, v%d, %s, s%d offen sc1' % (v4(T), AFS, srd(sWS), sREC))
        stamp('fpub')
        if stamps and probe is None and 'ack' not in skip: a('s_waitcnt vmcnt(0)'); stamp('ack')
        if wbl and third:
            a('s_cbranch_scc0 L_em')
            a('s_or_b32 s%d, s%d, s%d' % (sT0, sS, sW)); a('s_cbranch_scc1 L_done')
            a('buffer_wbl2 sc1'); a('s_branch L_done')
        if spread and not third:
            a('s_cbranch_scc0 L_em')
            a('s_lshl_b32 s%d, s%d, 2' % (sT0, sS)); a('s_add_u32 s%d, s%d, s%d' % (sT0, sT0, sW))
            a('s_cmp_lg_u32 s%d, 30' % sT0); a('s_cbranch_scc1 L_done')
            a('s_mov_b64 exec, -1')
            a('s_mov_b32 s%d, s%d' % (sREC, sHM)); a('s_branch L_red3')
        elif clean:
            a('s_cbranch_scc0 L_em')
            a('s_cmp_eq_u32 s%d, 3' % sW); a('s_cbranch_scc1 L_em')
            a('s_branch L_done') if stamps or probe is not None else a('s_endpgm')
        elif stamps or probe is not None:
            a('s_cbranch_scc1 L_done'); a('s_branch L_em')
        else:
            a('s_cbranch_scc0 L_em'); a('s_endpgm')
    Mp, Mx, Wt = T+15, T+13, T+14
    dpp('v_max_f32', Mx, Mp, Mp, X1c)
    a('s_nop 1'); dpp('v_max_f32', Mx, Mx, Mx, X2c)
    a('s_nop 1'); dpp('v_max_f32', Mx, Mx, Mx, HM)
    a('v_sub_f32 v%d, v%d, v%d' % (Wt, Mp, Mx)); a('v_mul_f32 v%d, s%d, v%d' % (Wt, sLG, Wt)); a('v_exp_f32 v%d, v%d' % (Wt, Wt))
    a('s_nop 0')
    a('v_mul_f32 v%d, v%d, v%d' % (Mx, Wt, Gm+1))
    for j in range(4): a('v_mul_f32 v%d, v%d, v%d' % (Gd+j, Wt, Gd+j))
    for ctl in (X1c, X2c):
        dpp('v_add_f32', Mx, Mx, Mx, ctl)
        for j in range(4): dpp('v_add_f32', Gd+j, Gd+j, Gd+j, ctl)
    dpp('v_add_f32', Mx, Mx, Mx, HM)
    a('v_rcp_f32 v%d, v%d' % (Mx, Mx))
    for j in range(4): dpp('v_add_f32', Gd+j, Gd+j, Gd+j, HM)
    for j in range(4): a('v_mul_f32 v%d, v%d, v%d' % (Gd+j, Mx, Gd+j))
    ftail(True, 'a')
    lab('L_hpath')
    for ctl in (X1c, X2c, HM):
        for j in range(4): dpp('v_add_f32', Gd+j, Gd+j, Gd+j, ctl)
    cvt(P, Gd, Gd+1); cvt(P+1, Gd+2, Gd+3)
    unpack(Gd, P); unpack(Gd+2, P+1)
    for j in range(4): a('v_mul_f32 v%d, %s, v%d' % (T+12+j, f32(-LOG2E), Gd+j))
    for j in range(4): a('v_exp_f32 v%d, v%d' % (T+12+j, T+12+j))
    for j in range(4): a('v_add_f32 v%d, 1.0, v%d' % (T+12+j, T+12+j))
    for j in range(4): a('v_rcp_f32 v%d, v%d' % (T+12+j, T+12+j))
    for j in range(4): a('v_mul_f32 v%d, v%d, v%d' % (Gd+j, Gd+j, T+12+j))
    ftail(False, 'b')
    lab('L_red')
    XA, XB, AO, AP2, XF = 72, 73, 74, 75, 76
    a('s_mov_b64 s[22:23], -1')
    a('s_cmp_eq_u32 s%d, 3' % sW); a('s_cbranch_scc1 L_em')
    lab('L_red2')
    a('s_sub_u32 s%d, s%d, 5' % (sQO, sS)); a('s_mul_i32 s%d, s%d, 5' % (sQO, sQO)); a('s_add_u32 s%d, s%d, s%d' % (sQO, sQO, sHM)); a('s_sub_u32 s%d, s%d, 27' % (sQO, sQO))
    if spread:
        a('s_cmp_lg_u32 s%d, 0' % sW); a('s_cbranch_scc1 L_done')
        a('s_add_u32 s%d, s%d, 27' % (sREC, sQO))
    else:
        a('s_mul_i32 s%d, s%d, %d' % (sQO, sQO, 4 if r4 else 3)); a('s_add_u32 s%d, s%d, s%d' % (sREC, sQO, sW))
    a('s_cmp_ge_u32 s%d, 40' % sREC); a('s_cbranch_scc1 L_done')
    lab('L_red3')
    base(sOUT, 20); size(sOUT, 1280)
    a('v_and_b32 v%d, 3, v%d' % (T+2, LN_)); a('v_lshrrev_b32 v%d, 2, v%d' % (T+3, LN_))
    a('v_lshlrev_b32 v%d, 7, v%d' % (AP2, T+3)); a('v_lshl_add_u32 v%d, v%d, 4, v%d' % (AP2, T+2, AP2))
    a('s_lshl_b32 s%d, s%d, 13' % (sQO, sREC)); a('s_add_u32 s%d, s%d, %d' % (sQO, sQO, R2)); a('v_add_u32 v%d, s%d, v%d' % (AP2, sQO, AP2))
    a('s_lshl_b32 s%d, s%d, 5' % (sQO, sREC)); a('v_lshl_add_u32 v%d, v%d, 3, s%d' % (AO, T+2, sQO))
    a('buffer_load_dwordx2 %s, v%d, %s, 0 offen' % (v2(XF), AO, srd(sX)))
    if otouch: a('buffer_load_dword v%d, v%d, %s, 0 offen %s' % (TCH, AO, srd(sOUT), otouch if isinstance(otouch, str) else ''))
    a('v_and_b32 v%d, 1, v%d' % (T+4, Gq)); a('v_lshl_add_u32 v%d, v%d, 1, v%d' % (AO, T+4, AO))
    a('v_lshlrev_b32 v%d, 4, v%d' % (T+4, T+4)); a('v_sub_u32 v%d, 16, v%d' % (T+4, T+4))
    for j in range(12, 16): a('v_mov_b32 v%d, 0' % (KK+j))
    a('s_waitcnt vmcnt(0)')
    a('v_lshlrev_b32 v%d, v%d, v%d' % (XA, T+4, XF)); a('v_lshlrev_b32 v%d, v%d, v%d' % (XB, T+4, XF+1))
    a('v_and_b32 v%d, 0xffff0000, v%d' % (XA, XA)); a('v_and_b32 v%d, 0xffff0000, v%d' % (XB, XB))
    if delay2: a('s_sleep %d' % delay2)
    PM = [32, 34, 36, 38]
    for j in range(3): a('s_mov_b64 s[%d:%d], -1' % (PM[j], PM[j]+1))
    a('s_mov_b32 s%d, -1' % PM[3]); a('s_mov_b32 s%d, 0xfff' % (PM[3]+1))
    a('s_mov_b32 s%d, %d' % (sCNT, SPIN))
    a('s_movk_i32 s%d, 4096' % sQO)
    if depth2 == 1:
        lab('L_p2')
        for j in range(4):
            a('s_mov_b64 exec, s[%d:%d]' % (PM[j], PM[j]+1)); a('s_cbranch_execz L_p2s%d' % j)
            a('buffer_load_dwordx4 %s, v%d, %s, %s offen offset:%d %s' % (v4(KK+4*j), AP2, srd(sWS), ('s%d' % sQO) if j >= 2 else '0', 2048*(j & 1), p2f))
            lab('L_p2s%d' % j)
        stamp('lastiss')
        a('s_sub_u32 s%d, s%d, 1' % (sCNT, sCNT)); a('s_cbranch_scc1 L_p2x')
        a('s_waitcnt vmcnt(0)')
        for j in range(4):
            a('s_mov_b64 exec, s[%d:%d]' % (PM[j], PM[j]+1))
            tagcheck(KK+4*j, 's[%d:%d]' % (PM[j], PM[j]+1))
        a('s_or_b64 s[4:5], s[%d:%d], s[%d:%d]' % (PM[0], PM[0]+1, PM[1], PM[1]+1)); a('s_or_b64 s[4:5], s[4:5], s[%d:%d]' % (PM[2], PM[2]+1))
        a('s_or_b64 s[4:5], s[4:5], s[%d:%d]' % (PM[3], PM[3]+1))
        if backoff2:
            a('s_cbranch_scc0 L_p2x'); a('s_sleep %d' % backoff2); a('s_branch L_p2')
        else:
            a('s_cbranch_scc1 L_p2')
    else:
        SETS = [VV + 16*k for k in range(depth2)]
        def issue(G):
            for j in range(4):
                a('s_or_b64 exec, s[%d:%d], 1' % (PM[j], PM[j]+1))
                a('buffer_load_dwordx4 %s, v%d, %s, %s offen offset:%d %s' % (v4(G+4*j), AP2, srd(sWS), ('s%d' % sQO) if j >= 2 else '0', 2048*(j & 1), p2f))
        for k in range(depth2 - 1):
            issue(SETS[k]); a('s_sleep %d' % gap2)
        lab('L_p2')
        for k in range(depth2):
            issue(SETS[(k + depth2 - 1) % depth2])
            stamp('lastiss')
            a('s_waitcnt vmcnt(%d)' % (4*(depth2 - 1)))
            G = SETS[k]
            for j in range(4):
                a('s_mov_b64 exec, s[%d:%d]' % (PM[j], PM[j]+1)); a('s_cbranch_execz L_p2c%d_%d' % (k, j))
                tagcheck(G+4*j, 's[%d:%d]' % (PM[j], PM[j]+1))
                for c in range(4): a('v_mov_b32 v%d, v%d' % (KK+4*j+c, G+4*j+c))
                lab('L_p2c%d_%d' % (k, j))
            a('s_or_b64 s[4:5], s[%d:%d], s[%d:%d]' % (PM[0], PM[0]+1, PM[1], PM[1]+1)); a('s_or_b64 s[4:5], s[4:5], s[%d:%d]' % (PM[2], PM[2]+1))
            a('s_or_b64 s[4:5], s[4:5], s[%d:%d]' % (PM[3], PM[3]+1))
            a('s_cbranch_scc0 L_p2x')
        a('s_sub_u32 s%d, s%d, 1' % (sCNT, sCNT)); a('s_cbranch_scc0 L_p2')
    lab('L_p2x')
    stamp('p2')
    a('s_mov_b64 exec, -1')
    A_, B_ = KK, KK+8
    for j in range(4): a('v_add_f32 v%d, v%d, v%d' % (A_+j, A_+j, A_+4+j))
    for j in range(4): a('v_add_f32 v%d, v%d, v%d' % (B_+j, B_+j, B_+4+j))
    for j in range(4): a('v_permlane32_swap_b32 v%d, v%d' % (A_+j, B_+j))
    for j in range(4): a('v_add_f32 v%d, v%d, v%d' % (A_+j, A_+j, B_+j))
    a('v_permlane16_swap_b32 v%d, v%d' % (A_, A_+1)); a('s_nop 0'); a('v_permlane16_swap_b32 v%d, v%d' % (A_+2, A_+3))
    a('v_add_f32 v%d, v%d, v%d' % (A_, A_, A_+1)); a('v_add_f32 v%d, v%d, v%d' % (A_+2, A_+2, A_+3))
    for k in (4, 8):
        a('s_nop 0'); dpp('v_add_f32', A_, A_, A_, 'row_ror:%d' % k); dpp('v_add_f32', A_+2, A_+2, A_+2, 'row_ror:%d' % k)
    cvt(A_, A_, A_+2); a('v_mov_b32 v%d, v%d' % (A_+1, A_))
    a('s_nop 1')
    a('v_permlane32_swap_b32 v%d, v%d' % (A_, A_+1))
    unpack(B_, A_); unpack(B_+2, A_+1)
    a('v_add_f32 v%d, v%d, v%d' % (B_, B_, XA)); a('v_add_f32 v%d, v%d, v%d' % (B_+1, B_+1, XB))
    cvt(A_, B_, B_+1); unpack(B_, A_)
    a('v_add_f32 v%d, v%d, v%d' % (B_, B_, B_+2)); a('v_add_f32 v%d, v%d, v%d' % (B_+1, B_+1, B_+3))
    cvt(A_, B_, B_+1)
    if clean or wbl:
        a('s_mov_b32 s%d, 0x05040100' % sT0); a('s_mov_b32 s%d, 0x07060302' % sT1)
        a('v_permlane16_swap_b32 v%d, v%d' % (A_, A_+1))
        a('s_mov_b64 exec, 15')
        a('v_perm_b32 v%d, v%d, v%d, s%d' % (A_+2, A_+1, A_, sT0)); a('v_perm_b32 v%d, v%d, v%d, s%d' % (A_+3, A_+1, A_, sT1))
        a('buffer_store_dwordx2 %s, v%d, %s, 0 offen sc1' % (v2(A_+2), AO, srd(sOUT)))
    else:
        a('s_mov_b64 exec, 0x000f000f')
        a('buffer_store_short v%d, v%d, %s, 0 offen' % (A_, AO, srd(sOUT)))
        a('buffer_store_short_d16_hi v%d, v%d, %s, 0 offen offset:4' % (A_, AO, srd(sOUT)))
    a('s_cmp_lg_u32 s%d, 0' % sREC); a('s_cbranch_scc1 L_done')
    a('s_mov_b64 exec, 1')
    a('buffer_store_dword v%d, v%d, %s, 0 offen %s' % (NON, AO, srd(sWS), 'sc1' if clean or wbl else ''))
    a('s_branch L_done')
    L.extend(COLD)
    lab('L_em')
    mirror('L_emm', True, True)
    if r4:
        a('s_cmp_ge_u32 s%d, s%d' % (sS, sIDLE)); a('s_cbranch_scc1 L_red2')
    if spread:
        a('s_lshl_b32 s%d, s%d, 2' % (sT0, sS)); a('s_add_u32 s%d, s%d, s%d' % (sT0, sT0, sW))
        a('s_cmp_lg_u32 s%d, 30' % sT0); a('s_cbranch_scc1 L_done')
        a('s_mov_b32 s%d, s%d' % (sREC, sHM)); a('s_branch L_red3')
    lab('L_done')
    if probe is not None:
        stamp('end')
        a('s_waitcnt vmcnt(0) lgkmcnt(0)')
        a('s_sub_u32 s76, s76, s74'); a('s_mul_i32 s76, s76, %d' % amp); a('s_add_u32 s76, s76, %d' % base_ticks)
        lab('L_spin')
        a('s_memrealtime s[78:79]'); a('s_waitcnt lgkmcnt(0)')
        a('s_sub_u32 s78, s78, s74'); a('s_cmp_lt_u32 s78, s76'); a('s_cbranch_scc1 L_spin')
    elif stamps:
        a('s_mov_b64 exec, -1')
        stamp('pend')
        a('s_waitcnt vmcnt(0)')
        stamp('end')
        a('s_waitcnt vmcnt(0) lgkmcnt(0)')
        a('v_mov_b32 v%d, 0' % T)
        for j, r in enumerate(st): a('v_writelane_b32 v%d, s%d, %d' % (T, r, j))
        a('s_mul_i32 s3, s2, %d' % (5 if tlb else 4)); a('s_add_u32 s3, s3, s%d' % sW); a('s_lshl_b32 s3, s3, 8'); a('s_add_u32 s3, s3, 0x8000000')
        a('buffer_store_dword v%d, v%d, %s, s3 offen' % (T, AX1, srd(sWS)))
    lab('L_end')
    a('s_endpgm')
    L += ['.section .rodata,"a"', '.p2align 6', '.amdhsa_kernel %s_kernel' % NAME,
          '  .amdhsa_next_free_vgpr %d' % NV, '  .amdhsa_next_free_sgpr 102', '  .amdhsa_accum_offset %d' % ((NV+3)//4*4),
          '  .amdhsa_group_segment_fixed_size 0', '  .amdhsa_kernarg_size 88', '  .amdhsa_user_sgpr_count 2',
          '  .amdhsa_user_sgpr_kernarg_segment_ptr 1', '  .amdhsa_system_sgpr_workgroup_id_x 1', '.end_amdhsa_kernel']
    if stamps and probe is None: L.insert(1, '; STAMPS ' + ' '.join(names))
    return '\n'.join(L) + '\n', names

def emit(name, probes=(), **kw):
    for sfx, extra in [('', {}), ('_s', dict(stamps=True))] + [('_p' + p, dict(probe=p)) for p in probes]:
        s, ns = gen(**kw, **extra); open(name + sfx + '.s', 'w').write(s)
        e = check(s)
        if e: print(name + sfx, 'HAZARDS'); [print('  ', x) for x in e]
```

```python
import gen9
M4 = 'i2 i1 i0 w1 w0 s2 s1 s0 g1 g0'
PA = 'k4 k5 k6 | Wk0 k7 Wk1 u0 Wk2 p0 u1 Wk3 u2 Wk4 p1 v0 Wk5 v1 Wk6 p2 v2 Wk7 v3 p3'
PT = dict(setup='t2', p0='v4', p1='v5 v6', p2='v7 f0', p3='f1', qs='f2', dot='f3', s='f4', e='f5', pv1='f6', pv3='f7')
FE = dict(setup='t2', p0='v4', p1='v5 v6', p2='v7 f0', p3='f1', qs='f2 f3', dot='f4', s='f5', e='f6', pv1='f7')
FE2 = dict(setup='t2', p0='v4', p1='v5 v6', p2='v7 f0', p3='f1 f2', qs='f3 f4', dot='f5', s='f6', e='f7')
P0E = 'k4 k5 k6 | Wk0 k7 Wk1 p0 u0 Wk2 u1 Wk3 p1 u2 Wk4 v0 Wk5 p2 v1 Wk6 v2 Wk7 v3 p3'
B = dict(kmap=M4, nfast=32, tight1=True, pl='sc1', tflags='sc1', post_o='Wf6 r0', probe='end', wmax=True, post_a=PA, pts=PT)
w = lambda n, **kw: open(n + '.s', 'w').write(gen9.gen(**dict(B, **kw))[0])
w('b3_fe', pts=FE)
w('b3_fe2', pts=FE2)
w('b3_fe_p0', pts=FE, post_a=P0E)
w('b3_fe_nt_w7', pts=dict(FE, setup=''), t0=False, post_o='Wf7 r0')
w('b3_k2210', pts=FE, kpts=(2,2,1,0), post_a='k5 k6 k7 | Wk1 u0 Wk2 p0 u1 Wk3 u2 Wk4 p1 v0 Wk5 v1 Wk6 p2 v2 Wk7 v3 p3')
w('b4_deep1', post_a='k4 k5 k6 k7 | Wk0 u0 Wk1 p0 u1 Wk2 u2 Wk3 p1 v0 Wk4 v1 Wk5 p2 v2 Wk6 v3 Wk7 v4 p3', pts=dict(setup='t2', p0='v5', p1='v6 v7', p2='f0', p3='f1', qs='f2 f3', dot='f4', s='f5', e='f6', pv1='f7'))
w('b4_deep2', post_a='k4 k5 k6 k7 | Wk1 p0 u0 u1 Wk2 u2 Wk3 p1 v0 Wk4 v1 Wk5 p2 v2 Wk6 v3 Wk7 v4 p3', pts=dict(setup='t2', p0='v5', p1='v6 v7', p2='f0', p3='f1', qs='f2 f3', dot='f4', s='f5 f6', e='f7'))
w('b4_k1211', pts=FE, kpts=(1,2,1,1), post_a='k5 k6 | Wk0 k7 Wk1 u0 Wk2 p0 u1 Wk3 u2 Wk4 p1 v0 Wk5 v1 Wk6 p2 v2 Wk7 v3 p3')
w('b4_k1300', pts=FE, kpts=(1,3,0,0))
w('b4_5polls', pts=FE, post_a='k4 k5 k6 | Wk0 k7 Wk1 p0 u0 Wk2 p1 u1 Wk3 u2 Wk4 p2 v0 Wk5 v1 Wk6 v2 Wk7 p3 v3')
```

```python
import gen9, shutil
M4 = 'i2 i1 i0 w1 w0 s2 s1 s0 g1 g0'
FE = dict(setup='t2', p0='v4', p1='v5 v6', p2='v7 f0', p3='f1', qs='f2 f3', dot='f4', s='f5', e='f6', pv1='f7')
B = dict(kmap=M4, nfast=32, tight1=True, pl='sc1', tflags='sc1', post_o='Wf6 r0', probe='end', wmax=True, pts=FE)
def w(n, **kw):
    open(n + '.s', 'w').write(gen9.gen(**dict(B, **kw))[0]); shutil.copy(n + '.s', n + '_a.s')
w('c_2220', kpts=(2,2,2,0), post_a='k6 k7 | Wk1 u0 Wk2 u1 Wk3 p0 u2 Wk4 v0 Wk5 p1 v1 Wk6 v2 p2 Wk7 v3 p3')
w('c_3210', kpts=(3,2,1,0), post_a='k6 k7 | Wk1 u0 Wk2 u1 Wk3 p0 u2 Wk4 v0 Wk5 p1 v1 Wk6 v2 p2 Wk7 v3 p3')
w('c_3200', kpts=(3,2,0,0), post_a='k5 k6 k7 | Wk1 u0 Wk2 p0 u1 Wk3 u2 Wk4 p1 v0 Wk5 v1 Wk6 p2 v2 Wk7 v3 p3')
w('c_2210d', kpts=(2,2,1,0), post_a='k5 k6 k7 u0 | Wk1 u1 Wk2 p0 u2 Wk3 v0 Wk4 p1 v1 Wk5 v2 Wk6 p2 v3 Wk7 v4 p3', pts=dict(FE, p0='v5', p1='v6 v7', p2='f0'))
w('c_2210p', kpts=(2,2,1,0), post_a='k5 k6 k7 | Wk2 p0 u0 u1 Wk3 u2 Wk4 p1 v0 Wk5 v1 Wk6 p2 v2 Wk7 v3 p3')
w('c_2210', kpts=(2,2,1,0), post_a='k5 k6 k7 | Wk1 u0 Wk2 p0 u1 Wk3 u2 Wk4 p1 v0 Wk5 v1 Wk6 p2 v2 Wk7 v3 p3')
```

```python
import gen9, shutil
M4 = 'i2 i1 i0 w1 w0 s2 s1 s0 g1 g0'
FE = dict(setup='t2', p0='v4', p1='v5 v6', p2='v7 f0', p3='f1', qs='f2 f3', dot='f4', s='f5', e='f6', pv1='f7')
PA = 'k6 k7 | Wk1 u0 Wk2 u1 Wk3 p0 u2 Wk4 v0 Wk5 p1 v1 Wk6 v2 p2 Wk7 v3 p3'
B = dict(kmap=M4, nfast=32, tight1=True, pl='sc1', tflags='sc1', post_o='Wf6 r0', probe='end', wmax=True, pts=FE, kpts=(2,2,2,0), post_a=PA)
def w(n, g=gen9, **kw):
    open(n + '.s', 'w').write(g.gen(**dict(B, **kw))[0]); shutil.copy(n + '.s', n + '_a.s')
w('e_d2', depth2=2, gap2=4)
w('e_d3', depth2=3, gap2=3)
w('e_m2', kmap='i2 i1 i0 s2 s1 s0 w1 w0 g1 g0')
w('e_m11', kmap='i2 i1 i0 s2 s1 s0 g1 g0 w1 w0')
w('e_m4b', kmap='i2 i1 g1 i0 w1 w0 s2 s1 s0 g0')
w('e_nt', t0=False, pts=dict(FE, setup=''))
w('e_w7', post_o='Wf7 r0')
w('e_w5', post_o='Wf5 r0')
w('e_x', pts=dict(setup='t2', p0='v4', p1='v5 v6', p2='v7 f0', p3='f1', qs='f2', dot='f3', s='f4', o='f5 f6 f7'), post_o='Wf6 r0')
w('e_dl', delay2=24)
```

```python
import sys, struct
from hazcheck import check
NAME = 'parallel_sum__sliding_block_cached__dense_activation_silu__decode'
HDR = open('cdna_kernels/%s.s.ref' % NAME).read().split('; Override launch')[0]
def f32(x): return '0x%08x' % struct.unpack('<I', struct.pack('<f', x))[0]
LOG2E = 1.4426950408889634
XN, QP, HP, QB, OP, ML, FP, QX = 0, 1280, 3328, 5376, 5632, 9728, 9792, 13888
LDS_BYTES = 83968
R0 = 4096
R1 = R0 + 256*512
R2 = R1 + 256*1024
RB = 1 << 20
SPIN = 1 << 18

def gen(stamps=False, flags='nt', wflags='nt', qflags=None, probe=None, amp=10, base_ticks=5000, lds=LDS_BYTES,
        kpts=(1, 2, 1, 0), post_a=None, pts=None, post_o='Wf5 r0', nfast=16, backoff2=0, delay2=0, skip=(), fence0=True, stream=None, tflags='', t0=True, kmap=None, kx=None, qmap=0, spread=False, tight1=False, depth2=1, gap2=2, karg2=False, adapt=None, qnib=True, clean=False, otouch=False, r4=False, eflags='', xflags='', pflags='', pl='nt', swaps=(), tlb=0, tlbd=0, hmap=0, p2f='sc1', wbl=False, wmax=False, fsw=False):
    qflags = wflags if qflags is None else qflags
    L = []; COLD = []
    cur = [L]
    def a(s): cur[0].append('  ' + s)
    def lab(s): cur[0].append(s + ':')
    class cold:
        def __enter__(self): cur[0] = COLD
        def __exit__(self, *x): cur[0] = L
    st = []; names = []; pool = list(range(74, 95, 2)) + [12, 14, 16, 18, 0]; cnt = [0]; slot = {}
    def stamp(name=''):
        k = cnt[0]; cnt[0] += 1
        if probe is not None:
            if k == 0: a('s_memrealtime s[74:75]')
            elif name == probe: a('s_memrealtime s[76:77]')
        elif stamps and name not in skip:
            if name not in slot: slot[name] = pool.pop(0); st.append(slot[name]); names.append(name)
            r = slot[name]; a('s_memrealtime s[%d:%d]' % (r, r+1))
    def vstamp(reg, neg, name):
        if stamps and probe is None and name not in skip:
            r = pool.pop(0)
            a('s_sub_u32 s%d, %d, s%d' % (r, neg, reg))
            a('s_mul_i32 s%d, s%d, 100' % (r, r)); a('s_waitcnt lgkmcnt(0)'); a('s_add_u32 s%d, s%d, s74' % (r, r)); st.append(r); names.append(name)
    L.append(HDR.rstrip())
    L.append('; @launch grid=(256,1,1) block=(%d,1,1) lds=%d' % (320 if tlb else 256, lds))
    L.append('.amdgcn_target "amdgcn-amd-amdhsa--gfx950"'); L.append('.text')
    L.append('.globl %s_kernel' % NAME); L.append('.p2align 8'); L.append('.type %s_kernel,@function' % NAME)
    lab('%s_kernel' % NAME)
    M, Gq, LN_, AWQ, AKV, AF, AW1, AX4, AX1, LXQ, LXW, LD, LH, AP1, NON = range(1, 16)
    SLO, SHI = 16, 20
    ACA, ACB = 24, 28
    AB = [32, 36]
    T = 40
    X4, X1 = 64, 68
    XV, XW = 72, 77
    AP0, AML, PART, C16, LCB, AFS, AOS, AH, TCH, ATC, PRE = range(80, 91)
    WQ, W1, KK, VV, FF = 96, 116, 128, 160, 192
    PQ = 224
    NV = 240
    sH, sS, sW = 24, 25, 26
    sX, sK, sV, sWQ, sW1, sF, sWS, sOUT, sW1b = 28, 32, 36, 40, 44, 48, 52, 56, 60
    sQO, sKVO, sFO, sW1O, sT0, sT1, sLG, sCNT, sKVO2, sFO2, sREC, sNF = 64, 65, 66, 67, 68, 69, 27, 3, 70, 71, 72, 73
    sR0, sR1, sXC, sIDLE = 100, 101, 99, 98
    sTG, sCK = 6, 10
    sHM, sHS = 97, 96
    srd = lambda r: 's[%d:%d]' % (r, r+3)
    v4 = lambda r: 'v[%d:%d]' % (r, r+3)
    v2 = lambda r: 'v[%d:%d]' % (r, r+1)
    dpp = lambda op, d, s0, s1, ctl, bm=0xf, rm=0xf: a('%s_dpp v%d, v%d, v%d %s row_mask:0x%x bank_mask:0x%x' % (op, d, s0, s1, ctl, rm, bm))
    X1c, X2c, HM = 'quad_perm:[1,0,3,2]', 'quad_perm:[2,3,0,1]', 'row_half_mirror'
    def ex(lo, hi=None):
        hi = lo if hi is None else hi
        a('s_mov_b32 exec_lo, 0x%x' % lo); a('s_mov_b32 exec_hi, 0x%x' % hi)
    def base(r, p): a('s_mov_b64 s[%d:%d], s[%d:%d]' % (r, r+1, p, p+1))
    def size(r, n): a('s_mov_b32 s%d, 0x%x' % (r+2, n)); a('s_mov_b32 s%d, 0x20000' % (r+3))
    def unpack(dst, src):
        a('v_lshlrev_b32 v%d, 16, v%d' % (dst, src)); a('v_and_b32 v%d, 0xffff0000, v%d' % (dst+1, src))
    def cvt(d, x, y): a('v_cvt_pk_bf16_f32 v%d, v%d, v%d' % (d, x, y))
    def rnd(r): cvt(r, r, r); a('v_and_b32 v%d, 0xffff0000, v%d' % (r, r))
    NQ = 92
    def qnon(dst, parity_bit):
        a('v_bfe_u32 v%d, v%d, %d, 1' % (dst, LN_, parity_bit)); a('v_lshlrev_b32 v%d, 4, v%d' % (dst, dst))
        a('v_lshrrev_b32 v%d, v%d, v%d' % (dst, dst, NON))
        for k in range(1, 4): a('v_lshrrev_b32 v%d, %d, v%d' % (dst+k, 4*k, dst))
    def qtag(r, nq):
        for k in range(4): a('v_bfi_b32 v%d, 15, v%d, v%d' % (r+k, nq+k, r+k))
    def qcheck(G, dst='vcc'):
        if not qnib: return tagcheck(G, dst)
        a('v_xor_b32 v%d, v%d, v%d' % (T+12, G, NQ))
        for k in range(1, 4): a('v_bitop3_b32 v%d, v%d, v%d, v%d bitop3:0xbe' % (T+12, G+k, NQ+k, T+12))
        a('v_and_b32 v%d, 15, v%d' % (T+12, T+12))
        a('v_cmp_ne_u32 %s, 0, v%d' % (dst, T+12))
    def tag(r):
        for k in range(4): a('v_perm_b32 v%d, v%d, v%d, s%d' % (r+k, r+k, NON, sTG+k))
    def tagcheck(G, dst='vcc'):
        a('v_perm_b32 v%d, v%d, v%d, s%d' % (T+12, G+1, G, sCK))
        a('v_perm_b32 v%d, v%d, v%d, s%d' % (T+13, G+3, G+2, sCK))
        a('v_perm_b32 v%d, v%d, v%d, s%d' % (T+12, T+13, T+12, sCK+1))
        a('v_cmp_ne_u32 %s, v%d, v%d' % (dst, T+12, NON))
    stamp('start')
    a('s_load_dwordx16 s[4:19], s[0:1], 0')
    if not karg2:
        a('s_load_dwordx2 s[20:21], s[0:1], 64')
        a('s_load_dwordx2 s[%d:%d], s[0:1], 80' % (sWS, sWS+1))
    a('s_getpc_b64 s[28:29]')
    lab('L_pc')
    a('s_cmpk_ge_u32 s2, 256'); a('s_cbranch_scc1 L_end')
    a('v_lshlrev_b32 v%d, 7, v0' % (T+8))
    a('v_min_u32 v%d, L_end - L_pc, v%d' % (T+8, T+8))
    a('v_lshrrev_b32 v%d, 6, v0' % T)
    a('v_and_b32 v%d, 63, v0' % LN_)
    a('v_readfirstlane_b32 s%d, v%d' % (sW, T))
    a('global_load_dword v%d, v%d, s[28:29] %s' % (PRE, T+8, pflags))
    a('v_and_b32 v%d, 15, v0' % M)
    a('v_bfe_u32 v%d, v0, 4, 2' % Gq)
    if hmap:
        a('s_and_b32 s%d, s2, 7' % sH)
        if hmap == 2: a('s_lshr_b32 s%d, s%d, 1' % (sT0, sH)); a('s_and_b32 s%d, s%d, 2' % (sT0, sT0)); a('s_xor_b32 s%d, s%d, s%d' % (sH, sH, sT0))
        a('s_bfe_u32 s%d, s2, 0x20003' % sT0); a('s_lshl2_add_u32 s%d, s%d, s%d' % (sH, sH, sT0))
    else: a('s_and_b32 s%d, s2, 31' % sH)
    a('s_lshr_b32 s%d, s2, 5' % sS)
    a('v_lshlrev_b32 v%d, 4, v%d' % (AX4, LN_))
    a('v_lshlrev_b32 v%d, 2, v%d' % (AX1, LN_))
    a('v_lshlrev_b32 v%d, 4, v%d' % (T+2, M))
    qa = {0: (80, 20, 4, 1), 1: (80, 4, 16, 1)}.get(qmap, qmap)
    if qa[1] > 64:
        a('v_mul_u32_u24 v%d, %d, v%d' % (T+1, qa[1], T)); a('v_mad_u32_u24 v%d, v%d, %d, v%d' % (T+1, Gq, qa[3], T+1))
    elif qa[3] == 1: a('v_mad_u32_u24 v%d, v%d, %d, v%d' % (T+1, T, qa[1], Gq))
    else: a('v_mul_u32_u24 v%d, %d, v%d' % (T+1, qa[3], Gq)); a('v_mad_u32_u24 v%d, v%d, %d, v%d' % (T+1, T, qa[1], T+1))
    a('v_lshl_add_u32 v%d, v%d, 13, v%d' % (AWQ, T+1, T+2))
    a('s_movk_i32 s%d, 1280' % (sX+2)); a('s_mov_b32 s%d, 0x20000' % (sX+3))
    a('s_mov_b32 s%d, 5242880' % (sWQ+2)); a('s_mov_b32 s%d, 0x20000' % (sWQ+3))
    a('s_mul_i32 s%d, s%d, %d' % (sQO, sS, qa[0]*8192)); a('s_lshl_b32 s%d, s%d, 8' % (sT0, sH)); a('s_add_u32 s%d, s%d, s%d' % (sQO, sQO, sT0))
    if adapt: a('s_memrealtime s[96:97]'); a('s_load_dwordx2 s[56:57], s[0:1], 72')
    if tlb: a('s_cmp_eq_u32 s%d, 4' % sW)
    stamp('pre')
    a('s_waitcnt lgkmcnt(0)')
    stamp('karg')
    if tlb:
        a('s_cbranch_scc1 L_tlb')
        with cold():
            lab('L_tlb')
            if tlbd: a('s_barrier')
            if tlbd > 1: a('s_sleep %d' % tlbd)
            def bump(p, off): a('s_add_u32 s%d, s%d, s%d' % (p, p, off)); a('s_addc_u32 s%d, s%d, 0' % (p+1, p+1))
            a('s_lshl_b32 s%d, s%d, 20' % (sT0, sH)); a('s_add_u32 s%d, s%d, %d' % (sT0, sT0, 3072*256))
            a('s_lshl_b32 s%d, s%d, 15' % (sT1, sS)); a('s_add_u32 s%d, s%d, s%d' % (sT0, sT0, sT1))
            bump(6, sT0); bump(8, sT0)
            if tlb != 3: a('s_load_dword s60, s[6:7], 0')
            a('s_load_dword s61, s[8:9], 0')
            a('s_mul_i32 s%d, s%d, %d' % (sT0, sH, 128*1280)); a('s_mul_i32 s%d, s%d, %d' % (sT1, sS, 16*1280)); a('s_add_u32 s%d, s%d, s%d' % (sT0, sT0, sT1))
            bump(12, sT0); a('s_load_dword s62, s[12:13], 0')
            a('s_mul_i32 s%d, s%d, %d' % (sT0, sS, 80*3456)); bump(16, sT0); a('s_load_dword s63, s[16:17], 0')
            a('s_min_u32 s%d, s%d, 26' % (sT0, sH)); a('s_mul_i32 s%d, s%d, %d' % (sT0, sT0, 64*1280)); bump(18, sT0); a('s_load_dword s64, s[18:19], 0')
            if tlb != 3: a('s_load_dword s65, s[%d:%d], %d' % (sWS, sWS+1, R1))
            if tlb == 2:
                a('s_load_dword s66, s[16:17], %d' % (40*3456)); a('s_load_dword s67, s[18:19], %d' % (32*1280))
                a('s_load_dword s70, s[%d:%d], %d' % (sWS, sWS+1, R2)); a('s_load_dword s71, s[20:21], 0')
            a('s_endpgm')
    issued = []
    def ld(name, text): a(text); issued.append(name)
    def wait(name, extra=''):
        n = len(issued) - 1 - issued.index(name)
        a('s_waitcnt vmcnt(%d)%s' % (n, extra))
    base(sX, 4)
    ld('x4', 'buffer_load_dwordx4 %s, v%d, %s, 0 offen %s' % (v4(X4), AX4, srd(sX), xflags))
    ld('x1', 'buffer_load_dword v%d, v%d, %s, 0 offen offset:1024 %s' % (X1, AX1, srd(sX), xflags))
    base(sWQ, 10)
    for t in range(5):
        ld('wq%d' % t, 'buffer_load_dwordx4 %s, v%d, %s, s%d offen %s' % (v4(WQ+4*t), AWQ, srd(sWQ), sQO, qflags))
        if t < 4: a('s_add_u32 s%d, s%d, 0x%x' % (sQO, sQO, qa[2]*8192))
    if karg2:
        a('s_load_dwordx2 s[20:21], s[0:1], 64')
        a('s_load_dwordx2 s[%d:%d], s[0:1], 80' % (sWS, sWS+1))
    if probe is not None: a('s_mov_b32 s76, s74')
    km = (kmap or 's2 s1 s0 w1 w0 i2 i1 i0 g1 g0').split()
    pos = {f: 9 - j for j, f in enumerate(km)}
    ioff = lambda i: sum(((i >> b) & 1) << (pos['i%d' % b] + 8) for b in range(3))
    if kmap:
        a('v_mov_b32 v%d, v%d' % (AKV, T+2))
        for f, src in (('w', T), ('g', Gq)):
            for b in range(2):
                a('v_bfe_u32 v%d, v%d, %d, 1' % (T+6, src, b)); a('v_lshl_add_u32 v%d, v%d, %d, v%d' % (AKV, T+6, pos[f + str(b)] + 8, AKV))
    else:
        a('v_lshl_add_u32 v%d, v%d, 5, v%d' % (T+6, T, Gq))
        a('v_lshl_add_u32 v%d, v%d, 8, v%d' % (AKV, T+6, T+2))
    base(sK, 6); size(sK, 33554432); size(sWS, 268435456)
    a('s_lshl_b32 s%d, s%d, 20' % (sKVO, sH)); a('s_add_u32 s%d, s%d, %d' % (sKVO, sKVO, 3072*256))
    if pos['s0'] + 1 == pos['s1'] and pos['s1'] + 1 == pos['s2']:
        a('s_lshl_b32 s%d, s%d, %d' % (sT0, sS, pos['s0'] + 8)); a('s_add_u32 s%d, s%d, s%d' % (sKVO, sKVO, sT0))
    else:
        for b in range(3):
            a('s_bfe_u32 s%d, s%d, 0x%x' % (sT0, sS, (1 << 16) | b)); a('s_lshl_b32 s%d, s%d, %d' % (sT0, sT0, pos['s%d' % b] + 8)); a('s_add_u32 s%d, s%d, s%d' % (sKVO, sKVO, sT0))
    if kx is not None:
        assert [pos['i2'], pos['i1'], pos['i0']] == [9, 8, 7]
        a('s_lshr_b32 s%d, s%d, %d' % (sT0, sH, kx)); a('s_and_b32 s%d, s%d, 7' % (sT0, sT0)); a('s_lshl_b32 s%d, s%d, 15' % (sT0, sT0)); a('s_add_u32 s%d, s%d, s%d' % (sKVO, sKVO, sT0))
    a('s_add_u32 s%d, s%d, 4096' % (sKVO2, sKVO))
    a('s_lshl_b32 s%d, s%d, 3' % (sREC, sH)); a('s_add_u32 s%d, s%d, s%d' % (sREC, sREC, sS))
    a('s_lshl_b32 s%d, s%d, 9' % (sR0, sREC)); a('s_add_u32 s%d, s%d, %d' % (sR0, sR0, R0))
    a('s_lshl_b32 s%d, s%d, 10' % (sR1, sREC)); a('s_add_u32 s%d, s%d, %d' % (sR1, sR1, R1))
    a('s_lshl_b32 s%d, s%d, 7' % (sT1, sW)); a('s_add_u32 s%d, s%d, s%d' % (sT1, sT1, sR0))
    a('v_mov_b32 v%d, 0' % (T+11))
    if karg2: a('s_waitcnt lgkmcnt(0)')
    stamp('iss')
    if fence0: a('s_barrier')
    if adapt:
        a('s_movk_i32 s58, 256'); a('s_mov_b32 s59, 0x20000')
        a('s_or_b32 s96, s96, 1')
        a('s_lshl_b32 s%d, s2, 2' % sCNT); a('s_add_u32 s%d, s%d, s%d' % (sCNT, sCNT, sW))
        a('s_and_b32 s97, s%d, 0xffffffe3' % sCNT)
        a('s_cbranch_scc1 L_nost')
        a('v_mov_b32 v%d, s96' % (T+12)); a('v_mov_b32 v%d, s%d' % (T+13, sCNT))
        a('s_mov_b64 exec, 1')
        a('buffer_store_dword v%d, v%d, s[56:59], 0 offen sc1' % (T+12, T+13))
        a('s_mov_b64 exec, -1')
        lab('L_nost')
        a('v_and_b32 v%d, 28, v%d' % (T+12, AX1))
        ld('D', 'buffer_load_dword v%d, v%d, s[56:59], 0 offen sc1' % (PRE+1, T+12))
    ld('E', 'buffer_load_dword v%d, v%d, %s, 0 offen %s' % (NON, T+11, srd(sWS), eflags))
    if t0: ld('t0', 'buffer_load_dword v%d, v%d, %s, s%d offen %s' % (TCH, T+11, srd(sWS), sT1, tflags))
    Gd, Gm = T+8, T+16
    def item(n):
        k, i = n[0], n[1:]
        if k == 'W':
            wait(i)
            if n in ('Wk7', 'Wf7', 'Wf5', 'Wf3'): stamp(n)
            return
        i = int(i)
        if k in 'kv' and kmap:
            o = ioff(i)
            if o >= 4096: a('%s s%d, s%d, %d' % ('s_add_u32' if kx is None else 's_xor_b32', sKVO2, sKVO, o & ~4095))
            ld(n, 'buffer_load_dwordx4 %s, v%d, %s, s%d offen offset:%d %s' % (v4((KK if k == 'k' else VV)+4*i), AKV, srd(sK if k == 'k' else sV), sKVO2 if o >= 4096 else sKVO, o & 4095, flags))
        elif k == 'k': ld(n, 'buffer_load_dwordx4 %s, v%d, %s, s%d offen offset:%d %s' % (v4(KK+4*i), AKV, srd(sK), sKVO2 if i >= 4 else sKVO, 1024*(i & 3), flags))
        elif k == 'v': ld(n, 'buffer_load_dwordx4 %s, v%d, %s, s%d offen offset:%d %s' % (v4(VV+4*i), AKV, srd(sV), sKVO2 if i >= 4 else sKVO, 1024*(i & 3), flags))
        elif k == 'f': ld(n, 'buffer_load_dwordx4 %s, v%d, %s, s%d offen offset:%d %s' % (v4(FF+4*i), AF, srd(sF), sFO2 if i >= 4 else sFO, 1280*(i & 3), wflags))
        elif k == 'p': ld(n, 'buffer_load_dwordx4 %s, v%d, %s, 0 offen %s' % (v4(PQ+4*i), AP0, srd(sWS), pl))
        elif k == 'r':
            gd, gm = [(Gd, Gm), (PQ, PQ+4), (PQ+8, PQ+12)][i]
            ld(n + 'm', 'buffer_load_dwordx4 %s, v%d, %s, 0 offen offset:768 %s' % (v4(gm), AML, srd(sWS), pl))
            ld(n, 'buffer_load_dwordx4 %s, v%d, %s, 0 offen %s' % (v4(gd), AP1, srd(sWS), pl))
        elif k == 'u':
            ld(n, 'buffer_load_dwordx4 %s, v%d, %s, s%d offen %s' % (v4(W1+4*i), AW1, srd(sW1b if i == 2 else sW1), sW1O, wflags))
            if i < 2: a('s_add_u32 s%d, s%d, %d' % (sW1O, sW1O, 32*3456))
        elif k == 't':
            a('s_mov_b64 exec, %d' % {1: 63, 2: 3, 3: 60}[i])
            ld(n, 'buffer_load_dword v%d, v%d, %s, 0 offen %s' % (TCH, ATC, srd(sWS), tflags))
            a('s_mov_b64 exec, -1')
        elif k == 'z': a('s_sleep %d' % i)
        else: raise ValueError(n)
    def items(s):
        for n in s.split(): item(n)
    LATE = ('b', 'qs', 'dot', 's', 'e') + tuple('pv%d' % i for i in range(8))
    def pt(name):
        txt = pts.get(name, '')
        if not txt: return
        if name in LATE:
            a('s_cmp_eq_u32 s%d, 9' % sNF); a('s_cbranch_scc1 L_sk_%s' % name)
            items(txt)
            lab('L_sk_%s' % name)
        else: items(txt)
    nk = [0]
    def morek(n):
        for _ in range(n):
            if nk[0] < 8: item('k%d' % nk[0]); nk[0] += 1
    morek(kpts[0])
    base(sV, 8); base(sW1, 16); base(sW1b, 16); size(sV, 33554432)
    for r in (sW1, sW1b, sF): a('s_mov_b32 s%d, 0x20000' % (r+3))
    for k in range(4): a('s_mov_b32 s%d, 0x%08x' % (sTG+k, 0x07060500 + k))
    a('s_mov_b32 s%d, 0x0c0c0400' % sCK); a('s_mov_b32 s%d, 0x05040100' % (sCK+1))
    a('v_lshrrev_b32 v%d, 3, v%d' % (T+3, M))
    a('v_lshl_add_u32 v%d, v%d, 2, v%d' % (T+4, T+3, Gq))
    a('v_lshl_add_u32 v%d, v%d, 3, v%d' % (T+4, T, T+4))
    a('v_and_b32 v%d, 7, v%d' % (T+5, M))
    a('v_mul_u32_u24 v%d, 3456, v%d' % (AW1, T+4))
    a('v_lshl_add_u32 v%d, v%d, 4, v%d' % (AW1, T+5, AW1))
    a('s_mov_b32 s%d, s%d' % (sHM, sH))
    for x, y in swaps:
        a('s_cmp_eq_u32 s%d, %d' % (sH, x)); a('s_cselect_b32 s%d, %d, s%d' % (sHM, y, sHM))
        a('s_cmp_eq_u32 s%d, %d' % (sH, y)); a('s_cselect_b32 s%d, %d, s%d' % (sHM, x, sHM))
    a('s_cmp_lt_u32 s%d, 5' % sS); a('s_cselect_b32 s%d, s%d, s%d' % (sHS, sH, sHM))
    a('s_lshl_b32 s%d, s%d, 7' % (sT1, sHM))
    a('s_mul_i32 s%d, s%d, %d' % (sW1O, sS, 80*3456)); a('s_add_u32 s%d, s%d, s%d' % (sW1O, sW1O, sT1))
    a('s_cmp_lt_u32 s%d, 27' % sHM); a('s_cselect_b32 s%d, 2211840, 0' % (sW1+2)); a('s_cselect_b32 s%d, 8, 5' % sIDLE)
    a('s_cmp_lt_u32 s%d, 2' % sW); a('s_cselect_b32 s%d, s%d, 0' % (sW1b+2, sW1+2))
    a('s_mul_i32 s%d, s%d, %d' % (sT0, sS, 2*qa[0]))
    a('v_lshl_add_u32 v%d, v%d, 1, s%d' % (LXQ, T+1, sT0))
    a('s_mul_i32 s%d, s%d, 160' % (sT0, sS))
    a('v_lshl_add_u32 v%d, v%d, 1, s%d' % (LXW, T+4, sT0))
    a('s_cmp_lt_u32 s%d, 5' % sS)
    a('s_cselect_b64 s[%d:%d], s[12:13], s[18:19]' % (sF, sF+1))
    a('s_cselect_b32 s%d, 3, 1' % sT0); a('s_and_b32 s%d, s%d, s%d' % (sT0, sT0, sW)); a('s_lshl_b32 s%d, s%d, 2' % (sT0, sT0))
    if fsw:
        a('s_lshr_b32 s%d, s%d, 2' % (sT0, sT0)); a('s_cmp_lt_u32 s%d, 5' % sS); a('s_cselect_b32 s%d, 2, 1' % sT1)
        a('v_lshlrev_b32 v%d, s%d, v%d' % (T+6, sT1, Gq)); a('v_add_u32 v%d, s%d, v%d' % (T+6, sT0, T+6))
    else: a('v_add_u32 v%d, s%d, v%d' % (T+6, sT0, Gq))
    a('v_mul_u32_u24 v%d, %d, v%d' % (AF, 8*1280, T+6))
    a('v_add_u32 v%d, v%d, v%d' % (AF, AF, T+2))
    a('s_lshr_b32 s%d, s%d, 1' % (sT0, sW)); a('s_lshl_b32 s%d, s%d, 1' % (sT1, sS)); a('s_add_u32 s%d, s%d, s%d' % (sT0, sT0, sT1)); a('s_sub_u32 s%d, s%d, 10' % (sT0, sT0))
    a('s_cmp_lt_u32 s%d, 5' % sS)
    a('s_cselect_b32 s%d, s%d, s%d' % (sT0, sS, sT0))
    a('s_mov_b32 s%d, %d' % (sT1, 64*1280)); a('s_cselect_b32 s%d, %d, s%d' % (sT1, 128*1280, sT1))
    a('s_mul_i32 s%d, s%d, s%d' % (sFO, sHS, sT1))
    a('s_lshl_b32 s%d, s%d, 8' % (sT1, sT0)); a('s_add_u32 s%d, s%d, s%d' % (sFO, sFO, sT1))
    a('s_add_u32 s%d, s%d, 5120' % (sFO2, sFO))
    a('s_cmp_lt_u32 s%d, 5' % sT0); a('s_cselect_b32 s%d, s%d, 0' % (sF+2, sW1+2))
    a('s_cmp_lt_u32 s%d, 5' % sS); a('s_cselect_b32 s%d, 5242880, s%d' % (sF+2, sF+2))
    a('s_cselect_b32 s%d, 0, 512' % sT1)
    a('s_lshl_b32 s%d, s%d, 13' % (sT0, sH)); a('s_add_u32 s%d, s%d, %d' % (sT0, sT0, R1))
    a('v_lshl_add_u32 v%d, v%d, 10, s%d' % (AML, T+5, sT0))
    a('v_lshl_add_u32 v%d, v%d, 5, v%d' % (AP1, T+6, AML))
    a('v_lshl_add_u32 v%d, v%d, 4, v%d' % (AP1, T+3, AP1))
    a('v_add_u32 v%d, s%d, v%d' % (AP1, sT1, AP1))
    a('s_lshl_b32 s%d, s%d, 2' % (sT0, sH)); a('s_add_u32 s%d, s%d, s%d' % (sT0, sT0, sW)); a('s_lshl_b32 s%d, s%d, 10' % (sT0, sT0)); a('s_add_u32 s%d, s%d, %d' % (sT0, sT0, R0))
    a('v_add_u32 v%d, s%d, v%d' % (AP0, sT0, AX4))
    a('v_and_b32 v%d, 1, v%d' % (T+7, Gq))
    a('v_lshrrev_b32 v%d, 1, v%d' % (T+8, Gq))
    a('v_lshl_add_u32 v%d, v%d, 1, v%d' % (T+8, T, T+8))
    a('v_lshlrev_b32 v%d, 9, v%d' % (LD, T+8))
    a('v_lshl_add_u32 v%d, v%d, 5, v%d' % (LD, M, LD))
    a('v_lshl_add_u32 v%d, v%d, 4, v%d' % (LD, T+7, LD))
    a('v_lshlrev_b32 v%d, 8, v%d' % (LH, T+8))
    a('v_lshl_add_u32 v%d, v%d, 5, v%d' % (LH, T+5, LH))
    a('v_lshl_add_u32 v%d, v%d, 4, v%d' % (LH, T+7, LH))
    a('v_and_b32 v%d, 7, v%d' % (PART, LN_))
    a('v_lshrrev_b32 v%d, 3, v%d' % (T+9, LN_))
    a('v_lshl_add_u32 v%d, v%d, 3, v%d' % (T+10, T, T+9)); a('v_lshlrev_b32 v%d, 4, v%d' % (C16, T+10))
    a('v_lshl_add_u32 v%d, v%d, 9, v%d' % (LCB, PART, C16))
    a('v_lshl_add_u32 v%d, v%d, 2, v%d' % (AH, T, T+9)); a('v_lshlrev_b32 v%d, 4, v%d' % (AH, AH))
    a('v_lshlrev_b32 v%d, 4, v%d' % (T+9, T+9)); a('v_add_u32 v%d, 768, v%d' % (T+9, T+9))
    a('v_cmp_eq_u32 vcc, 0, v%d' % PART)
    a('v_lshrrev_b32 v%d, 2, v%d' % (T+7, PART)); a('v_lshrrev_b32 v%d, 2, v%d' % (T+8, T+10))
    a('v_cndmask_b32 v%d, v%d, v%d, vcc' % (AOS, T+9, C16))
    a('v_lshl_add_u32 v%d, v%d, 3, v%d' % (T+7, T+7, T+8)); a('v_and_b32 v%d, 48, v%d' % (T+8, C16))
    a('v_lshl_add_u32 v%d, v%d, 13, v%d' % (AFS, T+7, T+8))
    a('s_lshl_b32 s%d, s%d, 17' % (sREC, sS)); a('s_sub_u32 s%d, s%d, %d' % (sREC, sREC, (10 << 16) - 32*128))
    a('s_lshl_b32 s%d, s%d, 16' % (sNF, sS))
    a('s_cmp_lt_u32 s%d, 5' % sS); a('s_cselect_b32 s%d, s%d, s%d' % (sREC, sNF, sREC))
    a('s_lshl_b32 s%d, s%d, 7' % (sNF, sHS)); a('s_add_u32 s%d, s%d, s%d' % (sREC, sREC, sNF)); a('s_add_u32 s%d, s%d, %d' % (sREC, sREC, R2))
    a('s_lshl_b32 s%d, s%d, 14' % (sT0, sW)); a('s_add_u32 s%d, s%d, s%d' % (sT0, sT0, sREC))
    a('v_and_b32 v%d, 1, v%d' % (T+7, LN_)); a('v_bfe_u32 v%d, v%d, 2, 1' % (T+8, LN_))
    a('v_lshlrev_b32 v%d, 13, v%d' % (ATC, T+7)); a('v_lshl_add_u32 v%d, v%d, 16, v%d' % (ATC, T+8, ATC)); a('v_add_u32 v%d, s%d, v%d' % (ATC, sT0, ATC))
    a('s_lshl_b32 s%d, s%d, 7' % (sT0, sW)); a('s_add_u32 s%d, s%d, s%d' % (sT0, sT0, sR1))
    a('v_writelane_b32 v%d, s%d, 0' % (ATC, sT0)); a('s_add_u32 s%d, s%d, 512' % (sT0, sT0)); a('v_writelane_b32 v%d, s%d, 1' % (ATC, sT0))
    a('s_getreg_b32 s%d, hwreg(HW_REG_XCC_ID)' % sXC); a('s_lshl_b32 s%d, s%d, 8' % (sXC, sXC))
    pt('setup')
    a('v_and_b32 v%d, 1, v%d' % (T+7, M))
    a('v_cmp_eq_u32 vcc, 1, v%d' % (T+7))
    a('v_mov_b32 v%d, 0x0c0c0100' % (T+8)); a('v_mov_b32 v%d, 0x01000c0c' % (T+9))
    a('v_cndmask_b32 v%d, v%d, v%d, vcc' % (T+8, T+8, T+9))
    a('v_mov_b32 v%d, 0x0c0c0302' % (T+9)); a('v_mov_b32 v%d, 0x03020c0c' % (T+10))
    a('v_cndmask_b32 v%d, v%d, v%d, vcc' % (T+9, T+9, T+10))
    a('v_lshrrev_b32 v%d, 1, v%d' % (T+7, T+5))
    a('v_mov_b32 v%d, 0x0c0c0c0c' % (T+10))
    for r in range(4):
        a('v_cmp_eq_u32 vcc, %d, v%d' % (r, T+7))
        a('s_nop 1')
        a('v_cndmask_b32 v%d, v%d, v%d, vcc' % (SLO+r, T+10, T+8))
        a('v_cndmask_b32 v%d, v%d, v%d, vcc' % (SHI+r, T+10, T+9))
    a('s_mov_b32 s%d, %s' % (sLG, f32(LOG2E)))
    def reduce64(r, sdst):
        for k in (8, 4, 2, 1):
            a('s_nop 1'); dpp('v_add_f32', r, r, r, 'row_ror:%d' % k)
        a('s_nop 1'); dpp('v_add_f32', r, r, r, 'row_bcast:15', rm=0xa)
        a('s_nop 1'); dpp('v_add_f32', r, r, r, 'row_bcast:31', rm=0xc)
        a('s_nop 0'); a('v_readlane_b32 s%d, v%d, 63' % (sdst, r)); a('s_nop 1')
    if stream:
        order, cap = stream
        big = [n for n in issued if n[0] in 'wk' ]
        if adapt:
            wait('D')
            a('v_sub_u32 v%d, s96, v%d' % (T+12, PRE+1))
            a('v_add_u32 v%d, %d, v%d' % (T+12, -adapt[0], T+12))
            a('v_cmp_gt_u32 vcc, 1000, v%d' % (T+12))
            a('s_nop 1'); a('s_cmp_lg_u64 vcc, 0'); a('s_cselect_b32 s97, 1, 0')
            vstamp(97, 0, '-late')
        for idx, n in enumerate(order.split()):
            if adapt:
                c1 = adapt[1] if idx < adapt[3] else adapt[2]
                if len(big) >= c1:
                    a('s_cmp_lg_u32 s97, 0'); a('s_cbranch_scc1 L_ad%d' % idx); wait(big[-c1]); lab('L_ad%d' % idx)
            if len(big) >= cap: wait(big[-cap])
            item(n); big.append(n)
            if n in ('k7', 'v7'): stamp('i' + n)
        stamp('iss')
        wait('v7'); stamp('v7')
        a('s_waitcnt vmcnt(0)'); stamp('all')
        a('s_branch L_done')
    stamp('set')
    wait('x1')
    morek(kpts[1])
    stamp('x')
    Fx = T
    for k in range(4): unpack(Fx+2*k, X4+k)
    unpack(Fx+8, X1)
    S, D, Q = T+10, T+11, T+22
    a('v_add_f32 v%d, v%d, v%d' % (S, Fx, Fx+1))
    for k in range(2, 10): a('v_add_f32 v%d, v%d, v%d' % (S, S, Fx+k))
    reduce64(S, sT0)
    a('v_mov_b32 v%d, %s' % (T+21, f32(1.0/640)))
    a('v_mul_f32 v%d, s%d, v%d' % (S, sT0, T+21))
    for k in range(10): a('v_sub_f32 v%d, v%d, v%d' % (D+k, Fx+k, S))
    a('v_mul_f32 v%d, v%d, v%d' % (Q, D, D))
    for k in range(1, 10): a('v_fmac_f32 v%d, v%d, v%d' % (Q, D+k, D+k))
    rnd(S)
    morek(kpts[2])
    reduce64(Q, sT0)
    a('v_mul_f32 v%d, s%d, v%d' % (Q, sT0, T+21))
    rnd(Q); a('v_add_f32 v%d, %s, v%d' % (Q, f32(1e-5), Q)); rnd(Q)
    a('v_sqrt_f32 v%d, v%d' % (Q, Q))
    for k in range(10): a('v_sub_f32 v%d, v%d, v%d' % (D+k, Fx+k, S))
    rnd(Q)
    a('v_rcp_f32 v%d, v%d' % (Q, Q))
    for k in range(5): cvt(Fx+k, D+2*k, D+2*k+1)
    for k in range(5): unpack(D+2*k, Fx+k)
    for k in range(10): a('v_mul_f32 v%d, v%d, v%d' % (D+k, D+k, Q))
    for k in range(5): cvt(Fx+k, D+2*k, D+2*k+1)
    a('ds_write_b128 v%d, %s offset:%d' % (AX4, v4(Fx), XN))
    a('ds_write_b32 v%d, v%d offset:%d' % (AX1, Fx+4, XN+1024))
    a('s_cmp_lt_u32 s%d, 2' % sW); a('s_cselect_b32 s%d, 128, 0' % sT0)
    a('v_add_u32 v%d, s%d, v%d' % (T+5, sT0, LXW))
    a('s_waitcnt lgkmcnt(0)')
    for t in range(5): a('ds_read_u16 v%d, v%d offset:%d' % (XV+t, LXQ, XN+2*qa[2]*t))
    a('ds_read_u16 v%d, v%d offset:%d' % (XW, LXW, XN))
    a('ds_read_u16 v%d, v%d offset:%d' % (XW+1, LXW, XN+64))
    a('ds_read_u16 v%d, v%d offset:%d' % (XW+2, T+5, XN))
    morek(kpts[3])
    stamp('ln')
    if stamps and probe is None and 'xcc' not in skip:
        a('s_lshr_b32 s%d, s%d, 8' % (sT0, sXC)); vstamp(sT0, 0, 'xcc')
    def perms(buf, src, sel):
        for r in range(4): a('v_perm_b32 v%d, v%d, v%d, v%d' % (buf+r, src, src, sel+r))
    def mfma(acc, A, B, first): a('v_mfma_f32_16x16x32_bf16 %s, %s, %s, %s' % (v4(acc), v4(A), v4(B), '0' if first else v4(acc)))
    a('v_lshlrev_b32 v%d, 5, v%d' % (T+20, M)); a('v_lshl_add_u32 v%d, v%d, 4, v%d' % (T+20, Gq, T+20))
    a('s_lshl_b32 s%d, s%d, 9' % (sT0, sW)); a('v_add_u32 v%d, s%d, v%d' % (T+20, sT0, T+20))
    a('v_and_b32 v%d, 3, v%d' % (T+21, LN_)); a('v_lshrrev_b32 v%d, 2, v%d' % (T+22, LN_)); a('v_lshlrev_b32 v%d, 4, v%d' % (T+22, T+22))
    a('s_lshl_b32 s%d, s%d, 7' % (sT0, sW)); a('v_add_u32 v%d, s%d, v%d' % (T+22, sT0, T+22))
    a('v_lshl_add_u32 v%d, v%d, 9, v%d' % (T+21, T+21, T+22))
    A5 = [AB[0], AB[1], T, T+4, T+8]
    a('s_waitcnt lgkmcnt(3)')
    for t in range(5): perms(A5[t], XV+t, SLO)
    for t in range(5):
        wait('wq%d' % t); mfma(ACA, A5[t], WQ+4*t, t == 0); pt('q%d' % t)
    wait('E')
    a('s_mov_b32 s%d, 1664525' % sT0)
    a('v_mul_lo_u32 v%d, v%d, s%d' % (NON, NON, sT0))
    a('v_add_u32 v%d, 1013904223, v%d' % (NON, NON))
    if qnib: qnon(T+4, 2)
    a('s_mov_b32 exec_hi, 0')
    if not qnib: a('s_nop 3')
    a('ds_write_b128 v%d, %s offset:%d' % (T+20, v4(ACA), QP))
    a('s_waitcnt lgkmcnt(0)')
    stamp('qpart')
    a('s_barrier')
    a('ds_read_b128 %s, v%d offset:%d' % (v4(T), T+21, QP))
    a('s_waitcnt lgkmcnt(0)')
    for ctl in (X1c, X2c):
        for j in range(4): dpp('v_add_f32', T+j, T+j, T+j, ctl)
    a('s_mov_b32 exec_lo, 0x11111111')
    qtag(T, T+4) if qnib else tag(T)
    ld('sq', 'buffer_store_dwordx4 %s, v%d, %s, s%d offen' % (v4(T), T+22, srd(sWS), sR0))
    a('s_mov_b64 exec, -1')
    stamp('qpub')
    first, rest = post_a.split('|') if '|' in post_a else ('', post_a)
    items(first)
    for t in range(3): perms(WQ+4*t, XW+t, SLO)
    if qnib: qnon(NQ, 0)
    ACH = WQ + 12
    a('s_lshl_b32 s%d, s%d, 10' % (sCNT, sW)); a('v_add_u32 v%d, s%d, v%d' % (T+14, sCNT, AX4))
    a('s_mov_b32 s%d, 0' % sNF)
    a('v_lshlrev_b32 v%d, 3, v%d' % (T+20, LN_))
    a('v_lshlrev_b32 v%d, 4, v%d' % (T+21, M))
    items(rest)
    def mirror(label, both, final=False):
        GA, GB = XV, X4
        a('s_mov_b32 s%d, %d' % (sW1O, SPIN))
        lab(label)
        ex(0xffffffff, 0)
        a('buffer_load_dwordx4 %s, v%d, %s, s%d offen %s' % (v4(GA), AX4, srd(sWS), sR0, pl))
        if both:
            a('s_mov_b32 exec_hi, 0x00ffffff')
            a('buffer_load_dwordx4 %s, v%d, %s, s%d offen %s' % (v4(GB), AX4, srd(sWS), sR1, pl))
        a('s_sub_u32 s%d, s%d, 1' % (sW1O, sW1O)); a('s_cbranch_scc1 %s_y' % label)
        a('s_waitcnt vmcnt(0)')
        if both:
            tagcheck(GB); a('s_cbranch_vccnz %s' % label); a('s_mov_b32 exec_hi, 0')
        qcheck(GA); a('s_cbranch_vccnz %s' % label)
        lab(label + '_y')
        if final and clean:
            a('buffer_store_dwordx4 %s, v%d, %s, s%d offen sc1' % (v4(GA), AX4, srd(sWS), sR0))
            a('s_cmp_ge_u32 s%d, s%d' % (sS, sIDLE)); a('s_cbranch_scc1 %s_z' % label)
            a('s_mov_b32 exec_hi, 0x00ffffff')
            a('buffer_store_dwordx4 %s, v%d, %s, s%d offen sc1' % (v4(GB), AX4, srd(sWS), sR1))
            a('s_mov_b32 exec_hi, 0')
            lab(label + '_z')
            a('s_cmp_eq_u64 s[22:23], 0'); a('s_cbranch_scc1 L_done')
        a('s_add_u32 s%d, s%d, %d' % (sW1O, sR0, RB))
        a('buffer_store_dwordx4 %s, v%d, %s, s%d offen sc1' % (v4(GA), AX4, srd(sWS), sW1O))
        if both:
            a('s_mov_b32 exec_hi, 0x00ffffff'); a('s_add_u32 s%d, s%d, %d' % (sKVO2, sR1, RB))
            a('buffer_store_dwordx4 %s, v%d, %s, s%d offen sc1' % (v4(GB), AX4, srd(sWS), sKVO2))
        a('s_mov_b64 exec, -1')
    def slow(label, loads, both, out, nfast=nfast):
        def rd(flag, soff):
            for G, ad, off in loads: a('buffer_load_dwordx4 %s, v%d, %s, %s offen offset:%d %s' % (v4(G), ad, srd(sWS), soff, off, flag))
            for k, (G, ad, off) in enumerate(loads):
                a('s_waitcnt vmcnt(%d)' % (len(loads) - 1 - k)); (tagcheck if both else qcheck)(G, 'vcc' if k == len(loads) - 1 else 's[4:5]')
            if len(loads) > 1: a('s_nop 0'); a('s_or_b64 vcc, vcc, s[4:5]')
        a('s_mov_b32 s%d, %d' % (sCNT, SPIN)); a('s_mov_b32 s%d, %d' % (sQO, RB))
        lab(label)
        rd(pl, '0')
        a('s_cbranch_vccz %s' % out)
        a('s_sub_u32 s%d, s%d, 1' % (sCNT, sCNT)); a('s_cbranch_scc1 %s' % out)
        a('s_cmp_gt_u32 s%d, %d' % (sCNT, SPIN - nfast)); a('s_cbranch_scc1 %s' % label)
        a('s_cmp_lt_u32 s%d, %d' % (sCNT, SPIN - nfast)); a('s_cbranch_scc1 %s_b' % label)
        mirror(label + '_m', both)
        lab(label + '_b')
        rd('sc1', 's%d' % sQO)
        a('s_cbranch_vccnz %s' % label)
        a('s_branch %s' % out)
    polls = [n for n in issued if n[0] == 'p']
    assert polls[0] == 'p0'
    wait('p0'); pt('p0'); qcheck(PQ)
    a('s_cbranch_vccnz L_q0')
    lab('L_qw')
    a('ds_write_b128 v%d, %s offset:%d' % (T+14, v4(PQ), QX))
    lab('L_qok')
    with cold():
        for j, n in enumerate(polls):
            if j:
                G = PQ + 4*int(n[1:])
                wait(n); pt('p%d' % j); qcheck(G)
                a('s_cbranch_vccnz L_q%d' % j)
                a('ds_write_b128 v%d, %s offset:%d' % (T+14, v4(G), QX))
                a('s_branch L_qok')
            lab('L_q%d' % j)
            a('s_mov_b32 s%d, %d' % (sNF, j+1))
        keep = issued[:]
        for nme in LATE: items(pts.get(nme, ''))
        del issued[:]; issued.extend(keep)
        a('s_mov_b32 s%d, 9' % sNF)
        slow('L_qs', [(PQ, AP0, 0)], False, 'L_qw')
    stamp('qok')
    vstamp(sNF, 0, '-nf')
    a('s_waitcnt lgkmcnt(0)')
    a('s_barrier')
    for k in range(8): a('ds_read_b64 %s, v%d offset:%d' % (v2(T+2*k), T+20, QX + 512*k))
    for j in range(1, len(polls)):
        if pts.get('p%d' % j):
            a('s_cmp_ge_u32 s%d, %d' % (sNF, j)); a('s_cbranch_scc1 L_skipf%d' % j)
            keep = issued[:]; pt('p%d' % j); del issued[:]; issued.extend(keep)
            lab('L_skipf%d' % j)
    pt('b')
    a('s_waitcnt lgkmcnt(6)'); a('v_pk_add_f32 %s, %s, %s' % (v2(T), v2(T), v2(T+2)))
    a('s_waitcnt lgkmcnt(4)'); a('v_pk_add_f32 %s, %s, %s' % (v2(T+4), v2(T+4), v2(T+6)))
    a('s_waitcnt lgkmcnt(2)'); a('v_pk_add_f32 %s, %s, %s' % (v2(T+8), v2(T+8), v2(T+10)))
    a('v_pk_add_f32 %s, %s, %s' % (v2(T), v2(T), v2(T+4)))
    a('s_waitcnt lgkmcnt(0)'); a('v_pk_add_f32 %s, %s, %s' % (v2(T+12), v2(T+12), v2(T+14)))
    a('v_pk_add_f32 %s, %s, %s' % (v2(T+8), v2(T+8), v2(T+12)))
    a('v_pk_add_f32 %s, %s, %s' % (v2(T), v2(T), v2(T+8)))
    cvt(T, T, T+1)
    a('ds_write_b32 v%d, v%d offset:%d' % (AX1, T, QB))
    a('s_waitcnt lgkmcnt(0)')
    Q4 = T+16
    a('ds_read_b128 %s, v%d offset:%d' % (v4(Q4), T+21, QB))
    pt('qs')
    wait('k7', ' lgkmcnt(0)')
    S8 = T
    for d in range(4):
        for i in range(8):
            a('v_dot2_f32_bf16 v%d, v%d, v%d, %s' % (S8+i, KK+4*i+d, Q4+d, ('v%d' % (S8+i)) if d else '0'))
    S = T+8
    pt('dot')
    for k in range(4): dpp('v_add_f32', S+k, S8+k, S8+k, 'row_ror:8', bm=0x3)
    for k in range(4): dpp('v_add_f32', S+k, S8+4+k, S8+4+k, 'row_ror:8', bm=0xc)
    for ctl in (HM, X2c, X1c):
        for k in range(4): dpp('v_add_f32', S+k, S+k, S+k, ctl)
    P = T+4
    cvt(P, S, S+1); cvt(P+1, S+2, S+3)
    unpack(S, P); unpack(S+2, P+1)
    for i in range(4): a('v_mul_f32 v%d, %s, v%d' % (S+i, f32(128 ** -0.5), S+i))
    cvt(P, S, S+1); cvt(P+1, S+2, S+3)
    unpack(S, P); unpack(S+2, P+1)
    MX, TM, LS = T+23, T+14, T+13
    a('v_max3_f32 v%d, v%d, v%d, v%d' % (MX, S, S+1, S+2)); a('v_max_f32 v%d, v%d, v%d' % (MX, MX, S+3))
    def xrow(r, op):
        a('s_nop 1'); dpp(op, r, r, r, 'row_ror:8')
        for sw in ('v_permlane16_swap_b32', 'v_permlane32_swap_b32'):
            a('v_mov_b32 v%d, v%d' % (TM, r)); a('s_nop 1'); a('%s v%d, v%d' % (sw, r, TM)); a('%s v%d, v%d, v%d' % (op, r, r, TM))
    xrow(MX, 'v_max_f32')
    if wmax:
        pt('s')
    else:
        a('s_lshl_b32 s%d, s%d, 2' % (sCNT, sW)); a('v_mov_b32 v%d, s%d' % (T+15, sCNT))
        a('ds_write_b32 v%d, v%d offset:%d' % (T+15, MX, ML))
        a('v_mov_b32 v%d, 0' % (T+22))
        pt('s')
        a('s_waitcnt lgkmcnt(0)')
        a('s_barrier')
        a('ds_read_b128 %s, v%d offset:%d' % (v4(T), T+22, ML))
        a('s_waitcnt lgkmcnt(0)')
        a('v_max3_f32 v%d, v%d, v%d, v%d' % (MX, T, T+1, T+2)); a('v_max_f32 v%d, v%d, v%d' % (MX, MX, T+3))
    a('v_mul_f32 v%d, %s, v%d' % (T+17, f32(-LOG2E), MX))
    for i in range(4): a('v_fma_f32 v%d, v%d, s%d, v%d' % (S+i, S+i, sLG, T+17))
    for i in range(4): a('v_exp_f32 v%d, v%d' % (S+i, S+i))
    a('s_nop 0')
    cvt(P, S, S+1); cvt(P+1, S+2, S+3)
    a('v_add_f32 v%d, v%d, v%d' % (LS, S, S+1)); a('v_add_f32 v%d, v%d, v%d' % (T+17, S+2, S+3)); a('v_add_f32 v%d, v%d, v%d' % (LS, LS, T+17))
    pt('e')
    stamp('exp')
    A4 = [AB[0], AB[1], T, T+8]
    def dwrite(off):
        a('s_mov_b32 exec_hi, 0')
        a('ds_write_b128 v%d, %s offset:%d' % (LD, v4(ACA), off))
        a('s_mov_b32 exec_lo, 0'); a('s_mov_b32 exec_hi, -1')
        a('ds_write_b128 v%d, %s offset:%d' % (LD, v4(ACB), off))
        a('s_mov_b32 exec_lo, -1')
    perms(A4[0], P, SLO); perms(A4[1], P, SHI); perms(A4[2], P+1, SLO); perms(A4[3], P+1, SHI)
    xrow(LS, 'v_add_f32')
    if wmax:
        a('s_lshl_b32 s%d, s%d, 3' % (sCNT, sW)); a('v_mov_b32 v%d, s%d' % (T+15, sCNT))
        a('ds_write2_b32 v%d, v%d, v%d offset0:%d offset1:%d' % (T+15, MX, LS, 0, 1)) if False else None
        a('ds_write_b32 v%d, v%d offset:%d' % (T+15, MX, ML)); a('ds_write_b32 v%d, v%d offset:%d' % (T+15, LS, ML+4))
        a('v_mov_b32 v%d, 0' % (T+22))
        a('v_and_b32 v%d, 6, v%d' % (T+21, PART)); a('v_lshlrev_b32 v%d, 2, v%d' % (T+21, T+21))
    else: a('ds_write_b32 v%d, v%d offset:%d' % (T+15, LS, ML+16))
    a('v_lshl_add_u32 v%d, v%d, 8, v%d' % (T+17, PART, AH))
    for t in range(3): wait('u%d' % t); mfma(ACH, WQ+4*t, W1+4*t, t == 0)
    a('s_cmp_eq_u32 s%d, 0' % sW); a('s_cselect_b32 s%d, 0x03030303, 0' % sCNT); a('s_or_b32 s%d, s%d, 0x01010101' % (sCNT, sCNT))
    a('s_nop 4')
    ex(0x00ff00ff, 0xff00ff00)
    a('ds_write_b128 v%d, %s offset:%d' % (LH, v4(ACH), HP))
    a('s_mov_b64 exec, -1')
    for i in range(8):
        wait('v%d' % i)
        mfma(ACA if i < 4 else ACB, A4[i & 3], VV+4*i, (i & 3) == 0)
        pt('pv%d' % i)
    a('s_mov_b32 exec_hi, 0'); a('s_nop 2')
    a('ds_write_b128 v%d, %s offset:%d' % (LD, v4(ACA), OP))
    a('s_mov_b32 exec_lo, 0'); a('s_mov_b32 exec_hi, -1'); a('s_nop 0')
    a('ds_write_b128 v%d, %s offset:%d' % (LD, v4(ACB), OP))
    a('s_mov_b32 exec_lo, -1')
    a('s_cmp_ge_u32 s%d, s%d' % (sS, sIDLE))
    a('s_waitcnt lgkmcnt(0)')
    stamp('pv')
    a('s_barrier')
    if wmax:
        a('ds_read_b128 %s, v%d offset:%d' % (v4(T+8), T+22, ML)); a('ds_read_b128 %s, v%d offset:%d' % (v4(AB[0]), T+22, ML+16))
        a('ds_read_b64 %s, v%d offset:%d' % (v2(T+4), T+21, ML))
        a('ds_read_b128 %s, v%d offset:%d' % (v4(T), LCB, OP))
        a('ds_read_b128 %s, v%d offset:%d' % (v4(AB[1]), T+17, HP))
        a('s_waitcnt lgkmcnt(3)')
        a('v_max3_f32 v%d, v%d, v%d, v%d' % (MX, T+8, T+10, AB[0])); a('v_max_f32 v%d, v%d, v%d' % (MX, MX, AB[0]+2))
        a('s_waitcnt lgkmcnt(2)')
        a('v_sub_f32 v%d, v%d, v%d' % (T+4, T+4, MX)); a('v_mul_f32 v%d, s%d, v%d' % (T+4, sLG, T+4)); a('v_exp_f32 v%d, v%d' % (T+4, T+4))
        a('v_mul_f32 v%d, 0.5, v%d' % (T+5, T+5))
        a('s_waitcnt lgkmcnt(1)')
        a('v_mul_f32 v%d, v%d, v%d' % (T+5, T+5, T+4))
        for j in range(4): a('v_mul_f32 v%d, v%d, v%d' % (T+j, T+j, T+4))
        for ctl in (X1c, X2c, HM):
            dpp('v_add_f32', T+5, T+5, T+5, ctl)
            for j in range(4): dpp('v_add_f32', T+j, T+j, T+j, ctl)
        ex(0x02020202)
        a('v_mov_b32 v%d, v%d' % (T, MX)); a('v_mov_b32 v%d, v%d' % (T+1, T+5)); a('v_mov_b32 v%d, s%d' % (T+2, sXC))
    else:
        a('ds_read_b128 %s, v%d offset:%d' % (v4(T), LCB, OP))
        a('ds_read_b128 %s, v%d offset:%d' % (v4(AB[0]), T+22, ML+16))
        a('ds_read_b128 %s, v%d offset:%d' % (v4(AB[1]), T+17, HP))
        a('s_waitcnt lgkmcnt(2)')
        for j in range(4): dpp('v_add_f32', T+j, T+j, T+j, X1c)
        a('s_waitcnt lgkmcnt(1)')
        a('v_add_f32 v%d, v%d, v%d' % (AB[0], AB[0], AB[0]+1)); a('v_add_f32 v%d, v%d, v%d' % (AB[0]+2, AB[0]+2, AB[0]+3))
        for ctl in (X2c, HM):
            for j in range(4): dpp('v_add_f32', T+j, T+j, T+j, ctl)
        ex(0x02020202)
        a('v_mov_b32 v%d, v%d' % (T, MX)); a('v_add_f32 v%d, v%d, v%d' % (T+1, AB[0], AB[0]+2)); a('v_mov_b32 v%d, s%d' % (T+2, sXC))
    a('s_mov_b32 exec_lo, s%d' % sCNT); a('s_mov_b32 exec_hi, s%d' % sCNT)
    tag(T)
    if clean:
        a('s_cbranch_scc1 L_so1')
    ld('so', 'buffer_store_dwordx4 %s, v%d, %s, s%d offen' % (v4(T), AOS, srd(sWS), sR1))
    if clean:
        lab('L_so2')
        txt = L[-2]
        with cold():
            lab('L_so1'); cur[0].append(txt + ' sc1'); a('s_branch L_so2')
    a('s_mov_b64 exec, -1')
    stamp('opub')
    pt('o')
    a('s_waitcnt lgkmcnt(0)')
    for ctl in (X1c, X2c, HM):
        for j in range(4): dpp('v_add_f32', AB[1]+j, AB[1]+j, AB[1]+j, ctl)
    ex(0x01010101, 0)
    tag(AB[1])
    if clean:
        a('s_cbranch_scc1 L_sh1')
    ld('sh', 'buffer_store_dwordx4 %s, v%d, %s, s%d offen offset:512' % (v4(AB[1]), AH, srd(sWS), sR1))
    if clean:
        lab('L_sh2')
        txt = L[-2]
        with cold():
            lab('L_sh1'); cur[0].append(txt + ' sc1'); a('s_branch L_sh2')
    a('s_mov_b64 exec, -1')
    a('s_cbranch_scc1 L_red')
    a('s_sub_u32 s%d, s%d, 5' % (sT0, sS)); a('s_cmp_lt_u32 s%d, 2' % sT0)
    a('s_cselect_b32 s%d, 0x10101010, 0' % sNF); a('s_or_b32 s%d, s%d, 0x01010101' % (sNF, sNF))
    if tight1:
        items(post_o.replace('r0', ''))
        a('s_movk_i32 s%d, %d' % (sCNT, nfast))
        a('s_branch L_t1') if False else None
        lab('L_t1')
        a('buffer_load_dwordx4 %s, v%d, %s, 0 offen offset:768 %s' % (v4(Gm), AML, srd(sWS), pl))
        a('buffer_load_dwordx4 %s, v%d, %s, 0 offen %s' % (v4(Gd), AP1, srd(sWS), pl))
        a('s_sub_u32 s%d, s%d, 1' % (sCNT, sCNT)); a('s_cbranch_scc1 L_p1s')
        a('s_waitcnt vmcnt(1)'); tagcheck(Gm, 's[4:5]')
        a('v_and_b32 v%d, 0xffff0000, v%d' % (T+15, Gm))
        a('s_waitcnt vmcnt(0)'); tagcheck(Gd)
        a('s_or_b64 vcc, vcc, s[4:5]')
        a('s_cbranch_vccnz L_t1')
        lab('L_p1x')
        with cold():
            lab('L_p1s')
            a('s_waitcnt vmcnt(0)')
            slow('L_p1', [(Gm, AML, 768), (Gd, AP1, 0)], True, 'L_p1y', 1)
            lab('L_p1y')
            a('v_and_b32 v%d, 0xffff0000, v%d' % (T+15, Gm))
            a('s_nop 0')
            a('s_branch L_p1x')
        issued.extend(['r0m', 'r0'])
    else:
        items(post_o)
        wait('r0m'); tagcheck(Gm, 's[4:5]')
        wait('r0'); tagcheck(Gd)
        a('v_and_b32 v%d, 0xffff0000, v%d' % (T+15, Gm))
        a('s_or_b64 vcc, vcc, s[4:5]')
        a('s_cbranch_vccnz L_p1s')
        lab('L_p1x')
        with cold():
            lab('L_p1s')
            for j in (1, 2):
                if 'r%d' % j in issued:
                    gd, gm = [(Gd, Gm), (PQ, PQ+4), (PQ+8, PQ+12)][j]
                    wait('r%dm' % j); tagcheck(gm, 's[4:5]')
                    wait('r%d' % j); tagcheck(gd)
                    a('s_nop 0'); a('s_or_b64 vcc, vcc, s[4:5]')
                    a('s_cbranch_vccnz L_r%d' % j)
                    for k in range(4): a('v_mov_b32 v%d, v%d' % (Gd+k, gd+k))
                    for k in range(3): a('v_mov_b32 v%d, v%d' % (Gm+k, gm+k))
                    a('s_branch L_p1y')
                    lab('L_r%d' % j)
            slow('L_p1', [(Gm, AML, 768), (Gd, AP1, 0)], True, 'L_p1y')
            lab('L_p1y')
            a('v_and_b32 v%d, 0xffff0000, v%d' % (T+15, Gm))
            a('s_nop 0')
            a('s_branch L_p1x')
    stamp('p1')
    a('s_cmp_ge_u32 s%d, 5' % sS); a('s_cbranch_scc1 L_hpath')
    def ftail(third, sfx):
        cvt(P, Gd, Gd+1); cvt(P+1, Gd+2, Gd+3)
        perms(A4[0], P, SLO); perms(A4[1], P, SHI)
        wait('f7')
        mfma(ACA, A4[0], FF, True); mfma(ACB, A4[0], FF+16, True)
        perms(A4[2], P+1, SLO)
        mfma(ACA, A4[1], FF+4, False); mfma(ACB, A4[1], FF+20, False)
        perms(A4[3], P+1, SHI)
        mfma(ACA, A4[2], FF+8, False); mfma(ACB, A4[2], FF+24, False)
        mfma(ACA, A4[3], FF+12, False); mfma(ACB, A4[3], FF+28, False)
        a('v_and_b32 v%d, 0xffffff00, v%d' % (Gm+2, Gm+2))
        a('v_cmp_ne_u32 s[22:23], s%d, v%d' % (sXC, Gm+2))
        a('s_nop 3')
        dwrite(FP)
        a('s_waitcnt lgkmcnt(0)')
        stamp('fmm')
        a('s_barrier')
        a('ds_read_b128 %s, v%d offset:%d' % (v4(T), LCB, FP))
        a('s_cmp_eq_u64 s[22:23], 0')
        a('s_waitcnt lgkmcnt(0)')
        for ctl in (X1c, X2c) + ((HM,) if third else ()):
            for j in range(4): dpp('v_add_f32', T+j, T+j, T+j, ctl)
        a('s_mov_b32 exec_lo, s%d' % sNF); a('s_mov_b32 exec_hi, s%d' % sNF)
        tag(T)
        a('buffer_store_dwordx4 %s, v%d, %s, s%d offen sc1' % (v4(T), AFS, srd(sWS), sREC))
        stamp('fpub')
        if stamps and probe is None and 'ack' not in skip: a('s_waitcnt vmcnt(0)'); stamp('ack')
        if wbl and third:
            a('s_cbranch_scc0 L_em')
            a('s_or_b32 s%d, s%d, s%d' % (sT0, sS, sW)); a('s_cbranch_scc1 L_done')
            a('buffer_wbl2 sc1'); a('s_branch L_done')
        if spread and not third:
            a('s_cbranch_scc0 L_em')
            a('s_lshl_b32 s%d, s%d, 2' % (sT0, sS)); a('s_add_u32 s%d, s%d, s%d' % (sT0, sT0, sW))
            a('s_cmp_lg_u32 s%d, 30' % sT0); a('s_cbranch_scc1 L_done')
            a('s_mov_b64 exec, -1')
            a('s_mov_b32 s%d, s%d' % (sREC, sHM)); a('s_branch L_red3')
        elif clean:
            a('s_cbranch_scc0 L_em')
            a('s_cmp_eq_u32 s%d, 3' % sW); a('s_cbranch_scc1 L_em')
            a('s_branch L_done') if stamps or probe is not None else a('s_endpgm')
        elif stamps or probe is not None:
            a('s_cbranch_scc1 L_done'); a('s_branch L_em')
        else:
            a('s_cbranch_scc0 L_em'); a('s_endpgm')
    Mp, Mx, Wt = T+15, T+13, T+14
    dpp('v_max_f32', Mx, Mp, Mp, X1c)
    a('s_nop 1'); dpp('v_max_f32', Mx, Mx, Mx, X2c)
    a('s_nop 1'); dpp('v_max_f32', Mx, Mx, Mx, HM)
    a('v_sub_f32 v%d, v%d, v%d' % (Wt, Mp, Mx)); a('v_mul_f32 v%d, s%d, v%d' % (Wt, sLG, Wt)); a('v_exp_f32 v%d, v%d' % (Wt, Wt))
    a('s_nop 0')
    a('v_mul_f32 v%d, v%d, v%d' % (Mx, Wt, Gm+1))
    for j in range(4): a('v_mul_f32 v%d, v%d, v%d' % (Gd+j, Wt, Gd+j))
    for ctl in (X1c, X2c):
        dpp('v_add_f32', Mx, Mx, Mx, ctl)
        for j in range(4): dpp('v_add_f32', Gd+j, Gd+j, Gd+j, ctl)
    dpp('v_add_f32', Mx, Mx, Mx, HM)
    a('v_rcp_f32 v%d, v%d' % (Mx, Mx))
    for j in range(4): dpp('v_add_f32', Gd+j, Gd+j, Gd+j, HM)
    for j in range(4): a('v_mul_f32 v%d, v%d, v%d' % (Gd+j, Mx, Gd+j))
    ftail(True, 'a')
    lab('L_hpath')
    for ctl in (X1c, X2c, HM):
        for j in range(4): dpp('v_add_f32', Gd+j, Gd+j, Gd+j, ctl)
    cvt(P, Gd, Gd+1); cvt(P+1, Gd+2, Gd+3)
    unpack(Gd, P); unpack(Gd+2, P+1)
    for j in range(4): a('v_mul_f32 v%d, %s, v%d' % (T+12+j, f32(-LOG2E), Gd+j))
    for j in range(4): a('v_exp_f32 v%d, v%d' % (T+12+j, T+12+j))
    for j in range(4): a('v_add_f32 v%d, 1.0, v%d' % (T+12+j, T+12+j))
    for j in range(4): a('v_rcp_f32 v%d, v%d' % (T+12+j, T+12+j))
    for j in range(4): a('v_mul_f32 v%d, v%d, v%d' % (Gd+j, Gd+j, T+12+j))
    ftail(False, 'b')
    lab('L_red')
    XA, XB, AO, AP2, XF = 72, 73, 74, 75, 76
    a('s_mov_b64 s[22:23], -1')
    a('s_cmp_eq_u32 s%d, 3' % sW); a('s_cbranch_scc1 L_em')
    lab('L_red2')
    a('s_sub_u32 s%d, s%d, 5' % (sQO, sS)); a('s_mul_i32 s%d, s%d, 5' % (sQO, sQO)); a('s_add_u32 s%d, s%d, s%d' % (sQO, sQO, sHM)); a('s_sub_u32 s%d, s%d, 27' % (sQO, sQO))
    if spread:
        a('s_cmp_lg_u32 s%d, 0' % sW); a('s_cbranch_scc1 L_done')
        a('s_add_u32 s%d, s%d, 27' % (sREC, sQO))
    else:
        a('s_mul_i32 s%d, s%d, %d' % (sQO, sQO, 4 if r4 else 3)); a('s_add_u32 s%d, s%d, s%d' % (sREC, sQO, sW))
    a('s_cmp_ge_u32 s%d, 40' % sREC); a('s_cbranch_scc1 L_done')
    lab('L_red3')
    base(sOUT, 20); size(sOUT, 1280)
    a('v_and_b32 v%d, 3, v%d' % (T+2, LN_)); a('v_lshrrev_b32 v%d, 2, v%d' % (T+3, LN_))
    a('v_lshlrev_b32 v%d, 7, v%d' % (AP2, T+3)); a('v_lshl_add_u32 v%d, v%d, 4, v%d' % (AP2, T+2, AP2))
    a('s_lshl_b32 s%d, s%d, 13' % (sQO, sREC)); a('s_add_u32 s%d, s%d, %d' % (sQO, sQO, R2)); a('v_add_u32 v%d, s%d, v%d' % (AP2, sQO, AP2))
    a('s_lshl_b32 s%d, s%d, 5' % (sQO, sREC)); a('v_lshl_add_u32 v%d, v%d, 3, s%d' % (AO, T+2, sQO))
    a('buffer_load_dwordx2 %s, v%d, %s, 0 offen' % (v2(XF), AO, srd(sX)))
    if otouch: a('buffer_load_dword v%d, v%d, %s, 0 offen %s' % (TCH, AO, srd(sOUT), otouch if isinstance(otouch, str) else ''))
    a('v_and_b32 v%d, 1, v%d' % (T+4, Gq)); a('v_lshl_add_u32 v%d, v%d, 1, v%d' % (AO, T+4, AO))
    a('v_lshlrev_b32 v%d, 4, v%d' % (T+4, T+4)); a('v_sub_u32 v%d, 16, v%d' % (T+4, T+4))
    for j in range(12, 16): a('v_mov_b32 v%d, 0' % (KK+j))
    a('s_waitcnt vmcnt(0)')
    a('v_lshlrev_b32 v%d, v%d, v%d' % (XA, T+4, XF)); a('v_lshlrev_b32 v%d, v%d, v%d' % (XB, T+4, XF+1))
    a('v_and_b32 v%d, 0xffff0000, v%d' % (XA, XA)); a('v_and_b32 v%d, 0xffff0000, v%d' % (XB, XB))
    if delay2: a('s_sleep %d' % delay2)
    PM = [32, 34, 36, 38]
    for j in range(3): a('s_mov_b64 s[%d:%d], -1' % (PM[j], PM[j]+1))
    a('s_mov_b32 s%d, -1' % PM[3]); a('s_mov_b32 s%d, 0xfff' % (PM[3]+1))
    a('s_mov_b32 s%d, %d' % (sCNT, SPIN))
    a('s_movk_i32 s%d, 4096' % sQO)
    if depth2 == 1:
        lab('L_p2')
        for j in range(4):
            a('s_mov_b64 exec, s[%d:%d]' % (PM[j], PM[j]+1)); a('s_cbranch_execz L_p2s%d' % j)
            a('buffer_load_dwordx4 %s, v%d, %s, %s offen offset:%d %s' % (v4(KK+4*j), AP2, srd(sWS), ('s%d' % sQO) if j >= 2 else '0', 2048*(j & 1), p2f))
            lab('L_p2s%d' % j)
        stamp('lastiss')
        a('s_sub_u32 s%d, s%d, 1' % (sCNT, sCNT)); a('s_cbranch_scc1 L_p2x')
        a('s_waitcnt vmcnt(0)')
        for j in range(4):
            a('s_mov_b64 exec, s[%d:%d]' % (PM[j], PM[j]+1))
            tagcheck(KK+4*j, 's[%d:%d]' % (PM[j], PM[j]+1))
        a('s_or_b64 s[4:5], s[%d:%d], s[%d:%d]' % (PM[0], PM[0]+1, PM[1], PM[1]+1)); a('s_or_b64 s[4:5], s[4:5], s[%d:%d]' % (PM[2], PM[2]+1))
        a('s_or_b64 s[4:5], s[4:5], s[%d:%d]' % (PM[3], PM[3]+1))
        if backoff2:
            a('s_cbranch_scc0 L_p2x'); a('s_sleep %d' % backoff2); a('s_branch L_p2')
        else:
            a('s_cbranch_scc1 L_p2')
    else:
        SETS = [VV + 16*k for k in range(depth2)]
        def issue(G):
            for j in range(4):
                a('s_or_b64 exec, s[%d:%d], 1' % (PM[j], PM[j]+1))
                a('buffer_load_dwordx4 %s, v%d, %s, %s offen offset:%d %s' % (v4(G+4*j), AP2, srd(sWS), ('s%d' % sQO) if j >= 2 else '0', 2048*(j & 1), p2f))
        for k in range(depth2 - 1):
            issue(SETS[k]); a('s_sleep %d' % gap2)
        lab('L_p2')
        for k in range(depth2):
            issue(SETS[(k + depth2 - 1) % depth2])
            stamp('lastiss')
            a('s_waitcnt vmcnt(%d)' % (4*(depth2 - 1)))
            G = SETS[k]
            for j in range(4):
                a('s_mov_b64 exec, s[%d:%d]' % (PM[j], PM[j]+1)); a('s_cbranch_execz L_p2c%d_%d' % (k, j))
                tagcheck(G+4*j, 's[%d:%d]' % (PM[j], PM[j]+1))
                for c in range(4): a('v_mov_b32 v%d, v%d' % (KK+4*j+c, G+4*j+c))
                lab('L_p2c%d_%d' % (k, j))
            a('s_or_b64 s[4:5], s[%d:%d], s[%d:%d]' % (PM[0], PM[0]+1, PM[1], PM[1]+1)); a('s_or_b64 s[4:5], s[4:5], s[%d:%d]' % (PM[2], PM[2]+1))
            a('s_or_b64 s[4:5], s[4:5], s[%d:%d]' % (PM[3], PM[3]+1))
            a('s_cbranch_scc0 L_p2x')
        a('s_sub_u32 s%d, s%d, 1' % (sCNT, sCNT)); a('s_cbranch_scc0 L_p2')
    lab('L_p2x')
    stamp('p2')
    a('s_mov_b64 exec, -1')
    A_, B_ = KK, KK+8
    for j in range(4): a('v_add_f32 v%d, v%d, v%d' % (A_+j, A_+j, A_+4+j))
    for j in range(4): a('v_add_f32 v%d, v%d, v%d' % (B_+j, B_+j, B_+4+j))
    for j in range(4): a('v_permlane32_swap_b32 v%d, v%d' % (A_+j, B_+j))
    for j in range(4): a('v_add_f32 v%d, v%d, v%d' % (A_+j, A_+j, B_+j))
    a('v_permlane16_swap_b32 v%d, v%d' % (A_, A_+1)); a('s_nop 0'); a('v_permlane16_swap_b32 v%d, v%d' % (A_+2, A_+3))
    a('v_add_f32 v%d, v%d, v%d' % (A_, A_, A_+1)); a('v_add_f32 v%d, v%d, v%d' % (A_+2, A_+2, A_+3))
    for k in (4, 8):
        a('s_nop 0'); dpp('v_add_f32', A_, A_, A_, 'row_ror:%d' % k); dpp('v_add_f32', A_+2, A_+2, A_+2, 'row_ror:%d' % k)
    cvt(A_, A_, A_+2); a('v_mov_b32 v%d, v%d' % (A_+1, A_))
    a('s_nop 1')
    a('v_permlane32_swap_b32 v%d, v%d' % (A_, A_+1))
    unpack(B_, A_); unpack(B_+2, A_+1)
    a('v_add_f32 v%d, v%d, v%d' % (B_, B_, XA)); a('v_add_f32 v%d, v%d, v%d' % (B_+1, B_+1, XB))
    cvt(A_, B_, B_+1); unpack(B_, A_)
    a('v_add_f32 v%d, v%d, v%d' % (B_, B_, B_+2)); a('v_add_f32 v%d, v%d, v%d' % (B_+1, B_+1, B_+3))
    cvt(A_, B_, B_+1)
    if clean or wbl:
        a('s_mov_b32 s%d, 0x05040100' % sT0); a('s_mov_b32 s%d, 0x07060302' % sT1)
        a('v_permlane16_swap_b32 v%d, v%d' % (A_, A_+1))
        a('s_mov_b64 exec, 15')
        a('v_perm_b32 v%d, v%d, v%d, s%d' % (A_+2, A_+1, A_, sT0)); a('v_perm_b32 v%d, v%d, v%d, s%d' % (A_+3, A_+1, A_, sT1))
        a('buffer_store_dwordx2 %s, v%d, %s, 0 offen sc1' % (v2(A_+2), AO, srd(sOUT)))
    else:
        a('s_mov_b64 exec, 0x000f000f')
        a('buffer_store_short v%d, v%d, %s, 0 offen' % (A_, AO, srd(sOUT)))
        a('buffer_store_short_d16_hi v%d, v%d, %s, 0 offen offset:4' % (A_, AO, srd(sOUT)))
    a('s_cmp_lg_u32 s%d, 0' % sREC); a('s_cbranch_scc1 L_done')
    a('s_mov_b64 exec, 1')
    a('buffer_store_dword v%d, v%d, %s, 0 offen %s' % (NON, AO, srd(sWS), 'sc1' if clean or wbl else ''))
    a('s_branch L_done')
    L.extend(COLD)
    lab('L_em')
    mirror('L_emm', True, True)
    if r4:
        a('s_cmp_ge_u32 s%d, s%d' % (sS, sIDLE)); a('s_cbranch_scc1 L_red2')
    if spread:
        a('s_lshl_b32 s%d, s%d, 2' % (sT0, sS)); a('s_add_u32 s%d, s%d, s%d' % (sT0, sT0, sW))
        a('s_cmp_lg_u32 s%d, 30' % sT0); a('s_cbranch_scc1 L_done')
        a('s_mov_b32 s%d, s%d' % (sREC, sHM)); a('s_branch L_red3')
    lab('L_done')
    if probe is not None:
        stamp('end')
        a('s_waitcnt vmcnt(0) lgkmcnt(0)')
        a('s_sub_u32 s76, s76, s74'); a('s_mul_i32 s76, s76, %d' % amp); a('s_add_u32 s76, s76, %d' % base_ticks)
        lab('L_spin')
        a('s_memrealtime s[78:79]'); a('s_waitcnt lgkmcnt(0)')
        a('s_sub_u32 s78, s78, s74'); a('s_cmp_lt_u32 s78, s76'); a('s_cbranch_scc1 L_spin')
    elif stamps:
        a('s_mov_b64 exec, -1')
        stamp('pend')
        a('s_waitcnt vmcnt(0)')
        stamp('end')
        a('s_waitcnt vmcnt(0) lgkmcnt(0)')
        a('v_mov_b32 v%d, 0' % T)
        for j, r in enumerate(st): a('v_writelane_b32 v%d, s%d, %d' % (T, r, j))
        a('s_mul_i32 s3, s2, %d' % (5 if tlb else 4)); a('s_add_u32 s3, s3, s%d' % sW); a('s_lshl_b32 s3, s3, 8'); a('s_add_u32 s3, s3, 0x8000000')
        a('buffer_store_dword v%d, v%d, %s, s3 offen' % (T, AX1, srd(sWS)))
    lab('L_end')
    a('s_endpgm')
    L += ['.section .rodata,"a"', '.p2align 6', '.amdhsa_kernel %s_kernel' % NAME,
          '  .amdhsa_next_free_vgpr %d' % NV, '  .amdhsa_next_free_sgpr 102', '  .amdhsa_accum_offset %d' % ((NV+3)//4*4),
          '  .amdhsa_group_segment_fixed_size 0', '  .amdhsa_kernarg_size 88', '  .amdhsa_user_sgpr_count 2',
          '  .amdhsa_user_sgpr_kernarg_segment_ptr 1', '  .amdhsa_system_sgpr_workgroup_id_x 1', '.end_amdhsa_kernel']
    if stamps and probe is None: L.insert(1, '; STAMPS ' + ' '.join(names))
    return '\n'.join(L) + '\n', names

def emit(name, probes=(), **kw):
    for sfx, extra in [('', {}), ('_s', dict(stamps=True))] + [('_p' + p, dict(probe=p)) for p in probes]:
        s, ns = gen(**kw, **extra); open(name + sfx + '.s', 'w').write(s)
        e = check(s)
        if e: print(name + sfx, 'HAZARDS'); [print('  ', x) for x in e]
```

```python
import sys, struct
from hazcheck import check
NAME = 'parallel_sum__sliding_block_cached__dense_activation_silu__decode'
HDR = open('cdna_kernels/%s.s.ref' % NAME).read().split('; Override launch')[0]
def f32(x): return '0x%08x' % struct.unpack('<I', struct.pack('<f', x))[0]
LOG2E = 1.4426950408889634
XN, QP, HP, QB, OP, ML, FP, QX = 0, 1280, 3328, 5376, 5632, 9728, 9792, 13888
LDS_BYTES = 83968
R0 = 4096
R1 = R0 + 256*512
R2 = R1 + 256*1024
RB = 1 << 20
SPIN = 1 << 18

def gen(stamps=False, flags='nt', wflags='nt', qflags=None, probe=None, amp=10, base_ticks=5000, lds=LDS_BYTES,
        kpts=(1, 2, 1, 0), post_a=None, pts=None, post_o='Wf5 r0', nfast=16, backoff2=0, delay2=0, skip=(), fence0=True, stream=None, tflags='', t0=True, kmap=None, kx=None, qmap=0, spread=False, tight1=False, depth2=1, gap2=2, karg2=False, adapt=None, qnib=True, clean=False, otouch=False, r4=False, eflags='', xflags='', pflags='', pl='nt', swaps=(), tlb=0, tlbd=0, hmap=0, p2f='sc1', wbl=False, wmax=False, fsw=False):
    qflags = wflags if qflags is None else qflags
    L = []; COLD = []
    cur = [L]
    def a(s): cur[0].append('  ' + s)
    def lab(s): cur[0].append(s + ':')
    class cold:
        def __enter__(self): cur[0] = COLD
        def __exit__(self, *x): cur[0] = L
    st = []; names = []; pool = list(range(74, 95, 2)) + [12, 14, 16, 18, 0]; cnt = [0]; slot = {}
    def stamp(name=''):
        k = cnt[0]; cnt[0] += 1
        if probe is not None:
            if k == 0: a('s_memrealtime s[74:75]')
            elif name == probe: a('s_memrealtime s[76:77]')
        elif stamps and name not in skip:
            if name not in slot: slot[name] = pool.pop(0); st.append(slot[name]); names.append(name)
            r = slot[name]; a('s_memrealtime s[%d:%d]' % (r, r+1))
    def vstamp(reg, neg, name):
        if stamps and probe is None and name not in skip:
            r = pool.pop(0)
            a('s_sub_u32 s%d, %d, s%d' % (r, neg, reg))
            a('s_mul_i32 s%d, s%d, 100' % (r, r)); a('s_waitcnt lgkmcnt(0)'); a('s_add_u32 s%d, s%d, s74' % (r, r)); st.append(r); names.append(name)
    L.append(HDR.rstrip())
    L.append('; @launch grid=(256,1,1) block=(%d,1,1) lds=%d' % (320 if tlb else 256, lds))
    L.append('.amdgcn_target "amdgcn-amd-amdhsa--gfx950"'); L.append('.text')
    L.append('.globl %s_kernel' % NAME); L.append('.p2align 8'); L.append('.type %s_kernel,@function' % NAME)
    lab('%s_kernel' % NAME)
    M, Gq, LN_, AWQ, AKV, AF, AW1, AX4, AX1, LXQ, LXW, LD, LH, AP1, NON = range(1, 16)
    SLO, SHI = 16, 20
    ACA, ACB = 24, 28
    AB = [32, 36]
    T = 40
    X4, X1 = 64, 68
    XV, XW = 72, 77
    AP0, AML, PART, C16, LCB, AFS, AOS, AH, TCH, ATC, PRE = range(80, 91)
    WQ, W1, KK, VV, FF = 96, 116, 128, 160, 192
    PQ = 224
    NV = 240
    sH, sS, sW = 24, 25, 26
    sX, sK, sV, sWQ, sW1, sF, sWS, sOUT, sW1b = 28, 32, 36, 40, 44, 48, 52, 56, 60
    sQO, sKVO, sFO, sW1O, sT0, sT1, sLG, sCNT, sKVO2, sFO2, sREC, sNF = 64, 65, 66, 67, 68, 69, 27, 3, 70, 71, 72, 73
    sR0, sR1, sXC, sIDLE = 100, 101, 99, 98
    sTG, sCK = 6, 10
    sHM, sHS = 97, 96
    srd = lambda r: 's[%d:%d]' % (r, r+3)
    v4 = lambda r: 'v[%d:%d]' % (r, r+3)
    v2 = lambda r: 'v[%d:%d]' % (r, r+1)
    dpp = lambda op, d, s0, s1, ctl, bm=0xf, rm=0xf: a('%s_dpp v%d, v%d, v%d %s row_mask:0x%x bank_mask:0x%x' % (op, d, s0, s1, ctl, rm, bm))
    X1c, X2c, HM = 'quad_perm:[1,0,3,2]', 'quad_perm:[2,3,0,1]', 'row_half_mirror'
    def ex(lo, hi=None):
        hi = lo if hi is None else hi
        a('s_mov_b32 exec_lo, 0x%x' % lo); a('s_mov_b32 exec_hi, 0x%x' % hi)
    def base(r, p): a('s_mov_b64 s[%d:%d], s[%d:%d]' % (r, r+1, p, p+1))
    def size(r, n): a('s_mov_b32 s%d, 0x%x' % (r+2, n)); a('s_mov_b32 s%d, 0x20000' % (r+3))
    def unpack(dst, src):
        a('v_lshlrev_b32 v%d, 16, v%d' % (dst, src)); a('v_and_b32 v%d, 0xffff0000, v%d' % (dst+1, src))
    def cvt(d, x, y): a('v_cvt_pk_bf16_f32 v%d, v%d, v%d' % (d, x, y))
    def rnd(r): cvt(r, r, r); a('v_and_b32 v%d, 0xffff0000, v%d' % (r, r))
    NQ = 92
    def qnon(dst, parity_bit):
        a('v_bfe_u32 v%d, v%d, %d, 1' % (dst, LN_, parity_bit)); a('v_lshlrev_b32 v%d, 4, v%d' % (dst, dst))
        a('v_lshrrev_b32 v%d, v%d, v%d' % (dst, dst, NON))
        for k in range(1, 4): a('v_lshrrev_b32 v%d, %d, v%d' % (dst+k, 4*k, dst))
    def qtag(r, nq):
        for k in range(4): a('v_bfi_b32 v%d, 15, v%d, v%d' % (r+k, nq+k, r+k))
    def qcheck(G, dst='vcc'):
        if not qnib: return tagcheck(G, dst)
        a('v_xor_b32 v%d, v%d, v%d' % (T+12, G, NQ))
        for k in range(1, 4): a('v_bitop3_b32 v%d, v%d, v%d, v%d bitop3:0xbe' % (T+12, G+k, NQ+k, T+12))
        a('v_and_b32 v%d, 15, v%d' % (T+12, T+12))
        a('v_cmp_ne_u32 %s, 0, v%d' % (dst, T+12))
    def tag(r):
        for k in range(4): a('v_perm_b32 v%d, v%d, v%d, s%d' % (r+k, r+k, NON, sTG+k))
    def tagcheck(G, dst='vcc'):
        a('v_perm_b32 v%d, v%d, v%d, s%d' % (T+12, G+1, G, sCK))
        a('v_perm_b32 v%d, v%d, v%d, s%d' % (T+13, G+3, G+2, sCK))
        a('v_perm_b32 v%d, v%d, v%d, s%d' % (T+12, T+13, T+12, sCK+1))
        a('v_cmp_ne_u32 %s, v%d, v%d' % (dst, T+12, NON))
    stamp('start')
    a('s_load_dwordx16 s[4:19], s[0:1], 0')
    if not karg2:
        a('s_load_dwordx2 s[20:21], s[0:1], 64')
        a('s_load_dwordx2 s[%d:%d], s[0:1], 80' % (sWS, sWS+1))
    a('s_getpc_b64 s[28:29]')
    lab('L_pc')
    a('s_cmpk_ge_u32 s2, 256'); a('s_cbranch_scc1 L_end')
    a('v_lshlrev_b32 v%d, 7, v0' % (T+8))
    a('v_min_u32 v%d, L_end - L_pc, v%d' % (T+8, T+8))
    a('v_lshrrev_b32 v%d, 6, v0' % T)
    a('v_and_b32 v%d, 63, v0' % LN_)
    a('v_readfirstlane_b32 s%d, v%d' % (sW, T))
    a('global_load_dword v%d, v%d, s[28:29] %s' % (PRE, T+8, pflags))
    a('v_and_b32 v%d, 15, v0' % M)
    a('v_bfe_u32 v%d, v0, 4, 2' % Gq)
    if hmap:
        a('s_and_b32 s%d, s2, 7' % sH)
        if hmap == 2: a('s_lshr_b32 s%d, s%d, 1' % (sT0, sH)); a('s_and_b32 s%d, s%d, 2' % (sT0, sT0)); a('s_xor_b32 s%d, s%d, s%d' % (sH, sH, sT0))
        a('s_bfe_u32 s%d, s2, 0x20003' % sT0); a('s_lshl2_add_u32 s%d, s%d, s%d' % (sH, sH, sT0))
    else: a('s_and_b32 s%d, s2, 31' % sH)
    a('s_lshr_b32 s%d, s2, 5' % sS)
    a('v_lshlrev_b32 v%d, 4, v%d' % (AX4, LN_))
    a('v_lshlrev_b32 v%d, 2, v%d' % (AX1, LN_))
    a('v_lshlrev_b32 v%d, 4, v%d' % (T+2, M))
    qa = {0: (80, 20, 4, 1), 1: (80, 4, 16, 1)}.get(qmap, qmap)
    if qa[1] > 64:
        a('v_mul_u32_u24 v%d, %d, v%d' % (T+1, qa[1], T)); a('v_mad_u32_u24 v%d, v%d, %d, v%d' % (T+1, Gq, qa[3], T+1))
    elif qa[3] == 1: a('v_mad_u32_u24 v%d, v%d, %d, v%d' % (T+1, T, qa[1], Gq))
    else: a('v_mul_u32_u24 v%d, %d, v%d' % (T+1, qa[3], Gq)); a('v_mad_u32_u24 v%d, v%d, %d, v%d' % (T+1, T, qa[1], T+1))
    a('v_lshl_add_u32 v%d, v%d, 13, v%d' % (AWQ, T+1, T+2))
    a('s_movk_i32 s%d, 1280' % (sX+2)); a('s_mov_b32 s%d, 0x20000' % (sX+3))
    a('s_mov_b32 s%d, 5242880' % (sWQ+2)); a('s_mov_b32 s%d, 0x20000' % (sWQ+3))
    a('s_mul_i32 s%d, s%d, %d' % (sQO, sS, qa[0]*8192)); a('s_lshl_b32 s%d, s%d, 8' % (sT0, sH)); a('s_add_u32 s%d, s%d, s%d' % (sQO, sQO, sT0))
    if adapt: a('s_memrealtime s[96:97]'); a('s_load_dwordx2 s[56:57], s[0:1], 72')
    if tlb: a('s_cmp_eq_u32 s%d, 4' % sW)
    stamp('pre')
    a('s_waitcnt lgkmcnt(0)')
    stamp('karg')
    if tlb:
        a('s_cbranch_scc1 L_tlb')
        with cold():
            lab('L_tlb')
            if tlbd: a('s_barrier')
            if tlbd > 1: a('s_sleep %d' % tlbd)
            def bump(p, off): a('s_add_u32 s%d, s%d, s%d' % (p, p, off)); a('s_addc_u32 s%d, s%d, 0' % (p+1, p+1))
            a('s_lshl_b32 s%d, s%d, 20' % (sT0, sH)); a('s_add_u32 s%d, s%d, %d' % (sT0, sT0, 3072*256))
            a('s_lshl_b32 s%d, s%d, 15' % (sT1, sS)); a('s_add_u32 s%d, s%d, s%d' % (sT0, sT0, sT1))
            bump(6, sT0); bump(8, sT0)
            if tlb != 3: a('s_load_dword s60, s[6:7], 0')
            a('s_load_dword s61, s[8:9], 0')
            a('s_mul_i32 s%d, s%d, %d' % (sT0, sH, 128*1280)); a('s_mul_i32 s%d, s%d, %d' % (sT1, sS, 16*1280)); a('s_add_u32 s%d, s%d, s%d' % (sT0, sT0, sT1))
            bump(12, sT0); a('s_load_dword s62, s[12:13], 0')
            a('s_mul_i32 s%d, s%d, %d' % (sT0, sS, 80*3456)); bump(16, sT0); a('s_load_dword s63, s[16:17], 0')
            a('s_min_u32 s%d, s%d, 26' % (sT0, sH)); a('s_mul_i32 s%d, s%d, %d' % (sT0, sT0, 64*1280)); bump(18, sT0); a('s_load_dword s64, s[18:19], 0')
            if tlb != 3: a('s_load_dword s65, s[%d:%d], %d' % (sWS, sWS+1, R1))
            if tlb == 2:
                a('s_load_dword s66, s[16:17], %d' % (40*3456)); a('s_load_dword s67, s[18:19], %d' % (32*1280))
                a('s_load_dword s70, s[%d:%d], %d' % (sWS, sWS+1, R2)); a('s_load_dword s71, s[20:21], 0')
            a('s_endpgm')
    issued = []
    def ld(name, text): a(text); issued.append(name)
    def wait(name, extra=''):
        n = len(issued) - 1 - issued.index(name)
        a('s_waitcnt vmcnt(%d)%s' % (n, extra))
    base(sX, 4)
    ld('x4', 'buffer_load_dwordx4 %s, v%d, %s, 0 offen %s' % (v4(X4), AX4, srd(sX), xflags))
    ld('x1', 'buffer_load_dword v%d, v%d, %s, 0 offen offset:1024 %s' % (X1, AX1, srd(sX), xflags))
    base(sWQ, 10)
    for t in range(5):
        ld('wq%d' % t, 'buffer_load_dwordx4 %s, v%d, %s, s%d offen %s' % (v4(WQ+4*t), AWQ, srd(sWQ), sQO, qflags))
        if t < 4: a('s_add_u32 s%d, s%d, 0x%x' % (sQO, sQO, qa[2]*8192))
    if karg2:
        a('s_load_dwordx2 s[20:21], s[0:1], 64')
        a('s_load_dwordx2 s[%d:%d], s[0:1], 80' % (sWS, sWS+1))
    if probe is not None: a('s_mov_b32 s76, s74')
    km = (kmap or 's2 s1 s0 w1 w0 i2 i1 i0 g1 g0').split()
    pos = {f: 9 - j for j, f in enumerate(km)}
    ioff = lambda i: sum(((i >> b) & 1) << (pos['i%d' % b] + 8) for b in range(3))
    if kmap and (pos['g0'], pos['g1'], pos['w1'] - pos['w0']) == (0, 1, 1):
        a('v_lshl_add_u32 v%d, v%d, %d, v%d' % (AKV, T, pos['w0'] + 8, AX4))
    elif kmap:
        a('v_mov_b32 v%d, v%d' % (AKV, T+2))
        for f, src in (('w', T), ('g', Gq)):
            for b in range(2):
                a('v_bfe_u32 v%d, v%d, %d, 1' % (T+6, src, b)); a('v_lshl_add_u32 v%d, v%d, %d, v%d' % (AKV, T+6, pos[f + str(b)] + 8, AKV))
    else:
        a('v_lshl_add_u32 v%d, v%d, 5, v%d' % (T+6, T, Gq))
        a('v_lshl_add_u32 v%d, v%d, 8, v%d' % (AKV, T+6, T+2))
    base(sK, 6); size(sK, 33554432); size(sWS, 268435456)
    a('s_lshl_b32 s%d, s%d, 20' % (sKVO, sH)); a('s_add_u32 s%d, s%d, %d' % (sKVO, sKVO, 3072*256))
    if pos['s0'] + 1 == pos['s1'] and pos['s1'] + 1 == pos['s2']:
        a('s_lshl_b32 s%d, s%d, %d' % (sT0, sS, pos['s0'] + 8)); a('s_add_u32 s%d, s%d, s%d' % (sKVO, sKVO, sT0))
    else:
        for b in range(3):
            a('s_bfe_u32 s%d, s%d, 0x%x' % (sT0, sS, (1 << 16) | b)); a('s_lshl_b32 s%d, s%d, %d' % (sT0, sT0, pos['s%d' % b] + 8)); a('s_add_u32 s%d, s%d, s%d' % (sKVO, sKVO, sT0))
    if kx is not None:
        assert [pos['i2'], pos['i1'], pos['i0']] == [9, 8, 7]
        a('s_lshr_b32 s%d, s%d, %d' % (sT0, sH, kx)); a('s_and_b32 s%d, s%d, 7' % (sT0, sT0)); a('s_lshl_b32 s%d, s%d, 15' % (sT0, sT0)); a('s_add_u32 s%d, s%d, s%d' % (sKVO, sKVO, sT0))
    if not kmap: a('s_add_u32 s%d, s%d, 4096' % (sKVO2, sKVO))
    a('s_lshl_b32 s%d, s%d, 3' % (sREC, sH)); a('s_add_u32 s%d, s%d, s%d' % (sREC, sREC, sS))
    a('s_lshl_b32 s%d, s%d, 9' % (sR0, sREC)); a('s_add_u32 s%d, s%d, %d' % (sR0, sR0, R0))
    a('s_lshl_b32 s%d, s%d, 10' % (sR1, sREC)); a('s_add_u32 s%d, s%d, %d' % (sR1, sR1, R1))
    a('s_lshl_b32 s%d, s%d, 7' % (sT1, sW)); a('s_add_u32 s%d, s%d, s%d' % (sT1, sT1, sR0))
    a('v_mov_b32 v%d, 0' % (T+11))
    if karg2: a('s_waitcnt lgkmcnt(0)')
    stamp('iss')
    if fence0: a('s_barrier')
    if adapt:
        a('s_movk_i32 s58, 256'); a('s_mov_b32 s59, 0x20000')
        a('s_or_b32 s96, s96, 1')
        a('s_lshl_b32 s%d, s2, 2' % sCNT); a('s_add_u32 s%d, s%d, s%d' % (sCNT, sCNT, sW))
        a('s_and_b32 s97, s%d, 0xffffffe3' % sCNT)
        a('s_cbranch_scc1 L_nost')
        a('v_mov_b32 v%d, s96' % (T+12)); a('v_mov_b32 v%d, s%d' % (T+13, sCNT))
        a('s_mov_b64 exec, 1')
        a('buffer_store_dword v%d, v%d, s[56:59], 0 offen sc1' % (T+12, T+13))
        a('s_mov_b64 exec, -1')
        lab('L_nost')
        a('v_and_b32 v%d, 28, v%d' % (T+12, AX1))
        ld('D', 'buffer_load_dword v%d, v%d, s[56:59], 0 offen sc1' % (PRE+1, T+12))
    ld('E', 'buffer_load_dword v%d, v%d, %s, 0 offen %s' % (NON, T+11, srd(sWS), eflags))
    if t0: ld('t0', 'buffer_load_dword v%d, v%d, %s, s%d offen %s' % (TCH, T+11, srd(sWS), sT1, tflags))
    Gd, Gm = T+8, T+16
    def item(n):
        k, i = n[0], n[1:]
        if k == 'W':
            wait(i)
            if n in ('Wk7', 'Wf7', 'Wf5', 'Wf3'): stamp(n)
            return
        i = int(i)
        if k in 'kv' and kmap:
            o = ioff(i)
            if o >= 4096: a('%s s%d, s%d, %d' % ('s_add_u32' if kx is None else 's_xor_b32', sKVO2, sKVO, o & ~4095))
            ld(n, 'buffer_load_dwordx4 %s, v%d, %s, s%d offen offset:%d %s' % (v4((KK if k == 'k' else VV)+4*i), AKV, srd(sK if k == 'k' else sV), sKVO2 if o >= 4096 else sKVO, o & 4095, flags))
        elif k == 'k': ld(n, 'buffer_load_dwordx4 %s, v%d, %s, s%d offen offset:%d %s' % (v4(KK+4*i), AKV, srd(sK), sKVO2 if i >= 4 else sKVO, 1024*(i & 3), flags))
        elif k == 'v': ld(n, 'buffer_load_dwordx4 %s, v%d, %s, s%d offen offset:%d %s' % (v4(VV+4*i), AKV, srd(sV), sKVO2 if i >= 4 else sKVO, 1024*(i & 3), flags))
        elif k == 'f': ld(n, 'buffer_load_dwordx4 %s, v%d, %s, s%d offen offset:%d %s' % (v4(FF+4*i), AF, srd(sF), sFO2 if i >= 4 else sFO, 1280*(i & 3), wflags))
        elif k == 'p': ld(n, 'buffer_load_dwordx4 %s, v%d, %s, 0 offen %s' % (v4(PQ+4*i), AP0, srd(sWS), pl))
        elif k == 'r':
            gd, gm = [(Gd, Gm), (PQ, PQ+4), (PQ+8, PQ+12)][i]
            ld(n + 'm', 'buffer_load_dwordx4 %s, v%d, %s, 0 offen offset:768 %s' % (v4(gm), AML, srd(sWS), pl))
            ld(n, 'buffer_load_dwordx4 %s, v%d, %s, 0 offen %s' % (v4(gd), AP1, srd(sWS), pl))
        elif k == 'u':
            ld(n, 'buffer_load_dwordx4 %s, v%d, %s, s%d offen %s' % (v4(W1+4*i), AW1, srd(sW1b if i == 2 else sW1), sW1O, wflags))
            if i < 2: a('s_add_u32 s%d, s%d, %d' % (sW1O, sW1O, 32*3456))
        elif k == 't':
            a('s_mov_b64 exec, %d' % {1: 63, 2: 3, 3: 60}[i])
            ld(n, 'buffer_load_dword v%d, v%d, %s, 0 offen %s' % (TCH, ATC, srd(sWS), tflags))
            a('s_mov_b64 exec, -1')
        elif k == 'z': a('s_sleep %d' % i)
        else: raise ValueError(n)
    def items(s):
        for n in s.split(): item(n)
    LATE = ('b', 'qs', 'dot', 's', 'e') + tuple('pv%d' % i for i in range(8))
    def pt(name):
        txt = pts.get(name, '')
        if not txt: return
        if name in LATE:
            a('s_cmp_eq_u32 s%d, 9' % sNF); a('s_cbranch_scc1 L_sk_%s' % name)
            items(txt)
            lab('L_sk_%s' % name)
        else: items(txt)
    nk = [0]
    def morek(n):
        for _ in range(n):
            if nk[0] < 8: item('k%d' % nk[0]); nk[0] += 1
    morek(kpts[0])
    base(sV, 8); base(sW1, 16); base(sW1b, 16); size(sV, 33554432)
    for r in (sW1, sW1b, sF): a('s_mov_b32 s%d, 0x20000' % (r+3))
    for k in range(4): a('s_mov_b32 s%d, 0x%08x' % (sTG+k, 0x07060500 + k))
    a('s_mov_b32 s%d, 0x0c0c0400' % sCK); a('s_mov_b32 s%d, 0x05040100' % (sCK+1))
    a('v_lshrrev_b32 v%d, 3, v%d' % (T+3, M))
    a('v_lshl_add_u32 v%d, v%d, 2, v%d' % (T+4, T+3, Gq))
    a('v_lshl_add_u32 v%d, v%d, 3, v%d' % (T+4, T, T+4))
    a('v_and_b32 v%d, 7, v%d' % (T+5, M))
    a('v_mul_u32_u24 v%d, 3456, v%d' % (AW1, T+4))
    a('v_lshl_add_u32 v%d, v%d, 4, v%d' % (AW1, T+5, AW1))
    a('s_mov_b32 s%d, s%d' % (sHM, sH))
    for x, y in swaps:
        a('s_cmp_eq_u32 s%d, %d' % (sH, x)); a('s_cselect_b32 s%d, %d, s%d' % (sHM, y, sHM))
        a('s_cmp_eq_u32 s%d, %d' % (sH, y)); a('s_cselect_b32 s%d, %d, s%d' % (sHM, x, sHM))
    a('s_cmp_lt_u32 s%d, 5' % sS); a('s_cselect_b32 s%d, s%d, s%d' % (sHS, sH, sHM))
    a('s_lshl_b32 s%d, s%d, 7' % (sT1, sHM))
    a('s_mul_i32 s%d, s%d, %d' % (sW1O, sS, 80*3456)); a('s_add_u32 s%d, s%d, s%d' % (sW1O, sW1O, sT1))
    a('s_cmp_lt_u32 s%d, 27' % sHM); a('s_cselect_b32 s%d, 2211840, 0' % (sW1+2)); a('s_cselect_b32 s%d, 8, 5' % sIDLE)
    a('s_cmp_lt_u32 s%d, 2' % sW); a('s_cselect_b32 s%d, s%d, 0' % (sW1b+2, sW1+2))
    a('s_mul_i32 s%d, s%d, %d' % (sT0, sS, 2*qa[0]))
    a('v_lshl_add_u32 v%d, v%d, 1, s%d' % (LXQ, T+1, sT0))
    a('s_mul_i32 s%d, s%d, 160' % (sT0, sS))
    a('v_lshl_add_u32 v%d, v%d, 1, s%d' % (LXW, T+4, sT0))
    a('s_cmp_lt_u32 s%d, 5' % sS)
    a('s_cselect_b64 s[%d:%d], s[12:13], s[18:19]' % (sF, sF+1))
    a('s_cselect_b32 s%d, 3, 1' % sT0); a('s_and_b32 s%d, s%d, s%d' % (sT0, sT0, sW)); a('s_lshl_b32 s%d, s%d, 2' % (sT0, sT0))
    if fsw:
        a('s_lshr_b32 s%d, s%d, 2' % (sT0, sT0)); a('s_cmp_lt_u32 s%d, 5' % sS); a('s_cselect_b32 s%d, 2, 1' % sT1)
        a('v_lshlrev_b32 v%d, s%d, v%d' % (T+6, sT1, Gq)); a('v_add_u32 v%d, s%d, v%d' % (T+6, sT0, T+6))
    else: a('v_add_u32 v%d, s%d, v%d' % (T+6, sT0, Gq))
    a('v_mul_u32_u24 v%d, %d, v%d' % (AF, 8*1280, T+6))
    a('v_add_u32 v%d, v%d, v%d' % (AF, AF, T+2))
    a('s_lshr_b32 s%d, s%d, 1' % (sT0, sW)); a('s_lshl_b32 s%d, s%d, 1' % (sT1, sS)); a('s_add_u32 s%d, s%d, s%d' % (sT0, sT0, sT1)); a('s_sub_u32 s%d, s%d, 10' % (sT0, sT0))
    a('s_cmp_lt_u32 s%d, 5' % sS)
    a('s_cselect_b32 s%d, s%d, s%d' % (sT0, sS, sT0))
    a('s_mov_b32 s%d, %d' % (sT1, 64*1280)); a('s_cselect_b32 s%d, %d, s%d' % (sT1, 128*1280, sT1))
    a('s_mul_i32 s%d, s%d, s%d' % (sFO, sHS, sT1))
    a('s_lshl_b32 s%d, s%d, 8' % (sT1, sT0)); a('s_add_u32 s%d, s%d, s%d' % (sFO, sFO, sT1))
    a('s_add_u32 s%d, s%d, 5120' % (sFO2, sFO))
    a('s_cmp_lt_u32 s%d, 5' % sT0); a('s_cselect_b32 s%d, s%d, 0' % (sF+2, sW1+2))
    a('s_cmp_lt_u32 s%d, 5' % sS); a('s_cselect_b32 s%d, 5242880, s%d' % (sF+2, sF+2))
    a('s_cselect_b32 s%d, 0, 512' % sT1)
    a('s_lshl_b32 s%d, s%d, 13' % (sT0, sH)); a('s_add_u32 s%d, s%d, %d' % (sT0, sT0, R1))
    a('v_lshl_add_u32 v%d, v%d, 10, s%d' % (AML, T+5, sT0))
    a('v_lshl_add_u32 v%d, v%d, 5, v%d' % (AP1, T+6, AML))
    a('v_lshl_add_u32 v%d, v%d, 4, v%d' % (AP1, T+3, AP1))
    a('v_add_u32 v%d, s%d, v%d' % (AP1, sT1, AP1))
    a('s_lshl_b32 s%d, s%d, 2' % (sT0, sH)); a('s_add_u32 s%d, s%d, s%d' % (sT0, sT0, sW)); a('s_lshl_b32 s%d, s%d, 10' % (sT0, sT0)); a('s_add_u32 s%d, s%d, %d' % (sT0, sT0, R0))
    a('v_add_u32 v%d, s%d, v%d' % (AP0, sT0, AX4))
    a('v_and_b32 v%d, 1, v%d' % (T+7, Gq))
    a('v_lshrrev_b32 v%d, 1, v%d' % (T+8, Gq))
    a('v_lshl_add_u32 v%d, v%d, 1, v%d' % (T+8, T, T+8))
    a('v_lshlrev_b32 v%d, 9, v%d' % (LD, T+8))
    a('v_lshl_add_u32 v%d, v%d, 5, v%d' % (LD, M, LD))
    a('v_lshl_add_u32 v%d, v%d, 4, v%d' % (LD, T+7, LD))
    a('v_lshlrev_b32 v%d, 8, v%d' % (LH, T+8))
    a('v_lshl_add_u32 v%d, v%d, 5, v%d' % (LH, T+5, LH))
    a('v_lshl_add_u32 v%d, v%d, 4, v%d' % (LH, T+7, LH))
    a('v_and_b32 v%d, 7, v%d' % (PART, LN_))
    a('v_lshrrev_b32 v%d, 3, v%d' % (T+9, LN_))
    a('v_lshl_add_u32 v%d, v%d, 3, v%d' % (T+10, T, T+9)); a('v_lshlrev_b32 v%d, 4, v%d' % (C16, T+10))
    a('v_lshl_add_u32 v%d, v%d, 9, v%d' % (LCB, PART, C16))
    a('v_lshl_add_u32 v%d, v%d, 2, v%d' % (AH, T, T+9)); a('v_lshlrev_b32 v%d, 4, v%d' % (AH, AH))
    a('v_lshlrev_b32 v%d, 4, v%d' % (T+9, T+9)); a('v_add_u32 v%d, 768, v%d' % (T+9, T+9))
    a('v_cmp_eq_u32 vcc, 0, v%d' % PART)
    a('v_lshrrev_b32 v%d, 2, v%d' % (T+7, PART)); a('v_lshrrev_b32 v%d, 2, v%d' % (T+8, T+10))
    a('v_cndmask_b32 v%d, v%d, v%d, vcc' % (AOS, T+9, C16))
    a('v_lshl_add_u32 v%d, v%d, 3, v%d' % (T+7, T+7, T+8)); a('v_and_b32 v%d, 48, v%d' % (T+8, C16))
    a('v_lshl_add_u32 v%d, v%d, 13, v%d' % (AFS, T+7, T+8))
    a('s_lshl_b32 s%d, s%d, 17' % (sREC, sS)); a('s_sub_u32 s%d, s%d, %d' % (sREC, sREC, (10 << 16) - 32*128))
    a('s_lshl_b32 s%d, s%d, 16' % (sNF, sS))
    a('s_cmp_lt_u32 s%d, 5' % sS); a('s_cselect_b32 s%d, s%d, s%d' % (sREC, sNF, sREC))
    a('s_lshl_b32 s%d, s%d, 7' % (sNF, sHS)); a('s_add_u32 s%d, s%d, s%d' % (sREC, sREC, sNF)); a('s_add_u32 s%d, s%d, %d' % (sREC, sREC, R2))
    a('s_lshl_b32 s%d, s%d, 14' % (sT0, sW)); a('s_add_u32 s%d, s%d, s%d' % (sT0, sT0, sREC))
    a('v_and_b32 v%d, 1, v%d' % (T+7, LN_)); a('v_bfe_u32 v%d, v%d, 2, 1' % (T+8, LN_))
    a('v_lshlrev_b32 v%d, 13, v%d' % (ATC, T+7)); a('v_lshl_add_u32 v%d, v%d, 16, v%d' % (ATC, T+8, ATC)); a('v_add_u32 v%d, s%d, v%d' % (ATC, sT0, ATC))
    a('s_lshl_b32 s%d, s%d, 7' % (sT0, sW)); a('s_add_u32 s%d, s%d, s%d' % (sT0, sT0, sR1))
    a('v_writelane_b32 v%d, s%d, 0' % (ATC, sT0)); a('s_add_u32 s%d, s%d, 512' % (sT0, sT0)); a('v_writelane_b32 v%d, s%d, 1' % (ATC, sT0))
    a('s_getreg_b32 s%d, hwreg(HW_REG_XCC_ID)' % sXC); a('s_lshl_b32 s%d, s%d, 8' % (sXC, sXC))
    pt('setup')
    a('v_and_b32 v%d, 1, v%d' % (T+7, M))
    a('v_cmp_eq_u32 vcc, 1, v%d' % (T+7))
    a('v_mov_b32 v%d, 0x0c0c0100' % (T+8)); a('v_mov_b32 v%d, 0x01000c0c' % (T+9))
    a('v_cndmask_b32 v%d, v%d, v%d, vcc' % (T+8, T+8, T+9))
    a('v_mov_b32 v%d, 0x0c0c0302' % (T+9)); a('v_mov_b32 v%d, 0x03020c0c' % (T+10))
    a('v_cndmask_b32 v%d, v%d, v%d, vcc' % (T+9, T+9, T+10))
    a('v_lshrrev_b32 v%d, 1, v%d' % (T+7, T+5))
    a('v_mov_b32 v%d, 0x0c0c0c0c' % (T+10))
    for r in range(4):
        a('v_cmp_eq_u32 vcc, %d, v%d' % (r, T+7))
        a('s_nop 1')
        a('v_cndmask_b32 v%d, v%d, v%d, vcc' % (SLO+r, T+10, T+8))
        a('v_cndmask_b32 v%d, v%d, v%d, vcc' % (SHI+r, T+10, T+9))
    a('s_mov_b32 s%d, %s' % (sLG, f32(LOG2E)))
    def reduce64(r, sdst):
        for k in (8, 4, 2, 1):
            a('s_nop 1'); dpp('v_add_f32', r, r, r, 'row_ror:%d' % k)
        a('s_nop 1'); dpp('v_add_f32', r, r, r, 'row_bcast:15', rm=0xa)
        a('s_nop 1'); dpp('v_add_f32', r, r, r, 'row_bcast:31', rm=0xc)
        a('s_nop 0'); a('v_readlane_b32 s%d, v%d, 63' % (sdst, r)); a('s_nop 1')
    if stream:
        order, cap = stream
        big = [n for n in issued if n[0] in 'wk' ]
        if adapt:
            wait('D')
            a('v_sub_u32 v%d, s96, v%d' % (T+12, PRE+1))
            a('v_add_u32 v%d, %d, v%d' % (T+12, -adapt[0], T+12))
            a('v_cmp_gt_u32 vcc, 1000, v%d' % (T+12))
            a('s_nop 1'); a('s_cmp_lg_u64 vcc, 0'); a('s_cselect_b32 s97, 1, 0')
            vstamp(97, 0, '-late')
        for idx, n in enumerate(order.split()):
            if adapt:
                c1 = adapt[1] if idx < adapt[3] else adapt[2]
                if len(big) >= c1:
                    a('s_cmp_lg_u32 s97, 0'); a('s_cbranch_scc1 L_ad%d' % idx); wait(big[-c1]); lab('L_ad%d' % idx)
            if len(big) >= cap: wait(big[-cap])
            item(n); big.append(n)
            if n in ('k7', 'v7'): stamp('i' + n)
        stamp('iss')
        wait('v7'); stamp('v7')
        a('s_waitcnt vmcnt(0)'); stamp('all')
        a('s_branch L_done')
    stamp('set')
    wait('x1')
    morek(kpts[1])
    stamp('x')
    Fx = T
    for k in range(4): unpack(Fx+2*k, X4+k)
    unpack(Fx+8, X1)
    S, D, Q = T+10, T+11, T+22
    a('v_add_f32 v%d, v%d, v%d' % (S, Fx, Fx+1))
    for k in range(2, 10): a('v_add_f32 v%d, v%d, v%d' % (S, S, Fx+k))
    reduce64(S, sT0)
    a('v_mov_b32 v%d, %s' % (T+21, f32(1.0/640)))
    a('v_mul_f32 v%d, s%d, v%d' % (S, sT0, T+21))
    for k in range(10): a('v_sub_f32 v%d, v%d, v%d' % (D+k, Fx+k, S))
    a('v_mul_f32 v%d, v%d, v%d' % (Q, D, D))
    for k in range(1, 10): a('v_fmac_f32 v%d, v%d, v%d' % (Q, D+k, D+k))
    rnd(S)
    morek(kpts[2])
    reduce64(Q, sT0)
    a('v_mul_f32 v%d, s%d, v%d' % (Q, sT0, T+21))
    rnd(Q); a('v_add_f32 v%d, %s, v%d' % (Q, f32(1e-5), Q)); rnd(Q)
    a('v_sqrt_f32 v%d, v%d' % (Q, Q))
    for k in range(10): a('v_sub_f32 v%d, v%d, v%d' % (D+k, Fx+k, S))
    rnd(Q)
    a('v_rcp_f32 v%d, v%d' % (Q, Q))
    for k in range(5): cvt(Fx+k, D+2*k, D+2*k+1)
    for k in range(5): unpack(D+2*k, Fx+k)
    for k in range(10): a('v_mul_f32 v%d, v%d, v%d' % (D+k, D+k, Q))
    for k in range(5): cvt(Fx+k, D+2*k, D+2*k+1)
    a('ds_write_b128 v%d, %s offset:%d' % (AX4, v4(Fx), XN))
    a('ds_write_b32 v%d, v%d offset:%d' % (AX1, Fx+4, XN+1024))
    a('s_cmp_lt_u32 s%d, 2' % sW); a('s_cselect_b32 s%d, 128, 0' % sT0)
    a('v_add_u32 v%d, s%d, v%d' % (T+5, sT0, LXW))
    a('s_waitcnt lgkmcnt(0)')
    for t in range(5): a('ds_read_u16 v%d, v%d offset:%d' % (XV+t, LXQ, XN+2*qa[2]*t))
    a('ds_read_u16 v%d, v%d offset:%d' % (XW, LXW, XN))
    a('ds_read_u16 v%d, v%d offset:%d' % (XW+1, LXW, XN+64))
    a('ds_read_u16 v%d, v%d offset:%d' % (XW+2, T+5, XN))
    morek(kpts[3])
    stamp('ln')
    if stamps and probe is None and 'xcc' not in skip:
        a('s_lshr_b32 s%d, s%d, 8' % (sT0, sXC)); vstamp(sT0, 0, 'xcc')
    def perms(buf, src, sel):
        for r in range(4): a('v_perm_b32 v%d, v%d, v%d, v%d' % (buf+r, src, src, sel+r))
    def mfma(acc, A, B, first): a('v_mfma_f32_16x16x32_bf16 %s, %s, %s, %s' % (v4(acc), v4(A), v4(B), '0' if first else v4(acc)))
    a('v_lshlrev_b32 v%d, 5, v%d' % (T+20, M)); a('v_lshl_add_u32 v%d, v%d, 4, v%d' % (T+20, Gq, T+20))
    a('s_lshl_b32 s%d, s%d, 9' % (sT0, sW)); a('v_add_u32 v%d, s%d, v%d' % (T+20, sT0, T+20))
    a('v_and_b32 v%d, 3, v%d' % (T+21, LN_)); a('v_lshrrev_b32 v%d, 2, v%d' % (T+22, LN_)); a('v_lshlrev_b32 v%d, 4, v%d' % (T+22, T+22))
    a('s_lshl_b32 s%d, s%d, 7' % (sT0, sW)); a('v_add_u32 v%d, s%d, v%d' % (T+22, sT0, T+22))
    a('v_lshl_add_u32 v%d, v%d, 9, v%d' % (T+21, T+21, T+22))
    A5 = [AB[0], AB[1], T, T+4, T+8]
    a('s_waitcnt lgkmcnt(3)')
    for t in range(5): perms(A5[t], XV+t, SLO)
    for t in range(5):
        wait('wq%d' % t); mfma(ACA, A5[t], WQ+4*t, t == 0); pt('q%d' % t)
    wait('E')
    a('s_mov_b32 s%d, 1664525' % sT0)
    a('v_mul_lo_u32 v%d, v%d, s%d' % (NON, NON, sT0))
    a('v_add_u32 v%d, 1013904223, v%d' % (NON, NON))
    if qnib: qnon(T+4, 2)
    a('s_mov_b32 exec_hi, 0')
    if not qnib: a('s_nop 3')
    a('ds_write_b128 v%d, %s offset:%d' % (T+20, v4(ACA), QP))
    a('s_waitcnt lgkmcnt(0)')
    stamp('qpart')
    a('s_barrier')
    a('ds_read_b128 %s, v%d offset:%d' % (v4(T), T+21, QP))
    a('s_waitcnt lgkmcnt(0)')
    for ctl in (X1c, X2c):
        for j in range(4): dpp('v_add_f32', T+j, T+j, T+j, ctl)
    a('s_mov_b32 exec_lo, 0x11111111')
    qtag(T, T+4) if qnib else tag(T)
    ld('sq', 'buffer_store_dwordx4 %s, v%d, %s, s%d offen' % (v4(T), T+22, srd(sWS), sR0))
    a('s_mov_b64 exec, -1')
    stamp('qpub')
    first, rest = post_a.split('|') if '|' in post_a else ('', post_a)
    items(first)
    for t in range(3): perms(WQ+4*t, XW+t, SLO)
    if qnib: qnon(NQ, 0)
    ACH = WQ + 12
    a('s_lshl_b32 s%d, s%d, 10' % (sCNT, sW)); a('v_add_u32 v%d, s%d, v%d' % (T+14, sCNT, AX4))
    a('s_mov_b32 s%d, 0' % sNF)
    a('v_lshlrev_b32 v%d, 3, v%d' % (T+20, LN_))
    a('v_lshlrev_b32 v%d, 4, v%d' % (T+21, M))
    items(rest)
    def mirror(label, both, final=False):
        GA, GB = XV, X4
        a('s_mov_b32 s%d, %d' % (sW1O, SPIN))
        lab(label)
        ex(0xffffffff, 0)
        a('buffer_load_dwordx4 %s, v%d, %s, s%d offen %s' % (v4(GA), AX4, srd(sWS), sR0, pl))
        if both:
            a('s_mov_b32 exec_hi, 0x00ffffff')
            a('buffer_load_dwordx4 %s, v%d, %s, s%d offen %s' % (v4(GB), AX4, srd(sWS), sR1, pl))
        a('s_sub_u32 s%d, s%d, 1' % (sW1O, sW1O)); a('s_cbranch_scc1 %s_y' % label)
        a('s_waitcnt vmcnt(0)')
        if both:
            tagcheck(GB); a('s_cbranch_vccnz %s' % label); a('s_mov_b32 exec_hi, 0')
        qcheck(GA); a('s_cbranch_vccnz %s' % label)
        lab(label + '_y')
        if final and clean:
            a('buffer_store_dwordx4 %s, v%d, %s, s%d offen sc1' % (v4(GA), AX4, srd(sWS), sR0))
            a('s_cmp_ge_u32 s%d, s%d' % (sS, sIDLE)); a('s_cbranch_scc1 %s_z' % label)
            a('s_mov_b32 exec_hi, 0x00ffffff')
            a('buffer_store_dwordx4 %s, v%d, %s, s%d offen sc1' % (v4(GB), AX4, srd(sWS), sR1))
            a('s_mov_b32 exec_hi, 0')
            lab(label + '_z')
            a('s_cmp_eq_u64 s[22:23], 0'); a('s_cbranch_scc1 L_done')
        a('s_add_u32 s%d, s%d, %d' % (sW1O, sR0, RB))
        a('buffer_store_dwordx4 %s, v%d, %s, s%d offen sc1' % (v4(GA), AX4, srd(sWS), sW1O))
        if both:
            a('s_mov_b32 exec_hi, 0x00ffffff'); a('s_add_u32 s%d, s%d, %d' % (sKVO2, sR1, RB))
            a('buffer_store_dwordx4 %s, v%d, %s, s%d offen sc1' % (v4(GB), AX4, srd(sWS), sKVO2))
        a('s_mov_b64 exec, -1')
    def slow(label, loads, both, out, nfast=nfast):
        def rd(flag, soff):
            for G, ad, off in loads: a('buffer_load_dwordx4 %s, v%d, %s, %s offen offset:%d %s' % (v4(G), ad, srd(sWS), soff, off, flag))
            for k, (G, ad, off) in enumerate(loads):
                a('s_waitcnt vmcnt(%d)' % (len(loads) - 1 - k)); (tagcheck if both else qcheck)(G, 'vcc' if k == len(loads) - 1 else 's[4:5]')
            if len(loads) > 1: a('s_nop 0'); a('s_or_b64 vcc, vcc, s[4:5]')
        a('s_mov_b32 s%d, %d' % (sCNT, SPIN)); a('s_mov_b32 s%d, %d' % (sQO, RB))
        lab(label)
        rd(pl, '0')
        a('s_cbranch_vccz %s' % out)
        a('s_sub_u32 s%d, s%d, 1' % (sCNT, sCNT)); a('s_cbranch_scc1 %s' % out)
        a('s_cmp_gt_u32 s%d, %d' % (sCNT, SPIN - nfast)); a('s_cbranch_scc1 %s' % label)
        a('s_cmp_lt_u32 s%d, %d' % (sCNT, SPIN - nfast)); a('s_cbranch_scc1 %s_b' % label)
        mirror(label + '_m', both)
        lab(label + '_b')
        rd('sc1', 's%d' % sQO)
        a('s_cbranch_vccnz %s' % label)
        a('s_branch %s' % out)
    polls = [n for n in issued if n[0] == 'p']
    assert polls[0] == 'p0'
    wait('p0'); pt('p0'); qcheck(PQ)
    a('s_cbranch_vccnz L_q0')
    lab('L_qw')
    a('ds_write_b128 v%d, %s offset:%d' % (T+14, v4(PQ), QX))
    lab('L_qok')
    with cold():
        for j, n in enumerate(polls):
            if j:
                G = PQ + 4*int(n[1:])
                wait(n); pt('p%d' % j); qcheck(G)
                a('s_cbranch_vccnz L_q%d' % j)
                a('ds_write_b128 v%d, %s offset:%d' % (T+14, v4(G), QX))
                a('s_branch L_qok')
            lab('L_q%d' % j)
            a('s_mov_b32 s%d, %d' % (sNF, j+1))
        keep = issued[:]
        for nme in LATE: items(pts.get(nme, ''))
        del issued[:]; issued.extend(keep)
        a('s_mov_b32 s%d, 9' % sNF)
        slow('L_qs', [(PQ, AP0, 0)], False, 'L_qw')
    stamp('qok')
    vstamp(sNF, 0, '-nf')
    a('s_waitcnt lgkmcnt(0)')
    a('s_barrier')
    for k in range(8): a('ds_read_b64 %s, v%d offset:%d' % (v2(T+2*k), T+20, QX + 512*k))
    for j in range(1, len(polls)):
        if pts.get('p%d' % j):
            a('s_cmp_ge_u32 s%d, %d' % (sNF, j)); a('s_cbranch_scc1 L_skipf%d' % j)
            keep = issued[:]; pt('p%d' % j); del issued[:]; issued.extend(keep)
            lab('L_skipf%d' % j)
    pt('b')
    a('s_waitcnt lgkmcnt(6)'); a('v_pk_add_f32 %s, %s, %s' % (v2(T), v2(T), v2(T+2)))
    a('s_waitcnt lgkmcnt(4)'); a('v_pk_add_f32 %s, %s, %s' % (v2(T+4), v2(T+4), v2(T+6)))
    a('s_waitcnt lgkmcnt(2)'); a('v_pk_add_f32 %s, %s, %s' % (v2(T+8), v2(T+8), v2(T+10)))
    a('v_pk_add_f32 %s, %s, %s' % (v2(T), v2(T), v2(T+4)))
    a('s_waitcnt lgkmcnt(0)'); a('v_pk_add_f32 %s, %s, %s' % (v2(T+12), v2(T+12), v2(T+14)))
    a('v_pk_add_f32 %s, %s, %s' % (v2(T+8), v2(T+8), v2(T+12)))
    a('v_pk_add_f32 %s, %s, %s' % (v2(T), v2(T), v2(T+8)))
    cvt(T, T, T+1)
    a('ds_write_b32 v%d, v%d offset:%d' % (AX1, T, QB))
    a('s_waitcnt lgkmcnt(0)')
    Q4 = T+16
    a('ds_read_b128 %s, v%d offset:%d' % (v4(Q4), T+21, QB))
    pt('qs')
    wait('k7', ' lgkmcnt(0)')
    S8 = T
    for d in range(4):
        for i in range(8):
            a('v_dot2_f32_bf16 v%d, v%d, v%d, %s' % (S8+i, KK+4*i+d, Q4+d, ('v%d' % (S8+i)) if d else '0'))
    S = T+8
    pt('dot')
    for k in range(4): dpp('v_add_f32', S+k, S8+k, S8+k, 'row_ror:8', bm=0x3)
    for k in range(4): dpp('v_add_f32', S+k, S8+4+k, S8+4+k, 'row_ror:8', bm=0xc)
    for ctl in (HM, X2c, X1c):
        for k in range(4): dpp('v_add_f32', S+k, S+k, S+k, ctl)
    P = T+4
    cvt(P, S, S+1); cvt(P+1, S+2, S+3)
    unpack(S, P); unpack(S+2, P+1)
    for i in range(4): a('v_mul_f32 v%d, %s, v%d' % (S+i, f32(128 ** -0.5), S+i))
    cvt(P, S, S+1); cvt(P+1, S+2, S+3)
    unpack(S, P); unpack(S+2, P+1)
    MX, TM, LS = T+23, T+14, T+13
    a('v_max3_f32 v%d, v%d, v%d, v%d' % (MX, S, S+1, S+2)); a('v_max_f32 v%d, v%d, v%d' % (MX, MX, S+3))
    def xrow(r, op):
        a('s_nop 1'); dpp(op, r, r, r, 'row_ror:8')
        for sw in ('v_permlane16_swap_b32', 'v_permlane32_swap_b32'):
            a('v_mov_b32 v%d, v%d' % (TM, r)); a('s_nop 1'); a('%s v%d, v%d' % (sw, r, TM)); a('%s v%d, v%d, v%d' % (op, r, r, TM))
    xrow(MX, 'v_max_f32')
    if wmax:
        pt('s')
    else:
        a('s_lshl_b32 s%d, s%d, 2' % (sCNT, sW)); a('v_mov_b32 v%d, s%d' % (T+15, sCNT))
        a('ds_write_b32 v%d, v%d offset:%d' % (T+15, MX, ML))
        a('v_mov_b32 v%d, 0' % (T+22))
        pt('s')
        a('s_waitcnt lgkmcnt(0)')
        a('s_barrier')
        a('ds_read_b128 %s, v%d offset:%d' % (v4(T), T+22, ML))
        a('s_waitcnt lgkmcnt(0)')
        a('v_max3_f32 v%d, v%d, v%d, v%d' % (MX, T, T+1, T+2)); a('v_max_f32 v%d, v%d, v%d' % (MX, MX, T+3))
    a('v_mul_f32 v%d, %s, v%d' % (T+17, f32(-LOG2E), MX))
    for i in range(4): a('v_fma_f32 v%d, v%d, s%d, v%d' % (S+i, S+i, sLG, T+17))
    for i in range(4): a('v_exp_f32 v%d, v%d' % (S+i, S+i))
    a('s_nop 0')
    cvt(P, S, S+1); cvt(P+1, S+2, S+3)
    a('v_add_f32 v%d, v%d, v%d' % (LS, S, S+1)); a('v_add_f32 v%d, v%d, v%d' % (T+17, S+2, S+3)); a('v_add_f32 v%d, v%d, v%d' % (LS, LS, T+17))
    pt('e')
    stamp('exp')
    A4 = [AB[0], AB[1], T, T+8]
    def dwrite(off):
        a('s_mov_b32 exec_hi, 0')
        a('ds_write_b128 v%d, %s offset:%d' % (LD, v4(ACA), off))
        a('s_mov_b32 exec_lo, 0'); a('s_mov_b32 exec_hi, -1')
        a('ds_write_b128 v%d, %s offset:%d' % (LD, v4(ACB), off))
        a('s_mov_b32 exec_lo, -1')
    perms(A4[0], P, SLO); perms(A4[1], P, SHI); perms(A4[2], P+1, SLO); perms(A4[3], P+1, SHI)
    xrow(LS, 'v_add_f32')
    if wmax:
        a('s_lshl_b32 s%d, s%d, 3' % (sCNT, sW)); a('v_mov_b32 v%d, s%d' % (T+15, sCNT))
        a('ds_write2_b32 v%d, v%d, v%d offset0:%d offset1:%d' % (T+15, MX, LS, 0, 1)) if False else None
        a('ds_write_b32 v%d, v%d offset:%d' % (T+15, MX, ML)); a('ds_write_b32 v%d, v%d offset:%d' % (T+15, LS, ML+4))
        a('v_mov_b32 v%d, 0' % (T+22))
        a('v_and_b32 v%d, 6, v%d' % (T+21, PART)); a('v_lshlrev_b32 v%d, 2, v%d' % (T+21, T+21))
    else: a('ds_write_b32 v%d, v%d offset:%d' % (T+15, LS, ML+16))
    a('v_lshl_add_u32 v%d, v%d, 8, v%d' % (T+17, PART, AH))
    for t in range(3): wait('u%d' % t); mfma(ACH, WQ+4*t, W1+4*t, t == 0)
    a('s_cmp_eq_u32 s%d, 0' % sW); a('s_cselect_b32 s%d, 0x03030303, 0' % sCNT); a('s_or_b32 s%d, s%d, 0x01010101' % (sCNT, sCNT))
    a('s_nop 4')
    ex(0x00ff00ff, 0xff00ff00)
    a('ds_write_b128 v%d, %s offset:%d' % (LH, v4(ACH), HP))
    a('s_mov_b64 exec, -1')
    for i in range(8):
        wait('v%d' % i)
        mfma(ACA if i < 4 else ACB, A4[i & 3], VV+4*i, (i & 3) == 0)
        pt('pv%d' % i)
    a('s_mov_b32 exec_hi, 0'); a('s_nop 2')
    a('ds_write_b128 v%d, %s offset:%d' % (LD, v4(ACA), OP))
    a('s_mov_b32 exec_lo, 0'); a('s_mov_b32 exec_hi, -1'); a('s_nop 0')
    a('ds_write_b128 v%d, %s offset:%d' % (LD, v4(ACB), OP))
    a('s_mov_b32 exec_lo, -1')
    a('s_cmp_ge_u32 s%d, s%d' % (sS, sIDLE))
    a('s_waitcnt lgkmcnt(0)')
    stamp('pv')
    a('s_barrier')
    if wmax:
        a('ds_read_b128 %s, v%d offset:%d' % (v4(T+8), T+22, ML)); a('ds_read_b128 %s, v%d offset:%d' % (v4(AB[0]), T+22, ML+16))
        a('ds_read_b64 %s, v%d offset:%d' % (v2(T+4), T+21, ML))
        a('ds_read_b128 %s, v%d offset:%d' % (v4(T), LCB, OP))
        a('ds_read_b128 %s, v%d offset:%d' % (v4(AB[1]), T+17, HP))
        a('s_waitcnt lgkmcnt(3)')
        a('v_max3_f32 v%d, v%d, v%d, v%d' % (MX, T+8, T+10, AB[0])); a('v_max_f32 v%d, v%d, v%d' % (MX, MX, AB[0]+2))
        a('s_waitcnt lgkmcnt(2)')
        a('v_sub_f32 v%d, v%d, v%d' % (T+4, T+4, MX)); a('v_mul_f32 v%d, s%d, v%d' % (T+4, sLG, T+4)); a('v_exp_f32 v%d, v%d' % (T+4, T+4))
        a('v_mul_f32 v%d, 0.5, v%d' % (T+5, T+5))
        a('s_waitcnt lgkmcnt(1)')
        a('v_mul_f32 v%d, v%d, v%d' % (T+5, T+5, T+4))
        for j in range(4): a('v_mul_f32 v%d, v%d, v%d' % (T+j, T+j, T+4))
        for ctl in (X1c, X2c, HM):
            dpp('v_add_f32', T+5, T+5, T+5, ctl)
            for j in range(4): dpp('v_add_f32', T+j, T+j, T+j, ctl)
        ex(0x02020202)
        a('v_mov_b32 v%d, v%d' % (T, MX)); a('v_mov_b32 v%d, v%d' % (T+1, T+5)); a('v_mov_b32 v%d, s%d' % (T+2, sXC))
    else:
        a('ds_read_b128 %s, v%d offset:%d' % (v4(T), LCB, OP))
        a('ds_read_b128 %s, v%d offset:%d' % (v4(AB[0]), T+22, ML+16))
        a('ds_read_b128 %s, v%d offset:%d' % (v4(AB[1]), T+17, HP))
        a('s_waitcnt lgkmcnt(2)')
        for j in range(4): dpp('v_add_f32', T+j, T+j, T+j, X1c)
        a('s_waitcnt lgkmcnt(1)')
        a('v_add_f32 v%d, v%d, v%d' % (AB[0], AB[0], AB[0]+1)); a('v_add_f32 v%d, v%d, v%d' % (AB[0]+2, AB[0]+2, AB[0]+3))
        for ctl in (X2c, HM):
            for j in range(4): dpp('v_add_f32', T+j, T+j, T+j, ctl)
        ex(0x02020202)
        a('v_mov_b32 v%d, v%d' % (T, MX)); a('v_add_f32 v%d, v%d, v%d' % (T+1, AB[0], AB[0]+2)); a('v_mov_b32 v%d, s%d' % (T+2, sXC))
    a('s_mov_b32 exec_lo, s%d' % sCNT); a('s_mov_b32 exec_hi, s%d' % sCNT)
    tag(T)
    if clean:
        a('s_cbranch_scc1 L_so1')
    ld('so', 'buffer_store_dwordx4 %s, v%d, %s, s%d offen' % (v4(T), AOS, srd(sWS), sR1))
    if clean:
        lab('L_so2')
        txt = L[-2]
        with cold():
            lab('L_so1'); cur[0].append(txt + ' sc1'); a('s_branch L_so2')
    a('s_mov_b64 exec, -1')
    stamp('opub')
    pt('o')
    a('s_waitcnt lgkmcnt(0)')
    for ctl in (X1c, X2c, HM):
        for j in range(4): dpp('v_add_f32', AB[1]+j, AB[1]+j, AB[1]+j, ctl)
    ex(0x01010101, 0)
    tag(AB[1])
    if clean:
        a('s_cbranch_scc1 L_sh1')
    ld('sh', 'buffer_store_dwordx4 %s, v%d, %s, s%d offen offset:512' % (v4(AB[1]), AH, srd(sWS), sR1))
    if clean:
        lab('L_sh2')
        txt = L[-2]
        with cold():
            lab('L_sh1'); cur[0].append(txt + ' sc1'); a('s_branch L_sh2')
    a('s_mov_b64 exec, -1')
    a('s_cbranch_scc1 L_red')
    a('s_sub_u32 s%d, s%d, 5' % (sT0, sS)); a('s_cmp_lt_u32 s%d, 2' % sT0)
    a('s_cselect_b32 s%d, 0x10101010, 0' % sNF); a('s_or_b32 s%d, s%d, 0x01010101' % (sNF, sNF))
    if tight1:
        items(post_o.replace('r0', ''))
        a('s_movk_i32 s%d, %d' % (sCNT, nfast))
        a('s_branch L_t1') if False else None
        lab('L_t1')
        a('buffer_load_dwordx4 %s, v%d, %s, 0 offen offset:768 %s' % (v4(Gm), AML, srd(sWS), pl))
        a('buffer_load_dwordx4 %s, v%d, %s, 0 offen %s' % (v4(Gd), AP1, srd(sWS), pl))
        a('s_sub_u32 s%d, s%d, 1' % (sCNT, sCNT)); a('s_cbranch_scc1 L_p1s')
        a('s_waitcnt vmcnt(1)'); tagcheck(Gm, 's[4:5]')
        a('v_and_b32 v%d, 0xffff0000, v%d' % (T+15, Gm))
        a('s_waitcnt vmcnt(0)'); tagcheck(Gd)
        a('s_or_b64 vcc, vcc, s[4:5]')
        a('s_cbranch_vccnz L_t1')
        lab('L_p1x')
        with cold():
            lab('L_p1s')
            a('s_waitcnt vmcnt(0)')
            slow('L_p1', [(Gm, AML, 768), (Gd, AP1, 0)], True, 'L_p1y', 1)
            lab('L_p1y')
            a('v_and_b32 v%d, 0xffff0000, v%d' % (T+15, Gm))
            a('s_nop 0')
            a('s_branch L_p1x')
        issued.extend(['r0m', 'r0'])
    else:
        items(post_o)
        wait('r0m'); tagcheck(Gm, 's[4:5]')
        wait('r0'); tagcheck(Gd)
        a('v_and_b32 v%d, 0xffff0000, v%d' % (T+15, Gm))
        a('s_or_b64 vcc, vcc, s[4:5]')
        a('s_cbranch_vccnz L_p1s')
        lab('L_p1x')
        with cold():
            lab('L_p1s')
            for j in (1, 2):
                if 'r%d' % j in issued:
                    gd, gm = [(Gd, Gm), (PQ, PQ+4), (PQ+8, PQ+12)][j]
                    wait('r%dm' % j); tagcheck(gm, 's[4:5]')
                    wait('r%d' % j); tagcheck(gd)
                    a('s_nop 0'); a('s_or_b64 vcc, vcc, s[4:5]')
                    a('s_cbranch_vccnz L_r%d' % j)
                    for k in range(4): a('v_mov_b32 v%d, v%d' % (Gd+k, gd+k))
                    for k in range(3): a('v_mov_b32 v%d, v%d' % (Gm+k, gm+k))
                    a('s_branch L_p1y')
                    lab('L_r%d' % j)
            slow('L_p1', [(Gm, AML, 768), (Gd, AP1, 0)], True, 'L_p1y')
            lab('L_p1y')
            a('v_and_b32 v%d, 0xffff0000, v%d' % (T+15, Gm))
            a('s_nop 0')
            a('s_branch L_p1x')
    stamp('p1')
    a('s_cmp_ge_u32 s%d, 5' % sS); a('s_cbranch_scc1 L_hpath')
    def ftail(third, sfx):
        cvt(P, Gd, Gd+1); cvt(P+1, Gd+2, Gd+3)
        perms(A4[0], P, SLO); perms(A4[1], P, SHI)
        wait('f7')
        mfma(ACA, A4[0], FF, True); mfma(ACB, A4[0], FF+16, True)
        perms(A4[2], P+1, SLO)
        mfma(ACA, A4[1], FF+4, False); mfma(ACB, A4[1], FF+20, False)
        perms(A4[3], P+1, SHI)
        mfma(ACA, A4[2], FF+8, False); mfma(ACB, A4[2], FF+24, False)
        mfma(ACA, A4[3], FF+12, False); mfma(ACB, A4[3], FF+28, False)
        a('v_and_b32 v%d, 0xffffff00, v%d' % (Gm+2, Gm+2))
        a('v_cmp_ne_u32 s[22:23], s%d, v%d' % (sXC, Gm+2))
        a('s_nop 3')
        dwrite(FP)
        a('s_waitcnt lgkmcnt(0)')
        stamp('fmm')
        a('s_barrier')
        a('ds_read_b128 %s, v%d offset:%d' % (v4(T), LCB, FP))
        a('s_cmp_eq_u64 s[22:23], 0')
        a('s_waitcnt lgkmcnt(0)')
        for ctl in (X1c, X2c) + ((HM,) if third else ()):
            for j in range(4): dpp('v_add_f32', T+j, T+j, T+j, ctl)
        a('s_mov_b32 exec_lo, s%d' % sNF); a('s_mov_b32 exec_hi, s%d' % sNF)
        tag(T)
        a('buffer_store_dwordx4 %s, v%d, %s, s%d offen sc1' % (v4(T), AFS, srd(sWS), sREC))
        stamp('fpub')
        if stamps and probe is None and 'ack' not in skip: a('s_waitcnt vmcnt(0)'); stamp('ack')
        if wbl and third:
            a('s_cbranch_scc0 L_em')
            a('s_or_b32 s%d, s%d, s%d' % (sT0, sS, sW)); a('s_cbranch_scc1 L_done')
            a('buffer_wbl2 sc1'); a('s_branch L_done')
        if spread and not third:
            a('s_cbranch_scc0 L_em')
            a('s_lshl_b32 s%d, s%d, 2' % (sT0, sS)); a('s_add_u32 s%d, s%d, s%d' % (sT0, sT0, sW))
            a('s_cmp_lg_u32 s%d, 30' % sT0); a('s_cbranch_scc1 L_done')
            a('s_mov_b64 exec, -1')
            a('s_mov_b32 s%d, s%d' % (sREC, sHM)); a('s_branch L_red3')
        elif clean:
            a('s_cbranch_scc0 L_em')
            a('s_cmp_eq_u32 s%d, 3' % sW); a('s_cbranch_scc1 L_em')
            a('s_branch L_done') if stamps or probe is not None else a('s_endpgm')
        elif stamps or probe is not None:
            a('s_cbranch_scc1 L_done'); a('s_branch L_em')
        else:
            a('s_cbranch_scc0 L_em'); a('s_endpgm')
    Mp, Mx, Wt = T+15, T+13, T+14
    dpp('v_max_f32', Mx, Mp, Mp, X1c)
    a('s_nop 1'); dpp('v_max_f32', Mx, Mx, Mx, X2c)
    a('s_nop 1'); dpp('v_max_f32', Mx, Mx, Mx, HM)
    a('v_sub_f32 v%d, v%d, v%d' % (Wt, Mp, Mx)); a('v_mul_f32 v%d, s%d, v%d' % (Wt, sLG, Wt)); a('v_exp_f32 v%d, v%d' % (Wt, Wt))
    a('s_nop 0')
    a('v_mul_f32 v%d, v%d, v%d' % (Mx, Wt, Gm+1))
    for j in range(4): a('v_mul_f32 v%d, v%d, v%d' % (Gd+j, Wt, Gd+j))
    for ctl in (X1c, X2c):
        dpp('v_add_f32', Mx, Mx, Mx, ctl)
        for j in range(4): dpp('v_add_f32', Gd+j, Gd+j, Gd+j, ctl)
    dpp('v_add_f32', Mx, Mx, Mx, HM)
    a('v_rcp_f32 v%d, v%d' % (Mx, Mx))
    for j in range(4): dpp('v_add_f32', Gd+j, Gd+j, Gd+j, HM)
    for j in range(4): a('v_mul_f32 v%d, v%d, v%d' % (Gd+j, Mx, Gd+j))
    ftail(True, 'a')
    lab('L_hpath')
    for ctl in (X1c, X2c, HM):
        for j in range(4): dpp('v_add_f32', Gd+j, Gd+j, Gd+j, ctl)
    cvt(P, Gd, Gd+1); cvt(P+1, Gd+2, Gd+3)
    unpack(Gd, P); unpack(Gd+2, P+1)
    for j in range(4): a('v_mul_f32 v%d, %s, v%d' % (T+12+j, f32(-LOG2E), Gd+j))
    for j in range(4): a('v_exp_f32 v%d, v%d' % (T+12+j, T+12+j))
    for j in range(4): a('v_add_f32 v%d, 1.0, v%d' % (T+12+j, T+12+j))
    for j in range(4): a('v_rcp_f32 v%d, v%d' % (T+12+j, T+12+j))
    for j in range(4): a('v_mul_f32 v%d, v%d, v%d' % (Gd+j, Gd+j, T+12+j))
    ftail(False, 'b')
    lab('L_red')
    XA, XB, AO, AP2, XF = 72, 73, 74, 75, 76
    a('s_mov_b64 s[22:23], -1')
    a('s_cmp_eq_u32 s%d, 3' % sW); a('s_cbranch_scc1 L_em')
    lab('L_red2')
    a('s_sub_u32 s%d, s%d, 5' % (sQO, sS)); a('s_mul_i32 s%d, s%d, 5' % (sQO, sQO)); a('s_add_u32 s%d, s%d, s%d' % (sQO, sQO, sHM)); a('s_sub_u32 s%d, s%d, 27' % (sQO, sQO))
    if spread:
        a('s_cmp_lg_u32 s%d, 0' % sW); a('s_cbranch_scc1 L_done')
        a('s_add_u32 s%d, s%d, 27' % (sREC, sQO))
    else:
        a('s_mul_i32 s%d, s%d, %d' % (sQO, sQO, 4 if r4 else 3)); a('s_add_u32 s%d, s%d, s%d' % (sREC, sQO, sW))
    a('s_cmp_ge_u32 s%d, 40' % sREC); a('s_cbranch_scc1 L_done')
    lab('L_red3')
    base(sOUT, 20); size(sOUT, 1280)
    a('v_and_b32 v%d, 3, v%d' % (T+2, LN_)); a('v_lshrrev_b32 v%d, 2, v%d' % (T+3, LN_))
    a('v_lshlrev_b32 v%d, 7, v%d' % (AP2, T+3)); a('v_lshl_add_u32 v%d, v%d, 4, v%d' % (AP2, T+2, AP2))
    a('s_lshl_b32 s%d, s%d, 13' % (sQO, sREC)); a('s_add_u32 s%d, s%d, %d' % (sQO, sQO, R2)); a('v_add_u32 v%d, s%d, v%d' % (AP2, sQO, AP2))
    a('s_lshl_b32 s%d, s%d, 5' % (sQO, sREC)); a('v_lshl_add_u32 v%d, v%d, 3, s%d' % (AO, T+2, sQO))
    a('buffer_load_dwordx2 %s, v%d, %s, 0 offen' % (v2(XF), AO, srd(sX)))
    if otouch: a('buffer_load_dword v%d, v%d, %s, 0 offen %s' % (TCH, AO, srd(sOUT), otouch if isinstance(otouch, str) else ''))
    a('v_and_b32 v%d, 1, v%d' % (T+4, Gq)); a('v_lshl_add_u32 v%d, v%d, 1, v%d' % (AO, T+4, AO))
    a('v_lshlrev_b32 v%d, 4, v%d' % (T+4, T+4)); a('v_sub_u32 v%d, 16, v%d' % (T+4, T+4))
    for j in range(12, 16): a('v_mov_b32 v%d, 0' % (KK+j))
    a('s_waitcnt vmcnt(0)')
    a('v_lshlrev_b32 v%d, v%d, v%d' % (XA, T+4, XF)); a('v_lshlrev_b32 v%d, v%d, v%d' % (XB, T+4, XF+1))
    a('v_and_b32 v%d, 0xffff0000, v%d' % (XA, XA)); a('v_and_b32 v%d, 0xffff0000, v%d' % (XB, XB))
    if delay2: a('s_sleep %d' % delay2)
    PM = [32, 34, 36, 38]
    for j in range(3): a('s_mov_b64 s[%d:%d], -1' % (PM[j], PM[j]+1))
    a('s_mov_b32 s%d, -1' % PM[3]); a('s_mov_b32 s%d, 0xfff' % (PM[3]+1))
    a('s_mov_b32 s%d, %d' % (sCNT, SPIN))
    a('s_movk_i32 s%d, 4096' % sQO)
    if depth2 == 1:
        lab('L_p2')
        for j in range(4):
            a('s_mov_b64 exec, s[%d:%d]' % (PM[j], PM[j]+1)); a('s_cbranch_execz L_p2s%d' % j)
            a('buffer_load_dwordx4 %s, v%d, %s, %s offen offset:%d %s' % (v4(KK+4*j), AP2, srd(sWS), ('s%d' % sQO) if j >= 2 else '0', 2048*(j & 1), p2f))
            lab('L_p2s%d' % j)
        stamp('lastiss')
        a('s_sub_u32 s%d, s%d, 1' % (sCNT, sCNT)); a('s_cbranch_scc1 L_p2x')
        a('s_waitcnt vmcnt(0)')
        for j in range(4):
            a('s_mov_b64 exec, s[%d:%d]' % (PM[j], PM[j]+1))
            tagcheck(KK+4*j, 's[%d:%d]' % (PM[j], PM[j]+1))
        a('s_or_b64 s[4:5], s[%d:%d], s[%d:%d]' % (PM[0], PM[0]+1, PM[1], PM[1]+1)); a('s_or_b64 s[4:5], s[4:5], s[%d:%d]' % (PM[2], PM[2]+1))
        a('s_or_b64 s[4:5], s[4:5], s[%d:%d]' % (PM[3], PM[3]+1))
        if backoff2:
            a('s_cbranch_scc0 L_p2x'); a('s_sleep %d' % backoff2); a('s_branch L_p2')
        else:
            a('s_cbranch_scc1 L_p2')
    else:
        SETS = [VV + 16*k for k in range(depth2)]
        def issue(G):
            for j in range(4):
                a('s_or_b64 exec, s[%d:%d], 1' % (PM[j], PM[j]+1))
                a('buffer_load_dwordx4 %s, v%d, %s, %s offen offset:%d %s' % (v4(G+4*j), AP2, srd(sWS), ('s%d' % sQO) if j >= 2 else '0', 2048*(j & 1), p2f))
        for k in range(depth2 - 1):
            issue(SETS[k]); a('s_sleep %d' % gap2)
        lab('L_p2')
        for k in range(depth2):
            issue(SETS[(k + depth2 - 1) % depth2])
            stamp('lastiss')
            a('s_waitcnt vmcnt(%d)' % (4*(depth2 - 1)))
            G = SETS[k]
            for j in range(4):
                a('s_mov_b64 exec, s[%d:%d]' % (PM[j], PM[j]+1)); a('s_cbranch_execz L_p2c%d_%d' % (k, j))
                tagcheck(G+4*j, 's[%d:%d]' % (PM[j], PM[j]+1))
                for c in range(4): a('v_mov_b32 v%d, v%d' % (KK+4*j+c, G+4*j+c))
                lab('L_p2c%d_%d' % (k, j))
            a('s_or_b64 s[4:5], s[%d:%d], s[%d:%d]' % (PM[0], PM[0]+1, PM[1], PM[1]+1)); a('s_or_b64 s[4:5], s[4:5], s[%d:%d]' % (PM[2], PM[2]+1))
            a('s_or_b64 s[4:5], s[4:5], s[%d:%d]' % (PM[3], PM[3]+1))
            a('s_cbranch_scc0 L_p2x')
        a('s_sub_u32 s%d, s%d, 1' % (sCNT, sCNT)); a('s_cbranch_scc0 L_p2')
    lab('L_p2x')
    stamp('p2')
    a('s_mov_b64 exec, -1')
    A_, B_ = KK, KK+8
    for j in range(4): a('v_add_f32 v%d, v%d, v%d' % (A_+j, A_+j, A_+4+j))
    for j in range(4): a('v_add_f32 v%d, v%d, v%d' % (B_+j, B_+j, B_+4+j))
    for j in range(4): a('v_permlane32_swap_b32 v%d, v%d' % (A_+j, B_+j))
    for j in range(4): a('v_add_f32 v%d, v%d, v%d' % (A_+j, A_+j, B_+j))
    a('v_permlane16_swap_b32 v%d, v%d' % (A_, A_+1)); a('s_nop 0'); a('v_permlane16_swap_b32 v%d, v%d' % (A_+2, A_+3))
    a('v_add_f32 v%d, v%d, v%d' % (A_, A_, A_+1)); a('v_add_f32 v%d, v%d, v%d' % (A_+2, A_+2, A_+3))
    for k in (4, 8):
        a('s_nop 0'); dpp('v_add_f32', A_, A_, A_, 'row_ror:%d' % k); dpp('v_add_f32', A_+2, A_+2, A_+2, 'row_ror:%d' % k)
    cvt(A_, A_, A_+2); a('v_mov_b32 v%d, v%d' % (A_+1, A_))
    a('s_nop 1')
    a('v_permlane32_swap_b32 v%d, v%d' % (A_, A_+1))
    unpack(B_, A_); unpack(B_+2, A_+1)
    a('v_add_f32 v%d, v%d, v%d' % (B_, B_, XA)); a('v_add_f32 v%d, v%d, v%d' % (B_+1, B_+1, XB))
    cvt(A_, B_, B_+1); unpack(B_, A_)
    a('v_add_f32 v%d, v%d, v%d' % (B_, B_, B_+2)); a('v_add_f32 v%d, v%d, v%d' % (B_+1, B_+1, B_+3))
    cvt(A_, B_, B_+1)
    if clean or wbl:
        a('s_mov_b32 s%d, 0x05040100' % sT0); a('s_mov_b32 s%d, 0x07060302' % sT1)
        a('v_permlane16_swap_b32 v%d, v%d' % (A_, A_+1))
        a('s_mov_b64 exec, 15')
        a('v_perm_b32 v%d, v%d, v%d, s%d' % (A_+2, A_+1, A_, sT0)); a('v_perm_b32 v%d, v%d, v%d, s%d' % (A_+3, A_+1, A_, sT1))
        a('buffer_store_dwordx2 %s, v%d, %s, 0 offen sc1' % (v2(A_+2), AO, srd(sOUT)))
    else:
        a('s_mov_b64 exec, 0x000f000f')
        a('buffer_store_short v%d, v%d, %s, 0 offen' % (A_, AO, srd(sOUT)))
        a('buffer_store_short_d16_hi v%d, v%d, %s, 0 offen offset:4' % (A_, AO, srd(sOUT)))
    a('s_cmp_lg_u32 s%d, 0' % sREC); a('s_cbranch_scc1 L_done')
    a('s_mov_b64 exec, 1')
    a('buffer_store_dword v%d, v%d, %s, 0 offen %s' % (NON, AO, srd(sWS), 'sc1' if clean or wbl else ''))
    a('s_branch L_done')
    L.extend(COLD)
    lab('L_em')
    mirror('L_emm', True, True)
    if r4:
        a('s_cmp_ge_u32 s%d, s%d' % (sS, sIDLE)); a('s_cbranch_scc1 L_red2')
    if spread:
        a('s_lshl_b32 s%d, s%d, 2' % (sT0, sS)); a('s_add_u32 s%d, s%d, s%d' % (sT0, sT0, sW))
        a('s_cmp_lg_u32 s%d, 30' % sT0); a('s_cbranch_scc1 L_done')
        a('s_mov_b32 s%d, s%d' % (sREC, sHM)); a('s_branch L_red3')
    lab('L_done')
    if probe is not None:
        stamp('end')
        a('s_waitcnt vmcnt(0) lgkmcnt(0)')
        a('s_sub_u32 s76, s76, s74'); a('s_mul_i32 s76, s76, %d' % amp); a('s_add_u32 s76, s76, %d' % base_ticks)
        lab('L_spin')
        a('s_memrealtime s[78:79]'); a('s_waitcnt lgkmcnt(0)')
        a('s_sub_u32 s78, s78, s74'); a('s_cmp_lt_u32 s78, s76'); a('s_cbranch_scc1 L_spin')
    elif stamps:
        a('s_mov_b64 exec, -1')
        stamp('pend')
        a('s_waitcnt vmcnt(0)')
        stamp('end')
        a('s_waitcnt vmcnt(0) lgkmcnt(0)')
        a('v_mov_b32 v%d, 0' % T)
        for j, r in enumerate(st): a('v_writelane_b32 v%d, s%d, %d' % (T, r, j))
        a('s_mul_i32 s3, s2, %d' % (5 if tlb else 4)); a('s_add_u32 s3, s3, s%d' % sW); a('s_lshl_b32 s3, s3, 8'); a('s_add_u32 s3, s3, 0x8000000')
        a('buffer_store_dword v%d, v%d, %s, s3 offen' % (T, AX1, srd(sWS)))
    lab('L_end')
    a('s_endpgm')
    L += ['.section .rodata,"a"', '.p2align 6', '.amdhsa_kernel %s_kernel' % NAME,
          '  .amdhsa_next_free_vgpr %d' % NV, '  .amdhsa_next_free_sgpr 102', '  .amdhsa_accum_offset %d' % ((NV+3)//4*4),
          '  .amdhsa_group_segment_fixed_size 0', '  .amdhsa_kernarg_size 88', '  .amdhsa_user_sgpr_count 2',
          '  .amdhsa_user_sgpr_kernarg_segment_ptr 1', '  .amdhsa_system_sgpr_workgroup_id_x 1', '.end_amdhsa_kernel']
    if stamps and probe is None: L.insert(1, '; STAMPS ' + ' '.join(names))
    return '\n'.join(L) + '\n', names

def emit(name, probes=(), **kw):
    for sfx, extra in [('', {}), ('_s', dict(stamps=True))] + [('_p' + p, dict(probe=p)) for p in probes]:
        s, ns = gen(**kw, **extra); open(name + sfx + '.s', 'w').write(s)
        e = check(s)
        if e: print(name + sfx, 'HAZARDS'); [print('  ', x) for x in e]
```
